```python
import torch

def _softmax(x, axis=-1):
    return torch.softmax(x, dim=axis)

def _gelu(x):
    return torch.nn.functional.gelu(x, approximate='tanh')

def _silu(x):
    return torch.nn.functional.silu(x)

def _sigmoid(x):
    return torch.sigmoid(x)

def _layernorm(x, axis=-1, eps=1e-05):
    m = x.mean(dim=axis, keepdim=True)
    v = x.var(dim=axis, keepdim=True, unbiased=False)
    return (x - m) / torch.sqrt(v + eps)

def _scatter_add(tgt, idx, src, axis=0):
    return tgt.clone().index_add_(axis, idx, src)

def _segment_sum(src, seg, n):
    out = torch.zeros((n,) + src.shape[1:], dtype=src.dtype)
    return out.index_add_(0, seg, src)

def _pad(x, pw):
    flat = tuple((v for pair in reversed(pw) for v in pair))
    return torch.nn.functional.pad(x, flat)
kernel_name = 'parallel_sum__memory_aug_recurrent_mem_tr__dense_activation_silu__prompt'

def setup_inputs():

    _w = lambda a: (lambda t: t.to(torch.bfloat16) if t.is_floating_point() else t)(torch.as_tensor(a))

    def _A_setup():
        B, S, Dm = (1, 2048, 1024)
        H, Dh = (32, 128)
        M, seg = (8, 32)
        seg = min(seg, S)
        S = S // seg * seg
        return {'x': _w((lambda *s: torch.randn(*s, dtype=torch.bfloat16) * 0.05)(B, S, Dm)), 'mem0': _w((lambda *s: torch.randn(*s, dtype=torch.bfloat16) * 0.2)(B, M, Dm)), 'Wq': _w((lambda *s: torch.randn(*s, dtype=torch.bfloat16) * 1.6)(Dm, H, Dh) * Dm ** (-0.5)), 'Wk': _w((lambda *s: torch.randn(*s, dtype=torch.bfloat16) * 1.6)(Dm, H, Dh) * Dm ** (-0.5)), 'Wv': _w((lambda *s: torch.randn(*s, dtype=torch.bfloat16) * 0.2)(Dm, H, Dh) * Dm ** (-0.5)), 'Wo': _w((lambda *s: torch.randn(*s, dtype=torch.bfloat16) * 0.2)(H, Dh, Dm) * (H * Dh) ** (-0.5)), 'seg_len': seg}
    _A_in = _A_setup()

    def _B_setup():
        B, S, D, F = (1, 2048, 1024, 3584)
        return {'x': _w((lambda *s: torch.randn(*s, dtype=torch.bfloat16) * 0.05)(B, S, D)), 'w1': _w((lambda *s: torch.randn(*s, dtype=torch.bfloat16) * 0.8)(D, F) * D ** (-0.5)), 'w2': _w((lambda *s: torch.randn(*s, dtype=torch.bfloat16) * 0.1)(F, D) * F ** (-0.5))}
    _B_in = _B_setup()
    return {'A_x': _A_in['x'], 'A_mem0': _A_in['mem0'], 'A_Wq': _A_in['Wq'], 'A_Wk': _A_in['Wk'], 'A_Wv': _A_in['Wv'], 'A_Wo': _A_in['Wo'], 'A_seg_len': _A_in['seg_len'], 'B_x': _B_in['x'], 'B_w1': _B_in['w1'], 'B_w2': _B_in['w2']}

def reference(A_x, A_mem0, A_Wq, A_Wk, A_Wv, A_Wo, A_seg_len, B_x, B_w1, B_w2):

    def _A_ref(x, mem0, Wq, Wk, Wv, Wo, seg_len):
        B, S, Dm = x.shape
        H, Dh = (Wq.shape[1], Wq.shape[2])
        M = mem0.shape[1]
        scale = Dh ** (-0.5)
        n_seg = S // seg_len
        L = M + seg_len
        idx = torch.arange(L)
        mask = (idx[:, None] < M) | (idx[:, None] >= idx[None, :])
        mem = mem0
        outs = []
        for s in range(n_seg):
            xs = x[:, s * seg_len:(s + 1) * seg_len, :].clone()
            h = torch.concatenate([mem, xs], axis=1)
            q = torch.einsum('btd,dhe->bhte', h, Wq)
            k = torch.einsum('btd,dhe->bhte', h, Wk)
            v = torch.einsum('btd,dhe->bhte', h, Wv)
            scores = torch.einsum('bhqe,bhke->bhqk', q, k) * scale
            scores = torch.where(mask[None, None], scores, -1000000000.0)
            p = _softmax(scores, axis=-1)
            o = torch.einsum('bhqk,bhke->bhqe', p, v)
            o = torch.einsum('bhte,hed->btd', o, Wo)
            mem = o[:, :M, :].clone()
            outs.append(o[:, M:, :])
        return torch.concatenate(outs, axis=1)

    def _B_ref(x, w1, w2):
        h = torch.einsum('bsd,df->bsf', x, w1)
        h = _silu(h)
        out = torch.einsum('bsf,fd->bsd', h, w2)
        return out
    x = A_x
    xn = _layernorm(x, axis=-1)
    return x + _A_ref(xn, A_mem0, A_Wq, A_Wk, A_Wv, A_Wo, A_seg_len) + _B_ref(xn, B_w1, B_w2)
```

```python
import re


def v(i, n=1):
    return f"v{i}" if n == 1 else f"v[{i}:{i + n - 1}]"


def a(i, n=1):
    return f"a{i}" if n == 1 else f"a[{i}:{i + n - 1}]"


def s(i, n=1):
    return f"s{i}" if n == 1 else f"s[{i}:{i + n - 1}]"


_REG = re.compile(r"^([vas])(\d+)$|^([vas])\[(\d+):(\d+)\]$")


def regs_of(op):
    op = op.strip()
    op = op.lstrip("-")
    if op.startswith("abs(") and op.endswith(")"):
        op = op[4:-1]
    if op.startswith("|") and op.endswith("|"):
        op = op[1:-1]
    if op == "vcc":
        return {("s", "vcc_lo"), ("s", "vcc_hi")}
    if op in ("vcc_lo", "vcc_hi", "m0"):
        return {("s", op)}
    if op == "exec":
        return {("s", "exec_lo"), ("s", "exec_hi")}
    if op in ("exec_lo", "exec_hi"):
        return {("s", op)}
    m = _REG.match(op)
    if not m:
        return set()
    if m.group(1):
        return {(m.group(1), int(m.group(2)))}
    return {(m.group(3), k) for k in range(int(m.group(4)), int(m.group(5)) + 1)}


TRANS = ("v_exp_f32", "v_log_f32", "v_rcp_f32", "v_rsq_f32", "v_sqrt_f32", "v_sin_f32", "v_cos_f32",
         "v_rcp_iflag_f32")
NO_DST_S = ("s_cmp", "s_cbranch", "s_waitcnt", "s_nop", "s_barrier", "s_endpgm", "s_branch", "s_setprio",
            "s_sleep", "s_bitcmp", "s_setreg")


def mfma_passes(op):
    if "32x32x16" in op or "32x32x8" in op or "32x32x32" in op:
        return 8
    if "4x4x4" in op:
        return 2
    if "16x16x" in op:
        return 4
    raise ValueError(op)


class Ins:
    __slots__ = ("text", "op", "kind", "dst", "src", "passes", "srcC", "srcAB", "states", "target",
                 "uncond", "trans", "dpp", "perm", "rdlane", "lanesel", "widestore", "ldsdma", "dot",
                 "sdwa_dst", "sconst")

    def __init__(self, text):
        self.text = text
        t = text.split(";")[0].strip()
        parts = t.split(None, 1)
        op = parts[0]
        self.op = op
        rest = parts[1] if len(parts) > 1 else ""
        ops = [x.strip() for x in rest.split(",")] if rest else []
        mods = ""
        if ops:
            last = ops[-1].split()
            if last:
                ops[-1] = last[0]
                mods = " ".join(last[1:])
        self.dst, self.src = set(), set()
        self.passes = 0
        self.srcC, self.srcAB = set(), set()
        self.states = 1
        self.target = None
        self.uncond = False
        self.trans = self.dpp = self.perm = self.rdlane = self.widestore = self.ldsdma = self.dot = False
        self.sdwa_dst = False
        self.lanesel = set()
        self.sconst = set()
        R = regs_of
        if op.startswith("v_mfma"):
            self.kind = "mfma"
            self.passes = mfma_passes(op)
            self.dst = R(ops[0])
            self.srcAB = R(ops[1]) | R(ops[2])
            self.srcC = R(ops[3])
            self.src = self.srcAB | self.srcC
        elif op.startswith("v_smfmac"):
            self.kind = "mfma"
            self.passes = mfma_passes(op)
            self.dst = R(ops[0])
            self.srcAB = R(ops[1]) | R(ops[2]) | R(ops[3])
            self.srcC = R(ops[0])
            self.src = self.srcAB | self.srcC
        elif op.startswith("v_"):
            self.kind = "valu"
            base = re.sub(r"_(e32|e64|dpp|sdwa)$", "", op)
            self.trans = base in TRANS
            self.dpp = op.endswith("_dpp") or "row_" in mods or "quad_perm" in mods or "wave_" in mods
            if op.endswith("_sdwa") and "dst_sel:" in mods and "dst_sel:DWORD" not in mods:
                self.sdwa_dst = True
            if "op_sel" in mods and not base.startswith("v_pk_"):
                self.sdwa_dst = True
            if base.startswith("v_cmp"):
                assert not base.startswith("v_cmpx"), "v_cmpx not supported"
                self.dst = R(ops[0])
                for o in ops[1:]:
                    self.src |= R(o)
            elif base in ("v_readfirstlane_b32", "v_readlane_b32"):
                self.dst = R(ops[0])
                self.src = R(ops[1])
                self.rdlane = True
                if len(ops) > 2:
                    self.lanesel = R(ops[2])
                    self.src |= self.lanesel
            elif base == "v_writelane_b32":
                self.dst = R(ops[0])
                self.src = R(ops[0]) | R(ops[1])
                self.lanesel = R(ops[2])
                self.src |= self.lanesel
            elif base.startswith("v_permlane"):
                self.perm = True
                self.dst = R(ops[0]) | R(ops[1])
                self.src = set(self.dst)
            elif "_co_" in base or base.startswith("v_div_scale") or base.startswith("v_mad_u64"):
                self.dst = R(ops[0]) | R(ops[1])
                for o in ops[2:]:
                    self.src |= R(o)
            else:
                self.dst = R(ops[0])
                for o in ops[1:]:
                    self.src |= R(o)
                if base.startswith(("v_fmac", "v_dot2c", "v_pk_fmac")) or self.dpp or op.endswith("_sdwa"):
                    self.src |= self.dst
                if base.startswith("v_dot"):
                    self.dot = True
                if base == "v_cndmask_b32" and len(ops) == 3:
                    self.src |= R("vcc")
                if base.startswith("v_div_fmas"):
                    self.src |= R("vcc")
            self.sconst = {r for r in self.src if r[0] == "s"}
        elif op.startswith(("buffer_", "global_", "flat_")):
            self.kind = "vmem"
            lds = (" lds" in " " + mods) or "_lds_" in op
            self.ldsdma = lds
            if op.startswith("buffer_"):
                if lds:
                    for o in ops:
                        self.src |= R(o)
                    self.src |= R("m0")
                elif "load" in op:
                    self.dst = R(ops[0])
                    for o in ops[1:]:
                        self.src |= R(o)
                else:
                    for o in ops:
                        self.src |= R(o)
                    if "atomic" in op and "sc0" in mods:
                        self.dst = R(ops[0])
                    if op.endswith(("x3", "x4")):
                        self.widestore = R(ops[0])
            else:
                if lds:
                    for o in ops:
                        self.src |= R(o)
                    self.src |= R("m0")
                elif "load" in op or ("atomic" in op and "sc0" in mods):
                    self.dst = R(ops[0])
                    for o in ops[1:]:
                        self.src |= R(o)
                else:
                    for o in ops:
                        self.src |= R(o)
                    if op.endswith(("x3", "x4")):
                        self.widestore = R(ops[1])
        elif op.startswith("ds_"):
            self.kind = "ds"
            if op.startswith(("ds_read", "ds_bpermute", "ds_permute", "ds_swizzle")) or "_rtn" in op:
                self.dst = R(ops[0])
                for o in ops[1:]:
                    self.src |= R(o)
            else:
                for o in ops:
                    self.src |= R(o)
        elif op.startswith("s_"):
            self.kind = "salu"
            if op == "s_nop":
                self.states = int(ops[0], 0) + 1
            if op.startswith(("s_cbranch", "s_branch")):
                self.target = ops[0]
                self.uncond = op == "s_branch"
            elif op == "s_endpgm":
                self.uncond = True
            elif op.startswith(NO_DST_S):
                for o in ops:
                    self.src |= R(o)
            else:
                self.dst = R(ops[0])
                for o in ops[1:]:
                    self.src |= R(o)
                if "saveexec" in op:
                    self.dst |= R("exec")
        else:
            raise ValueError("unknown instruction: " + text)


_T = {2: 0, 4: 1, 8: 2, 16: 3}


def vreg(x):
    return {r for r in x if r[0] in "va"}


def sreg(x):
    return {r for r in x if r[0] == "s"}


def required(p, c):
    n = 0
    if p.kind == "valu":
        pv = vreg(p.dst)
        ps = sreg(p.dst)
        if pv:
            if c.kind == "mfma" and pv & c.src:
                n = max(n, 2)
            if c.kind == "valu":
                if (c.dpp or c.perm) and pv & c.src:
                    n = max(n, 2)
                if c.rdlane and pv & c.src:
                    n = max(n, 1)
                if p.trans and not c.trans and pv & c.src:
                    n = max(n, 1)
                if p.sdwa_dst and pv & (c.src | c.dst):
                    n = max(n, 1)
            if p.dot:
                if c.kind in ("valu", "mfma", "vmem", "ds") and pv & (c.src | c.dst):
                    same = c.kind == "valu" and c.op == p.op
                    n = max(n, 0 if (same and pv == vreg(c.dst)) else 3)
            if p.trans and c.kind in ("vmem", "ds") and pv & c.src:
                n = max(n, 1)
        if ps:
            if c.kind == "vmem" and ps & c.src:
                n = max(n, 5)
            if c.kind == "valu":
                if ps & c.lanesel:
                    n = max(n, 4)
                if ps & c.sconst:
                    n = max(n, 4 if c.op.startswith("v_div_fmas") else 2)
    elif p.kind == "mfma":
        t = _T[p.passes]
        if c.kind == "mfma":
            if p.dst & c.srcC:
                if p.dst == c.srcC and p.passes == c.passes:
                    n = max(n, (2, 0, 0, 0)[t])
                else:
                    n = max(n, (4, 6, 10, 18)[t])
            elif p.dst & c.dst:
                n = max(n, (4, 6, 10, 18)[t])
            if p.dst & c.srcAB:
                n = max(n, (5, 8, 12, 20)[t])
        elif c.kind in ("valu", "vmem", "ds"):
            if p.dst & (c.src | c.dst):
                n = max(n, (5, 8, 12, 20)[t])
            if c.kind == "valu" and p.srcC & c.dst:
                n = max(n, (1, 3, 7, 15)[t])
    elif p.kind == "vmem":
        if p.widestore and p.widestore & c.dst:
            n = max(n, 2 if c.kind in ("valu", "mfma") else 1)
    elif p.kind == "salu":
        if ("s", "m0") in p.dst and c.ldsdma:
            n = max(n, 1)
    return n


class Prog:
    def __init__(self):
        self.items = []
        self._uid = 0

    def __call__(self, text):
        for line in text.split("\n"):
            line = line.strip()
            if not line:
                continue
            if line.startswith(";"):
                self.items.append(("x", line))
            elif line.endswith(":"):
                self.items.append(("l", line[:-1]))
            elif line.startswith("."):
                self.items.append(("x", line))
            else:
                self.items.append(("i", Ins(line)))

    def raw(self, text):
        self.items.append(("x", text))

    def label(self, name):
        self.items.append(("l", name))

    def uid(self, base):
        self._uid += 1
        return f"{base}_{self._uid}"

    def fix_hazards(self, verbose=False):
        items = self.items
        changed = True
        total = 0
        while changed:
            changed = False
            branches = {}
            for k, (t, x) in enumerate(items):
                if t == "i" and x.target:
                    branches.setdefault(x.target, []).append(k)
            out = []
            inserted = {}
            for k, (t, x) in enumerate(items):
                if t != "i" or x.kind == "salu":
                    continue
                need = 0
                stack = [(k - 1, 0, False)]
                seen = {}
                while stack:
                    j, d, via_branch = stack.pop()
                    while j >= 0 and d < 20:
                        tj, xj = items[j]
                        if tj == "l":
                            for b in branches.get(xj, ()):
                                if seen.get(b, 99) > d:
                                    seen[b] = d
                                    stack.append((b, d, True))
                        elif tj == "i":
                            if xj.uncond and not via_branch:
                                break
                            via_branch = False
                            r = required(xj, x)
                            if r - d > need:
                                need = r - d
                            d += xj.states
                        d += inserted.get(j, 0) if tj == "i" else 0
                        j -= 1
                if need > 0:
                    inserted[k] = need
            if inserted:
                for k, it in enumerate(items):
                    if k in inserted:
                        n = inserted[k]
                        total += n
                        if verbose:
                            print("nop", n, "before", it[1].text)
                        while n > 0:
                            m = min(n, 16)
                            out.append(("i", Ins(f"s_nop {m - 1}")))
                            n -= m
                    out.append(it)
                items = out
                changed = True
        self.items = items
        return total

    def text(self):
        o = []
        for t, x in self.items:
            if t == "i":
                o.append("    " + x.text)
            elif t == "l":
                o.append(x + ":")
            else:
                o.append(x)
        return "\n".join(o) + "\n"

    def count(self):
        return sum(1 for t, _ in self.items if t == "i")
```

```python
from common import *

XN = 0x0000000
KF = 0x0400000
VF = 0x1400000
KM = 0x2400000
VM = 0x2800000
OF = 0x2C00000
HF = 0x3C00000
YF = 0x4A00000
RING = 0x5000000
STAT = 0x5400000
XS = 0x80000
SLOT = 0x20000
R_MO, R_MX, R_O, R_S = 0, 0x4000, 0x8000, 0x10000
FLG = 0x5100000
OOB = 0x80000000

D_RANK = 0
D_CBAR = 9
D_XN = 16
D_KV = 24
D_HF = 32
D_Y = 40
D_OF = 48

sWS, sDBG, sW = 4, 8, 12
pX, pMEM, pWQ, pWK, pWV, pWO, pW1, pW2, pOUT, pDBG, pWSP = 16, 18, 20, 22, 24, 26, 32, 34, 36, 38, 40
sX, sR, sWV = 42, 43, 44
sS, sCUR, sNXT, sPRV, sCUR4 = 45, 46, 50, 48, 49
sKV0, sKV1, sKM, sKXM0, sBUD = 51, 52, 53, 54, 55
sT0, sT1, sT2, sT3 = 56, 57, 58, 59
sCNT = 60
sTS = 64
sKMP, sFO, sFM, sFOr, sFMr, sS1 = 3, 88, 89, 90, 91, 92
sKVC = 47
sMK = 16

L_ST, L_KX, L_X, L_R, L_WO = 0, 16384, 24576, 27648, 32768

(vMOr, vMXr, vOr, vOw, vSw, vSr, vMw, vKM, vVM, vVx, vKxg, vRst, vSt, vXw, vXq, vKxl, vRw, vRr, vWo,
 vIdx) = range(1, 21)
vFr = 0
vT0, vT1 = 22, 23
vID = 24
vONE = 26
vONEM = 30
vSENT = 32
vVX = 36
vDq, vDk, vDv = 40, 44, 48
vF = 52
vMO, vMX, vACC = 52, 68, 84
vFREE = 116
vWV = 128

CEXP = 0.08838834764831845 * 1.4426950408889634


def fhex(x):
    import struct
    return "0x%08x" % struct.unpack("<I", struct.pack("<f", x))[0]


def chain_init(p, kvwait=True):
    L, G, C, t0, t1, t2, t3 = 52, 53, 54, 55, 56, 57, 58
    p(f"v_and_b32 v{L}, 63, v0")
    p(f"v_lshrrev_b32 v{G}, 4, v{L}")
    p(f"v_and_b32 v{C}, 15, v{L}")
    sH, sJ, sB = sT0, sT1, sT2
    p(f"s_lshr_b32 s{sH}, s{sR}, 1")
    p(f"s_lshl_b32 s{sT3}, s{sX}, 4")
    p(f"s_add_u32 s{sH}, s{sH}, s{sT3}")
    p(f"s_and_b32 s{sJ}, s{sR}, 1")
    vWg, vWog, vTr0, vTr1 = 60, 61, 62, 63
    vWoT0, vWoT1 = 64, 65
    p(f"v_lshrrev_b32 v{t0}, 5, v{L}")
    p(f"s_and_b32 s{sB}, s{sWV}, 1")
    p(f"s_lshl_b32 s{sB}, s{sB}, 1")
    p(f"v_add_u32 v{t0}, s{sB}, v{t0}")
    p(f"v_lshlrev_b32 v{t0}, 1, v{t0}")
    p(f"v_and_b32 v{t1}, 7, v{L}")
    p(f"v_xor_b32 v{t0}, v{t0}, v{t1}")
    p(f"v_lshlrev_b32 v{t0}, 4, v{t0}")
    p(f"v_lshrrev_b32 v{t1}, 3, v{L}")
    p(f"v_lshl_add_u32 v{vWg}, v{t1}, 13, v{t0}")
    p(f"s_lshl_b32 s{sB}, s{sWV}, 16")
    p(f"s_lshl_b32 s{sT3}, s{sH}, 8")
    p(f"s_add_u32 s{sB}, s{sB}, s{sT3}")
    p(f"s_lshl_b32 s{sT3}, s{sJ}, 7")
    p(f"s_add_u32 s{sB}, s{sB}, s{sT3}")
    p(f"v_add_u32 v{vWg}, s{sB}, v{vWg}")
    sM0, sSO = 64, 65
    p(f"s_lshl_b32 s{sM0}, s{sWV}, 10")
    p(f"s_add_u32 s{sM0}, s{sM0}, {L_WO}")

    def dma_chunk(half, src_off, vaddr, step):
        for n in range(16):
            p(f"s_add_u32 m0, s{sM0}, {half * 65536 + n * 4096}")
            p(f"s_mov_b32 s{sSO}, {src_off + n * step:#x}")
            p(f"buffer_load_dwordx4 v{vaddr}, s[{sW}:{sW + 3}], s{sSO} offen lds")

    srd(p, sW, pWQ, 0x800000)
    dma_chunk(0, 0, vWg, 262144)
    dma_chunk(1, 512 * 8192, vWg, 262144)

    sRB = 66
    p(f"s_mul_i32 s{sRB}, s{sX}, {XS:#x}")
    p(f"s_add_u32 s{sRB}, s{sRB}, {RING:#x}")
    p(f"v_lshlrev_b32 v{t0}, 4, v{L}")
    p(f"s_lshl_b32 s{sB}, s{sWV}, 12")
    p(f"s_add_u32 s{sT3}, s{sB}, s{sRB}")
    p(f"v_add_u32 v{vMOr}, s{sT3}, v{t0}")
    p(f"s_xor_b32 s{sT3}, s{sT3}, {XS:#x}")
    p(f"s_add_u32 s{sT3}, s{sT3}, {R_MX:#x}")
    p(f"v_add_u32 v{vMXr}, s{sT3}, v{t0}")
    p(f"s_lshl_b32 s{sT3}, s{sWV}, 13")
    p(f"s_add_u32 s{sT3}, s{sT3}, s{sRB}")
    p(f"s_add_u32 s{sT3}, s{sT3}, {R_O:#x}")
    p(f"v_add_u32 v{vOr}, s{sT3}, v{t0}")
    p(f"v_mov_b32 v{vSt}, v{t0}")
    p(f"v_add_u32 v{vKxl}, {L_KX}, v{t0}")
    p(f"s_lshl_b32 s{sT3}, s{sWV}, 15")
    p(f"s_add_u32 s{sT3}, s{sT3}, {L_WO}")
    p(f"v_add_u32 v{vWo}, s{sT3}, v{t0}")
    p(f"v_cmp_gt_u32 s[70:71], 8, v{C}")
    p(f"v_cmp_gt_u32 s[72:73], 32, v{L}")
    p(f"v_mov_b32 v{t3}, {OOB:#x}")
    p(f"v_lshrrev_b32 v{t1}, 1, v{G}")
    p(f"v_lshl_add_u32 v{t1}, v{t1}, 3, v{C}")
    p(f"v_and_b32 v{t2}, 1, v{G}")
    p(f"v_lshlrev_b32 v{t2}, 3, v{t2}")
    p(f"v_lshl_add_u32 v{t1}, v{t1}, 4, v{t2}")
    p(f"s_lshl_b32 s{sB}, s{sR}, 10")
    p(f"s_lshl_b32 s{sT3}, s{sWV}, 8")
    p(f"s_add_u32 s{sB}, s{sB}, s{sT3}")
    p(f"s_add_u32 s{sB}, s{sB}, s{sRB}")
    p(f"s_add_u32 s{sB}, s{sB}, {R_O:#x}")
    p(f"v_add_u32 v{t1}, s{sB}, v{t1}")
    p(f"v_cndmask_b32 v{vOw}, v{t3}, v{t1}, s[70:71]")
    p(f"v_and_b32 v{t1}, 7, v{C}")
    p(f"v_lshl_add_u32 v{t1}, v{G}, 3, v{t1}")
    p(f"v_lshlrev_b32 v{t1}, 4, v{t1}")
    p(f"s_lshl_b32 s{sB}, s{sR}, 11")
    p(f"s_add_u32 s{sB}, s{sB}, s{sRB}")
    p(f"s_add_u32 s{sB}, s{sB}, {R_S:#x}")
    p(f"s_xor_b32 s{sT3}, s{sB}, 2048")
    p(f"v_add_u32 v{vSr}, s{sT3}, v{t1}")
    p(f"s_lshl_b32 s{sT3}, s{sWV}, 9")
    p(f"s_add_u32 s{sB}, s{sB}, s{sT3}")
    p(f"v_add_u32 v{t1}, s{sB}, v{t1}")
    p(f"v_cndmask_b32 v{vSw}, v{t3}, v{t1}, s[70:71]")
    p(f"s_lshl_b32 s{sB}, s{sR}, 9")
    p(f"s_lshr_b32 s{sT3}, s{sWV}, 1")
    p(f"s_lshl_b32 s68, s{sT3}, 8")
    p(f"s_add_u32 s{sB}, s{sB}, s68")
    p(f"s_xor_b32 s{sT3}, s{sT3}, s{sWV}")
    p(f"s_and_b32 s{sT3}, s{sT3}, 1")
    p(f"s_mul_i32 s{sT3}, s{sT3}, {R_MX:#x}")
    p(f"s_add_u32 s{sB}, s{sB}, s{sT3}")
    p(f"s_add_u32 s{sB}, s{sB}, s{sRB}")
    p(f"v_lshlrev_b32 v{t1}, 2, v{L}")
    p(f"v_add_u32 v{vMw}, s{sB}, v{t1}")
    p(f"v_and_b32 v{vFr}, 124, v{t1}")
    p(f"s_lshl_b32 s{sB}, s{sX}, 12")
    p(f"s_add_u32 s{sB}, s{sB}, {FLG:#x}")
    p(f"s_mul_i32 s{sT3}, s{sWV}, 0x180")
    p(f"s_add_u32 s{sFOr}, s{sB}, s{sT3}")
    p(f"s_add_u32 s{sFMr}, s{sB}, 0x800")
    p(f"s_lshl_b32 s{sT3}, s{sR}, 2")
    p(f"s_add_u32 s{sFM}, s{sFMr}, s{sT3}")
    p(f"s_lshr_b32 s{sT3}, s{sR}, 3")
    p(f"s_mul_i32 s{sT3}, s{sT3}, 0x180")
    p(f"s_add_u32 s{sB}, s{sB}, s{sT3}")
    p(f"s_and_b32 s{sT3}, s{sR}, 7")
    p(f"s_lshl_b32 s{sT3}, s{sT3}, 2")
    p(f"s_add_u32 s{sT3}, s{sT3}, s{sWV}")
    p(f"s_lshl_b32 s{sT3}, s{sT3}, 2")
    p(f"s_add_u32 s{sFO}, s{sB}, s{sT3}")
    p(f"v_lshlrev_b32 v{t1}, 7, v{G}")
    p(f"v_lshl_add_u32 v{t1}, v{C}, 4, v{t1}")
    p(f"s_lshl_b32 s{sB}, s{sH}, 11")
    p(f"s_lshl_b32 s{sT3}, s{sJ}, 10")
    p(f"s_add_u32 s{sB}, s{sB}, s{sT3}")
    p(f"s_mov_b32 s67, s{sB}")
    p(f"s_and_b32 s{sT3}, s{sWV}, 1")
    p(f"s_lshl_b32 s{sT3}, s{sT3}, 9")
    p(f"s_add_u32 s{sB}, s{sB}, s{sT3}")
    p(f"s_add_u32 s{sB}, s{sB}, {KM:#x}")
    p(f"v_add_u32 v{t1}, s{sB}, v{t1}")
    p(f"v_cndmask_b32 v{vKM}, v{t3}, v{t1}, s[70:71]")
    p(f"v_and_b32 v{t1}, 1, v{G}")
    p(f"v_lshlrev_b32 v{t1}, 3, v{t1}")
    p(f"v_lshrrev_b32 v{t2}, 1, v{G}")
    p(f"v_lshl_add_u32 v{t1}, v{t2}, 2, v{t1}")
    p(f"v_lshl_add_u32 v{t1}, v{C}, 4, v{t1}")
    p(f"s_lshl_b32 s{sT3}, s{sWV}, 8")
    p(f"s_add_u32 s{sB}, s67, s{sT3}")
    p(f"s_add_u32 s{sB}, s{sB}, {VM:#x}")
    p(f"v_add_u32 v{vVM}, s{sB}, v{t1}")
    p(f"v_lshlrev_b32 v{t1}, 9, v{G}")
    p(f"v_lshl_add_u32 v{t1}, v{C}, 4, v{t1}")
    p(f"s_lshl_b32 s67, s{sH}, 13")
    p(f"s_lshl_b32 s{sT3}, s{sJ}, 12")
    p(f"s_add_u32 s67, s67, s{sT3}")
    p(f"s_lshr_b32 s{sT3}, s{sWV}, 1")
    p(f"s_lshl_b32 s{sT3}, s{sT3}, 11")
    p(f"s_add_u32 s{sB}, s67, s{sT3}")
    p(f"s_and_b32 s{sT3}, s{sWV}, 1")
    p(f"s_lshl_b32 s{sT3}, s{sT3}, 8")
    p(f"s_add_u32 s{sB}, s{sB}, s{sT3}")
    p(f"s_add_u32 s{sB}, s{sB}, {VF:#x}")
    p(f"v_add_u32 v{vVx}, s{sB}, v{t1}")
    p(f"v_lshrrev_b32 v{t1}, 3, v{C}")
    p(f"v_lshlrev_b32 v{t1}, 4, v{t1}")
    p(f"v_and_b32 v{t2}, 7, v{C}")
    p(f"v_add_u32 v{t1}, v{t1}, v{t2}")
    p(f"v_lshlrev_b32 v{t2}, 9, v{G}")
    p(f"v_lshl_add_u32 v{t1}, v{t1}, 4, v{t2}")
    p(f"s_and_b32 s{sT3}, s{sWV}, 1")
    p(f"s_lshl_b32 s{sT3}, s{sT3}, 11")
    p(f"s_add_u32 s{sB}, s67, s{sT3}")
    p(f"s_lshr_b32 s{sT3}, s{sWV}, 1")
    p(f"s_lshl_b32 s{sT3}, s{sT3}, 7")
    p(f"s_add_u32 s{sB}, s{sB}, s{sT3}")
    p(f"s_add_u32 s{sB}, s{sB}, {KF:#x}")
    p(f"v_add_u32 v{vKxg}, s{sB}, v{t1}")
    p(f"v_mul_u32_u24 v{t1}, 40, v{C}")
    p(f"v_lshl_add_u32 v{t1}, v{G}, 3, v{t1}")
    p(f"s_mul_i32 s{sB}, s{sWV}, 640")
    p(f"s_add_u32 s{sB}, s{sB}, {L_X}")
    p(f"v_add_u32 v{vXw}, s{sB}, v{t1}")
    p(f"v_lshrrev_b32 v{t1}, 1, v{G}")
    p(f"v_lshlrev_b32 v{t1}, 4, v{t1}")
    p(f"v_and_b32 v{t2}, 1, v{G}")
    p(f"v_lshl_add_u32 v{t1}, v{t2}, 2, v{t1}")
    p(f"v_mov_b32 v59, v{t1}")
    p(f"v_lshrrev_b32 v{t2}, 2, v{C}")
    p(f"v_add_u32 v{t1}, v{t1}, v{t2}")
    p(f"v_mul_u32_u24 v{t1}, 40, v{t1}")
    p(f"v_and_b32 v{t2}, 1, v{C}")
    p(f"v_lshl_add_u32 v{t1}, v{t2}, 3, v{t1}")
    p(f"v_add_u32 v{vXq}, {L_X}, v{t1}")
    p(f"v_lshrrev_b32 v{t1}, 1, v{G}")
    p(f"v_lshl_add_u32 v{t1}, v{t1}, 4, v{C}")
    p(f"v_mul_u32_u24 v{t1}, 144, v{t1}")
    p(f"v_and_b32 v{t2}, 1, v{G}")
    p(f"v_lshl_add_u32 v{t1}, v{t2}, 4, v{t1}")
    p(f"s_lshl_b32 s{sB}, s{sWV}, 5")
    p(f"s_add_u32 s{sB}, s{sB}, {L_R}")
    p(f"v_add_u32 v{vRw}, s{sB}, v{t1}")
    p(f"v_and_b32 v{t1}, 3, v{L}")
    p(f"v_mul_u32_u24 v{t1}, 288, v{t1}")
    p(f"v_and_b32 v{t2}, 28, v{L}")
    p(f"v_add_u32 v{t1}, v{t1}, v{t2}")
    p(f"v_lshrrev_b32 v{t2}, 5, v{L}")
    p(f"v_mul_u32_u24 v{t2}, 1152, v{t2}")
    p(f"v_add_u32 v{t1}, v{t1}, v{t2}")
    p(f"s_lshr_b32 s{sB}, s{sWV}, 1")
    p(f"s_mul_i32 s{sB}, s{sB}, 2304")
    p(f"s_add_u32 s{sB}, s{sB}, {L_R}")
    p(f"v_add_u32 v{vRr}, s{sB}, v{t1}")
    p(f"v_mov_b32 v{t1}, 0x4444")
    p(f"v_mov_b32 v{t2}, 0xeeee")
    p(f"v_cndmask_b32 v{vIdx}, v{t2}, v{t1}, s[70:71]")
    for k in range(4):
        p(f"v_mov_b32 v{vONE + k}, 0x3f803f80")
        p(f"v_mov_b32 v{vSENT + k}, -1")
    p(f"v_cndmask_b32 v{vONEM}, 0, v{vONE}, s[72:73]")
    p(f"v_cndmask_b32 v{vONEM + 1}, 0, v{vONE}, s[72:73]")
    p(f"v_mov_b32 v{t1}, 0x3f80")
    p(f"v_mov_b32 v{t2}, 0x3f800000")
    p(f"v_and_b32 v{t0}, 1, v{L}")
    p(f"v_cmp_eq_u32 vcc, 1, v{t0}")
    p(f"v_cndmask_b32 v{t1}, v{t1}, v{t2}, vcc")
    p(f"v_and_b32 v{t0}, 2, v{L}")
    p(f"v_cmp_eq_u32 vcc, 0, v{t0}")
    p(f"v_cndmask_b32 v{vID}, 0, v{t1}, vcc")
    p(f"v_cndmask_b32 v{vID + 1}, v{t1}, 0, vcc")
    p(f"v_lshlrev_b32 v{t0}, 4, v{L}")
    p(f"s_mul_i32 s{sB}, s{sWV}, {SLOT:#x}")
    p(f"s_add_u32 s{sB}, s{sB}, s{sRB}")
    p(f"s_lshl_b32 s{sT3}, s{sR}, 11")
    p(f"s_add_u32 s67, s{sB}, s{sT3}")
    p(f"s_add_u32 s67, s67, {R_S:#x}")
    p(f"buffer_store_dwordx4 v[{vSENT}:{vSENT + 3}], v{t0}, s[{sWS}:{sWS + 3}], s67 offen sc1")
    p(f"buffer_store_dwordx4 v[{vSENT}:{vSENT + 3}], v{t0}, s[{sWS}:{sWS + 3}], s67 offen offset:1024 sc1")
    p(f"s_lshl_b32 s{sT3}, s{sR}, 10")
    p(f"s_add_u32 s68, s{sB}, s{sT3}")
    p(f"s_add_u32 s68, s68, {R_O:#x}")
    p(f"buffer_store_dwordx4 v[{vSENT}:{vSENT + 3}], v{t0}, s[{sWS}:{sWS + 3}], s68 offen sc1")
    p(f"v_cndmask_b32 v{t1}, v{t3}, v{t0}, s[72:73]")
    p(f"s_lshl_b32 s{sT3}, s{sR}, 9")
    p(f"s_add_u32 s69, s{sB}, s{sT3}")
    p(f"buffer_store_dwordx4 v[{vSENT}:{vSENT + 3}], v{t1}, s[{sWS}:{sWS + 3}], s69 offen sc1")
    p(f"s_add_u32 s67, s69, {R_MX:#x}")
    p(f"buffer_store_dwordx4 v[{vSENT}:{vSENT + 3}], v{t1}, s[{sWS}:{sWS + 3}], s67 offen sc1")
    p(f"v_mov_b32 v{t1}, 0")
    p("s_mov_b64 exec, 1")
    p(f"buffer_store_dword v{t1}, off, s[{sWS}:{sWS + 3}], s{sFO} sc1")
    p(f"buffer_store_dword v{t1}, off, s[{sWS}:{sWS + 3}], s{sFM} sc1")
    p("s_mov_b64 exec, -1")
    p(f"s_lshl_b32 s67, s{sR}, 11")
    p(f"s_add_u32 s67, s67, {R_S:#x}")
    p(f"s_lshl_b32 s68, s{sR}, 10")
    p(f"s_add_u32 s68, s68, {R_O:#x}")
    p(f"s_cmp_eq_u32 s{sWV}, 1")
    p(f"s_cselect_b32 s67, s68, s67")
    p(f"s_lshl_b32 s68, s{sR}, 9")
    p(f"s_cmp_eq_u32 s{sWV}, 2")
    p(f"s_cselect_b32 s67, s68, s67")
    p(f"s_add_u32 s68, s68, {R_MX:#x}")
    p(f"s_cmp_eq_u32 s{sWV}, 3")
    p(f"s_cselect_b32 s67, s68, s67")
    p(f"s_add_u32 s67, s67, s{sRB}")
    p(f"s_cmp_ge_u32 s{sWV}, 2")
    p(f"s_cselect_b64 s[74:75], s[72:73], -1")
    p(f"v_add_u32 v{t1}, s67, v{t0}")
    p(f"v_cndmask_b32 v{vRst}, v{t3}, v{t1}, s[74:75]")
    p(f"v_lshrrev_b32 v{t0}, 3, v{C}")
    p(f"v_lshl_add_u32 v{t1}, v{t0}, 3, v59")
    p(f"v_bfe_u32 v{t2}, v{C}, 2, 1")
    p(f"v_add_u32 v{t1}, v{t1}, v{t2}")
    p(f"v_and_b32 v{t2}, 1, v{G}")
    p(f"v_lshl_add_u32 v{t2}, v{t0}, 1, v{t2}")
    p(f"v_lshlrev_b32 v{t2}, 1, v{t2}")
    p(f"v_bfe_u32 v{t0}, v{C}, 1, 1")
    p(f"s_lshl_b32 s{sB}, s{sWV}, 1")
    p(f"v_add_u32 v{t0}, s{sB}, v{t0}")
    p(f"v_xor_b32 v{t0}, v{t0}, v{t2}")
    p(f"v_lshlrev_b32 v{t0}, 4, v{t0}")
    p(f"v_lshl_add_u32 v{t1}, v{t1}, 7, v{t0}")
    p(f"v_and_b32 v{t0}, 1, v{C}")
    p(f"v_lshl_add_u32 v{t1}, v{t0}, 3, v{t1}")
    p(f"v_add_u32 v{vTr0}, {L_WO}, v{t1}")
    p(f"v_add_u32 v{vTr1}, {L_WO + 65536}, v{t1}")
    p(f"v_lshrrev_b32 v{t0}, 2, v{L}")
    p(f"v_and_b32 v{t1}, 9, v{t0}")
    p(f"v_bfe_u32 v{t2}, v{t0}, 1, 1")
    p(f"v_lshl_add_u32 v{t1}, v{t2}, 2, v{t1}")
    p(f"v_bfe_u32 v{t2}, v{t0}, 2, 1")
    p(f"v_lshl_add_u32 v{t1}, v{t2}, 1, v{t1}")
    p(f"v_lshrrev_b32 v{t0}, 5, v{L}")
    p(f"v_lshlrev_b32 v{t0}, 1, v{t0}")
    p(f"v_and_b32 v{t2}, 3, v{L}")
    p(f"v_xor_b32 v{t0}, v{t0}, v{t2}")
    p(f"v_lshlrev_b32 v{t0}, 4, v{t0}")
    p(f"v_lshl_add_u32 v{t1}, v{t1}, 11, v{t0}")
    p(f"s_lshl_b32 s{sB}, s{sX}, 22")
    p(f"s_lshl_b32 s{sT3}, s{sWV}, 15")
    p(f"s_add_u32 s{sB}, s{sB}, s{sT3}")
    p(f"s_lshl_b32 s{sT3}, s{sR}, 6")
    p(f"s_add_u32 s{sB}, s{sB}, s{sT3}")
    p(f"v_add_u32 v{vWog}, s{sB}, v{t1}")
    p(f"v_lshrrev_b32 v{t0}, 3, v{C}")
    p(f"v_and_b32 v{t1}, 1, v{G}")
    p(f"v_lshlrev_b32 v{t1}, 1, v{t1}")
    p(f"v_lshl_add_u32 v{t1}, v{t0}, 3, v{t1}")
    p(f"v_bfe_u32 v{t2}, v{C}, 2, 1")
    p(f"v_add_u32 v{t1}, v{t1}, v{t2}")
    p(f"v_lshlrev_b32 v{t1}, 6, v{t1}")
    p(f"v_lshl_add_u32 v{t1}, v{t0}, 5, v{t1}")
    p(f"v_and_b32 v{t2}, 3, v{C}")
    p(f"v_lshl_add_u32 v{t1}, v{t2}, 3, v{t1}")
    p(f"v_lshrrev_b32 v{t0}, 1, v{G}")
    p(f"v_lshl_add_u32 v{t1}, v{t0}, 10, v{t1}")
    p(f"s_lshl_b32 s{sT3}, s{sWV}, 15")
    p(f"s_add_u32 s{sT3}, s{sT3}, {L_WO}")
    p(f"v_add_u32 v{vWoT0}, s{sT3}, v{t1}")
    p(f"v_xor_b32 v{vWoT1}, 32, v{vWoT0}")
    vM0a = 66
    p(f"v_and_b32 v{t0}, 7, v{C}")
    p(f"v_lshlrev_b32 v{t0}, 11, v{t0}")
    p(f"v_lshl_add_u32 v{t0}, v{G}, 5, v{t0}")
    p(f"v_lshrrev_b32 v{t1}, 3, v{C}")
    p(f"v_lshl_add_u32 v{t0}, v{t1}, 4, v{t0}")
    p(f"s_lshl_b32 s{sT3}, s{sWV}, 9")
    p(f"v_add_u32 v{vM0a}, s{sT3}, v{t0}")

    def read_chunk(half, dst, isa):
        va = vTr0 if half == 0 else vTr1
        for kk in range(8):
            ks = half * 8 + kk
            for q, off in enumerate((0, 256, 4096, 4352)):
                r = dst + 8 * ks + 2 * q
                reg = a(r, 2) if isa else v(r, 2)
                p(f"ds_read_b64_tr_b16 {reg}, v{va} offset:{kk * 8192 + off}")
        p("s_waitcnt lgkmcnt(0)")
        p("s_barrier")

    p("s_waitcnt vmcnt(23)")
    p("s_barrier")
    read_chunk(0, 0, True)
    srd(p, sW, pWK, 0x800000)
    dma_chunk(0, 0, vWg, 262144)
    p("s_waitcnt vmcnt(16)")
    p("s_barrier")
    lab = p.uid("nobar")
    p(f"s_cmp_lg_u32 s{sWV}, 0")
    p(f"s_cbranch_scc1 {lab}")
    p("s_mov_b64 exec, 1")
    p(f"v_mov_b32 v{t0}, 1")
    p(f"buffer_atomic_add v{t0}, off, s[{sDBG}:{sDBG + 3}], 0 offset:{D_CBAR * 4} sc1")
    p("s_mov_b64 exec, -1")
    p("s_waitcnt vmcnt(0)")
    p.label(lab)
    read_chunk(1, 0, True)
    dma_chunk(1, 512 * 8192, vWg, 262144)
    p("s_waitcnt vmcnt(16)")
    p("s_barrier")
    read_chunk(0, 128, True)
    srd(p, sW, pWV, 0x800000)
    dma_chunk(0, 0, vWg, 262144)
    p("s_waitcnt vmcnt(16)")
    p("s_barrier")
    read_chunk(1, 128, True)
    dma_chunk(1, 512 * 8192, vWg, 262144)
    p("s_waitcnt vmcnt(16)")
    p("s_barrier")
    read_chunk(0, vWV, False)
    srd(p, sW, pWO, 0x800000)
    dma_chunk(0, 0, vWog, 64 * 2048)
    p("s_waitcnt vmcnt(16)")
    p("s_barrier")
    read_chunk(1, vWV, False)
    dma_chunk(1, 1024 * 2048, vWog, 64 * 2048)
    p("s_waitcnt vmcnt(0)")
    p("s_barrier")
    for kk in range(8):
        b = 68 + 16 * (kk % 2)
        for t in range(2):
            va = vWoT0 if t == 0 else vWoT1
            for q, off in enumerate((0, 256, 2048, 2304)):
                p(f"ds_read_b64_tr_b16 {v(b + 8 * t + 2 * q, 2)}, v{va} offset:{kk * 4096 + off}")
        p("s_waitcnt lgkmcnt(0)")
        for q in range(4):
            p(f"ds_write_b128 v{vWo}, {v(b + 4 * q, 4)} offset:{kk * 4096 + q * 1024}")
    srd(p, sW, pMEM, 16384)
    p(f"v_mov_b32 v{vT0}, v{vM0a}")
    for kk in range(4):
        p(f"buffer_load_dwordx4 {v(vF + 4 * kk, 4)}, v{vT0}, s[{sW}:{sW + 3}], 0 offen offset:{kk * 128}")
    lab = p.uid("cbar")
    p(f"s_mov_b32 s{sBUD}, 0x40000")
    p.label(lab)
    p(f"buffer_load_dword v{vT1}, off, s[{sDBG}:{sDBG + 3}], 0 offset:{D_CBAR * 4} sc1")
    p("s_waitcnt vmcnt(0)")
    p(f"v_readfirstlane_b32 s{sT0}, v{vT1}")
    p(f"s_cmp_ge_u32 s{sT0}, 64")
    p(f"s_cbranch_scc1 {lab}_ok")
    p(f"s_sub_u32 s{sBUD}, s{sBUD}, 1")
    p(f"s_cmp_lg_u32 s{sBUD}, 0")
    p(f"s_cbranch_scc1 {lab}")
    p.label(lab + "_ok")
    if kvwait:
        lab = p.uid("kv0")
        p.label(lab)
        p(f"buffer_load_dword v{vT1}, off, s[{sDBG}:{sDBG + 3}], 0 offset:{D_KV * 4} sc1")
        p("s_waitcnt vmcnt(0)")
        p(f"v_readfirstlane_b32 s{sT0}, v{vT1}")
        p(f"s_cmp_ge_u32 s{sT0}, 64")
        p(f"s_cbranch_scc1 {lab}_ok")
        p(f"s_sub_u32 s{sBUD}, s{sBUD}, 1")
        p(f"s_cmp_lg_u32 s{sBUD}, 0")
        p(f"s_cbranch_scc1 {lab}")
        p.label(lab + "_ok")
    p(f"s_mov_b32 s{sBUD}, 0x40000")
    p(f"s_mov_b32 s{sKVC}, {D_KV * 4}")
    p(f"s_mov_b32 s{sS}, 0")
    p(f"s_mov_b32 s{sS1}, 1")
    p(f"s_mov_b32 s{sCUR}, 0")
    p(f"s_mov_b32 s{sCUR4}, 4096")
    p(f"s_mov_b32 s{sNXT}, {SLOT:#x}")
    p("s_mov_b32 s93, 0")
    p(f"s_mov_b32 s{sPRV}, {3 * SLOT:#x}")
    p(f"s_mov_b32 s{sKV0}, 0")
    p(f"s_mov_b32 s{sKV1}, 0x40000")
    p(f"s_mov_b32 s{sKM}, 0")
    p(f"s_mov_b32 s{sKMP}, 0x4000000")
    for k in range(4):
        p(f"s_mov_b32 s{sCNT + k}, 0")
    p(f"s_lshl_b32 s{sKXM0}, s{sWV}, 10")
    p(f"s_add_u32 s{sKXM0}, s{sKXM0}, {L_KX}")
    p(f"s_mov_b32 m0, s{sKXM0}")
    p(f"s_xor_b32 s{sKXM0}, s{sKXM0}, 4096")
    p(f"buffer_load_dwordx4 v{vKxg}, s[{sWS}:{sWS + 3}], s{sKV0} offen sc1 lds")
    for k in range(12):
        p(f"v_mov_b32 v{vDq + k}, 0")
    p("s_waitcnt vmcnt(0)")


def retry_head(p, site, cont):
    p(f"s_add_u32 s{sCNT + site}, s{sCNT + site}, 1")
    p(f"s_cmp_eq_u32 s{sBUD}, 0")
    p(f"s_cbranch_scc1 {cont}")
    p(f"s_sub_u32 s{sBUD}, s{sBUD}, 1")


def check_sent(p, regs, tmp, target):
    regs = list(regs)
    first = regs[:3]
    rest = regs[3:]
    if len(first) == 3:
        p(f"v_max3_u32 v{tmp}, v{first[0]}, v{first[1]}, v{first[2]}")
    else:
        p(f"v_max_u32 v{tmp}, v{first[0]}, v{first[1]}")
    while rest:
        if len(rest) >= 2:
            p(f"v_max3_u32 v{tmp}, v{tmp}, v{rest[0]}, v{rest[1]}")
            rest = rest[2:]
        else:
            p(f"v_max_u32 v{tmp}, v{tmp}, v{rest[0]}")
            rest = []
    p(f"v_cmp_eq_u32 vcc, -1, v{tmp}")
    p(f"s_cbranch_vccnz {target}")


def masked_reload(q, items):
    for k, (regs, _) in enumerate(items):
        if len(regs) == 1:
            q(f"v_cmp_eq_u32 s[{sMK + 2 * k}:{sMK + 2 * k + 1}], -1, v{regs[0]}")
        else:
            q(f"v_max_u32 v{vT0}, v{regs[0]}, v{regs[1]}")
            q(f"v_cmp_eq_u32 s[{sMK + 2 * k}:{sMK + 2 * k + 1}], -1, v{vT0}")
    for k, (_, ld) in enumerate(items):
        q(f"s_mov_b64 exec, s[{sMK + 2 * k}:{sMK + 2 * k + 1}]")
        q(ld)
    q("s_mov_b64 exec, -1")


def chain_loop(p, w, tag, sc_all=False, stamp=None, done="DONE", opt=None):
    opt = opt or {}
    WS = f"s[{sWS}:{sWS + 3}]"
    loc = " sc1" if sc_all else ""
    tail = Prog()

    def st(k):
        if stamp is not None and (k in stamp):
            p(f"s_memtime s[{sTS + 2 * k}:{sTS + 2 * k + 1}]")

    def F(u):
        return v(vF + 4 * u, 4)

    def ks_of(u):
        return (4 * w + u) % 16

    def smq(u):
        p(f"v_smfmac_f32_16x16x64_bf16 {v(vDq, 4)}, {F(u)}, {a(8 * ks_of(u), 8)}, v{vIdx}")

    def smk(u):
        p(f"v_smfmac_f32_16x16x64_bf16 {v(vDk, 4)}, {F(u)}, {a(128 + 8 * ks_of(u), 8)}, v{vIdx}")

    def smv(u, reg=None):
        r = F(u) if reg is None else v(reg, 4)
        p(f"v_smfmac_f32_16x16x64_bf16 {v(vDv, 4)}, {r}, {v(vWV + 8 * ks_of(u), 8)}, v{vIdx}")

    def stw(kk):
        p(f"ds_write_b128 v{vSt}, {F(kk)} offset:{L_ST + (4 * w + kk) * 1024}")

    def mo_ld(kk):
        return f"buffer_load_dwordx4 {v(vMO + 4 * kk, 4)}, v{vMOr}, {WS}, s{sCUR} offen offset:{kk * 1024} sc1"

    def mx_ld(kk):
        return f"buffer_load_dwordx4 {v(vMX + 4 * kk, 4)}, v{vMXr}, {WS}, s{sCUR} offen offset:{kk * 1024} sc1"

    def flag_store(sa, val):
        p(f"v_mov_b32 v{vT0}, {val}")
        p("s_mov_b64 exec, 1")
        p(f"buffer_store_dword v{vT0}, off, {WS}, s{sa}{loc}")
        p("s_mov_b64 exec, -1")

    def probe(sa, val, site, nm):
        p.label(f"{tag}_{nm}_probe")
        p(f"buffer_load_dword v{vT1}, v{vFr}, {WS}, s{sa} offen sc1")
        p("s_waitcnt vmcnt(0)")
        p(f"v_cmp_gt_u32 vcc, {val}, v{vT1}")
        p(f"s_cbranch_vccnz {tag}_{nm}_again")
        p.label(f"{tag}_{nm}_go")
        tail.label(f"{tag}_{nm}_again")
        tail(f"s_add_u32 s93, s93, 1")
        tail(f"s_cmp_eq_u32 s{sBUD}, 0")
        tail(f"s_cbranch_scc1 {tag}_{nm}_go")
        tail(f"s_sub_u32 s{sBUD}, s{sBUD}, 1")
        tail(f"s_branch {tag}_{nm}_probe")

    KMr = vFREE
    VMo = 21

    def slow_ops():
        p(f"s_mov_b32 m0, s{sKXM0}")
        p(f"s_xor_b32 s{sKXM0}, s{sKXM0}, 4096")
        p(f"buffer_load_dwordx4 v{vKxg}, {WS}, s{sKV1} offen sc1 lds")
        p(f"buffer_load_dwordx4 {v(vVX, 4)}, v{vVx}, {WS}, s{sKV0} offen sc1")

    p.label(f"{tag}_entry")
    for kk in range(4):
        stw(kk)
    slow_ops()
    p(f"s_branch {tag}_apost")

    p.label(f"{tag}_top")
    st(0)
    if w < 2:
        for hh in range(2):
            p(f"ds_read_b64_tr_b16 {v(KMr + 2 * hh, 2)}, v{vXq} offset:{w * 1280 + hh * 320 + 16}")
    for k in range(12):
        p(f"v_mov_b32 v{vDq + k}, 0")
    mmode = opt.get("m", "flag")
    if mmode == "flag":
        if w == 0:
            probe(sFMr, f"s{sS}", 0, "m")
        p("s_barrier")
        for kk in range(4):
            p(mo_ld(kk))
        for kk in range(4):
            p(mx_ld(kk))
    elif mmode == "flag2":
        if w == 0:
            p("s_waitcnt vmcnt(0)")
            for kk in range(4):
                p(mo_ld(kk))
            probe(sFMr, f"s{sS}", 0, "m")
        else:
            if w == 3:
                p("s_waitcnt vmcnt(0)")
            for kk in range(4):
                p(mo_ld(kk))
        p("s_barrier")
        for kk in range(4):
            p(mx_ld(kk))
    st(1)
    p("s_waitcnt vmcnt(4)")
    p.label(f"{tag}_mo_chk")
    check_sent(p, [vMO + 4 * k for k in range(4)], vT0, f"{tag}_mo_retry")
    p.label(f"{tag}_mo_ok")
    tail.label(f"{tag}_mo_retry")
    retry_head(tail, 0, f"{tag}_mo_ok")
    masked_reload(tail, [([vMO + 4 * k], mo_ld(k)) for k in range(4)])
    tail("s_waitcnt vmcnt(0)")
    tail(f"s_branch {tag}_mo_chk")
    for i in range(8):
        p(f"v_mfma_f32_4x4x4_16b_bf16 {v(vACC + 4 * i, 4)}, {v(vID, 2)}, {v(vMO + 2 * i, 2)}, 0")
    st(2)
    p("s_waitcnt vmcnt(0) lgkmcnt(0)")
    p.label(f"{tag}_mx_chk")
    check_sent(p, [vMX + 4 * k for k in range(4)], vT0, f"{tag}_mx_retry")
    p.label(f"{tag}_mx_ok")
    tail.label(f"{tag}_mx_retry")
    retry_head(tail, 1, f"{tag}_mx_ok")
    masked_reload(tail, [([vMX + 4 * k], mx_ld(k)) for k in range(4)])
    tail("s_waitcnt vmcnt(0)")
    tail(f"s_branch {tag}_mx_chk")
    st(3)

    def acc(i):
        p(f"v_mfma_f32_4x4x4_16b_bf16 {v(vACC + 4 * i, 4)}, {v(vID, 2)}, {v(vMX + 2 * i, 2)}, {v(vACC + 4 * i, 4)}")

    def cv(i):
        p(f"v_cvt_pk_bf16_f32 v{vF + 2 * i}, v{vACC + 4 * i}, v{vACC + 4 * i + 1}")
        p(f"v_cvt_pk_bf16_f32 v{vF + 2 * i + 1}, v{vACC + 4 * i + 2}, v{vACC + 4 * i + 3}")

    acc(0); acc(1); acc(2)
    slow_ops()
    acc(3); acc(4); acc(5)
    cv(0)
    acc(6)
    cv(1)
    stw(0)
    acc(7)
    cv(2); cv(3); stw(1)
    cv(4); cv(5); stw(2)
    cv(6); cv(7); stw(3)
    p.label(f"{tag}_apost")
    smq(0); smk(0); smq(1); smk(1)
    p("s_waitcnt lgkmcnt(0)")
    p("s_barrier")
    st(4)
    for u in range(4, 16):
        p(f"ds_read_b128 {F(u)}, v{vSt} offset:{L_ST + ks_of(u) * 1024}")
        if u == 7:
            smq(2)
        if u == 10:
            smk(2)
        if u == 13:
            smq(3)
    smk(3)
    extra = []
    rsc = " sc1" if (w == 3 or sc_all) else ""
    if w < 2:
        extra.append(f"buffer_store_dwordx4 {v(KMr, 4)}, v{vKM}, {WS}, s{sKMP} offen sc1")
    extra.append(f"buffer_store_dword v{VMo}, v{vVM}, {WS}, s{sKMP} offen sc1")
    extra.append(f"buffer_store_dwordx4 {v(vSENT, 4)}, v{vRst}, {WS}, s{sPRV} offen{rsc}")
    if w == 0:
        extra.append(f"buffer_store_dwordx4 {v(vSENT, 4)}, v{vRst}, {WS}, s{sPRV} offen offset:1024{rsc}")
    kvchk = w == 3 and opt.get("kv", True)
    kv_ld = f"buffer_load_dword v{vKM}, off, s[{sDBG}:{sDBG + 3}], s{sKVC} sc1"
    if kvchk:
        extra.append(kv_ld)
    for u in range(4, 16):
        p(f"s_waitcnt lgkmcnt({15 - u})")
        smq(u)
        if extra:
            p(extra.pop(0))
        smk(u)
    assert not extra
    st(5)
    KX, Q2, K2, SO, SP = vF, vFREE, vF + 16, vF + 24, vF

    def qk_to_lds():
        for r in range(4):
            p(f"v_permlane32_swap_b32 v{vDq + r}, v{vDk + r}")
        for r in range(4):
            p(f"v_add_f32 v{vDq + r}, v{vDq + r}, v{vDk + r}")
        p(f"v_cvt_pk_bf16_f32 v{vDq}, v{vDq}, v{vDq + 1}")
        p(f"v_cvt_pk_bf16_f32 v{vDq + 1}, v{vDq + 2}, v{vDq + 3}")
        p(f"ds_write_b64 v{vXw}, {v(vDq, 2)}")

    p(f"s_cmp_eq_u32 s{sS}, 63")
    p(f"s_cbranch_scc1 {tag}_last")
    for b in range(4):
        p(f"ds_read_b128 {v(KX + 4 * b, 4)}, v{vKxl} offset:{b * 1024}")
    qk_to_lds()
    p(f"v_xor_b32 v{vKxl}, 4096, v{vKxl}")
    p("s_waitcnt lgkmcnt(0)")
    p("s_barrier")
    for ks in range(2):
        for hh in range(2):
            p(f"ds_read_b64_tr_b16 {v(Q2 + 4 * ks + 2 * hh, 2)}, v{vXq} offset:{ks * 1280 + hh * 320}")
    for ks in range(2):
        for hh in range(2):
            p(f"ds_read_b64_tr_b16 {v(K2 + 4 * ks + 2 * hh, 2)}, v{vXq} offset:{ks * 1280 + hh * 320 + 16}")
    smv(9); smv(10); smv(11)

    def tile(t):
        for ks in range(2):
            A = v(K2 + 4 * ks, 4) if t == 2 else v(KX + 8 * t + 4 * ks, 4)
            C = "0" if ks == 0 else v(SO + 4 * t, 4)
            p(f"v_mfma_f32_16x16x32_bf16 {v(SO + 4 * t, 4)}, {A}, {v(Q2 + 4 * ks, 4)}, {C}")

    first = w % 3
    order = [first] + [t for t in (0, 1, 2) if t != first]
    if first == 2:
        p("s_waitcnt lgkmcnt(0)")
        tile(2); tile(0)
        p(f"buffer_store_dwordx4 {v(SO + 4 * first, 4)}, v{vSw}, {WS}, s{sCUR} offen{loc}")
        tile(1)
    else:
        p("s_waitcnt lgkmcnt(4)")
        tile(order[0]); tile(order[1])
        p(f"buffer_store_dwordx4 {v(SO + 4 * first, 4)}, v{vSw}, {WS}, s{sCUR} offen{loc}")
        p("s_waitcnt lgkmcnt(0)")
        tile(2)
    st(6)
    RE = {u: (vF + 4 * u if u < 6 else vFREE + 4 * (u - 6)) for u in range(9)}
    for u in range(9):
        p(f"ds_read_b128 {v(RE[u], 4)}, v{vSt} offset:{L_ST + ks_of(u) * 1024}")
        if u % 2 == 1:
            smv(12 + u // 2)
    for u in range(3):
        p(f"s_waitcnt lgkmcnt({8 - u})")
        smv(u, RE[u])
    WB = [vF + 36 + 8 * i for i in range(3)] + [vFREE]
    WB.append(vF + 24)
    NB = len(WB)

    def wo_read(n, q=p):
        b = WB[n % NB]
        for hh in range(2):
            q(f"ds_read_b128 {v(b + 4 * hh, 4)}, v{vWo} offset:{n * 2048 + hh * 1024}")

    def s_ld(t):
        return f"buffer_load_dwordx4 {v(SP + 4 * t, 4)}, v{vSr}, {WS}, s{sCUR} offen offset:{t * 512} sc1"

    spos = opt.get("s_pos", 9)
    sack = opt.get("s_ack", True)

    def s_issue():
        if stamp is not None:
            stamp_flush(p, w, stamp)
            if sack:
                p("s_waitcnt vmcnt(1)")
        elif sack:
            p("s_waitcnt vmcnt(0)")
        for t in range(3):
            p(s_ld(t))
        if kvchk:
            assert sack
            p.label(f"{tag}_kv_chk")
            p(f"v_cmp_gt_u32 vcc, 64, v{vKM}")
            p(f"s_cbranch_vccnz {tag}_kv_retry")
            p.label(f"{tag}_kv_ok")
            tail.label(f"{tag}_kv_retry")
            tail(f"s_cmp_eq_u32 s{sBUD}, 0")
            tail(f"s_cbranch_scc1 {tag}_kv_ok")
            tail(f"s_sub_u32 s{sBUD}, s{sBUD}, 1")
            tail(kv_ld)
            tail("s_waitcnt vmcnt(0)")
            tail(f"s_branch {tag}_kv_chk")

    p("s_waitcnt lgkmcnt(0)")
    for u in range(3, 10):
        if u == spos:
            s_issue()
        if u < 9:
            smv(u, RE[u])
        if u < 6:
            wo_read(u - 3)
    wo_read(3)
    VMc = 64
    p(f"v_cvt_pk_bf16_f32 v{VMc}, v{vDv}, v{vDv + 1}")
    p(f"v_cvt_pk_bf16_f32 v{VMc + 1}, v{vDv + 2}, v{vDv + 3}")

    def vm_pack():
        p(f"v_permlane32_swap_b32 v{vDv}, v{vDv + 2}")
        p(f"v_permlane32_swap_b32 v{vDv + 1}, v{vDv + 3}")
        p(f"v_add_f32 v{vDv}, v{vDv}, v{vDv + 2}")
        p(f"v_add_f32 v{vDv + 1}, v{vDv + 1}, v{vDv + 3}")
        p(f"v_cvt_pk_bf16_f32 v{VMo}, v{vDv}, v{vDv + 1}")

    vm_pack()
    p(f"s_mov_b32 s{sT0}, {fhex(CEXP)}")
    st(7)
    p("s_waitcnt vmcnt(0)")
    p.label(f"{tag}_s_chk")
    for k in range(12):
        p(f"v_add_f32 v{SP + k}, v{SP + k}, v{SO + k}")
    p(f"v_maximum3_f32 v{vT0}, v{SP}, v{SP + 1}, v{SP + 2}")
    p(f"v_maximum3_f32 v{vT1}, v{SP + 3}, v{SP + 4}, v{SP + 5}")
    p(f"v_maximum3_f32 v{vT0}, v{vT0}, v{SP + 6}, v{SP + 7}")
    p(f"v_maximum3_f32 v{vT1}, v{vT1}, v{SP + 8}, v{SP + 9}")
    p(f"v_maximum3_f32 v{vT0}, v{vT0}, v{SP + 10}, v{SP + 11}")
    p(f"v_maximum3_f32 v{vT0}, v{vT0}, v{vT1}, v{vT1}")
    p(f"v_mov_b32 v{vT1}, v{vT0}")
    p(f"v_cmp_u_f32 vcc, v{vT0}, v{vT0}")
    p(f"s_cbranch_vccnz {tag}_s_retry")
    p.label(f"{tag}_s_ok")
    tail.label(f"{tag}_s_retry")
    retry_head(tail, 2, f"{tag}_s_ok")
    for t in range(3):
        tail(s_ld(t))
    tail("s_waitcnt vmcnt(0)")
    tail(f"s_branch {tag}_s_chk")
    st(8)
    p(f"v_permlane32_swap_b32 v{vT0}, v{vT1}")
    p(f"v_max_f32 v{vT0}, v{vT0}, v{vT1}")
    p(f"v_mov_b32 v{vT1}, v{vT0}")
    p(f"v_permlane16_swap_b32 v{vT0}, v{vT1}")
    p(f"v_max_f32 v{vT0}, v{vT0}, v{vT1}")
    p(f"v_mul_f32 v{vT0}, {fhex(-CEXP)}, v{vT0}")
    P2, P01 = 66, 68
    O, LL = vDq, vDk
    for k in range(8, 12):
        p(f"v_fma_f32 v{SP + k}, v{SP + k}, s{sT0}, v{vT0}")
    for k in range(8, 12):
        p(f"v_exp_f32 v{SP + k}, v{SP + k}")
    for k in range(0, 4):
        p(f"v_fma_f32 v{SP + k}, v{SP + k}, s{sT0}, v{vT0}")
    p(f"v_cvt_pk_bf16_f32 v{P2}, v{SP + 8}, v{SP + 9}")
    p(f"v_cvt_pk_bf16_f32 v{P2 + 1}, v{SP + 10}, v{SP + 11}")
    for k in range(4, 8):
        p(f"v_fma_f32 v{SP + k}, v{SP + k}, s{sT0}, v{vT0}")
    p(f"v_mfma_f32_16x16x16_bf16 {v(LL, 4)}, {v(vONEM, 2)}, {v(P2, 2)}, 0")
    for k in range(0, 4):
        p(f"v_exp_f32 v{SP + k}, v{SP + k}")
    p(f"v_mfma_f32_16x16x16_bf16 {v(O, 4)}, {v(VMc, 2)}, {v(P2, 2)}, 0")
    for k in range(4, 8):
        p(f"v_exp_f32 v{SP + k}, v{SP + k}")
    for k in range(4):
        p(f"v_cvt_pk_bf16_f32 v{P01 + k}, v{SP + 2 * k}, v{SP + 2 * k + 1}")
    p(f"v_mfma_f32_16x16x32_bf16 {v(LL, 4)}, {v(vONE, 4)}, {v(P01, 4)}, {v(LL, 4)}")
    p(f"v_mfma_f32_16x16x32_bf16 {v(O, 4)}, {v(vVX, 4)}, {v(P01, 4)}, {v(O, 4)}")
    wo_read(4)
    p(f"v_rcp_f32 v{vT0}, v{LL}")
    for r in range(4):
        p(f"v_mul_f32 v{O + r}, v{O + r}, v{vT0}")
    OP = 114
    p(f"v_cvt_pk_bf16_f32 v{OP}, v{O}, v{O + 1}")
    p(f"v_cvt_pk_bf16_f32 v{OP + 1}, v{O + 2}, v{O + 3}")
    p(f"buffer_store_dwordx2 {v(OP, 2)}, v{vOw}, {WS}, s{sCUR} offen{loc}")
    flag_store(sFO, f"s{sS1}")
    st(9)
    E0, E1 = vDq, vDk
    for k in range(8):
        p(f"v_mov_b32 v{E0 + k}, 0")
    OL = [52, 56, 60, 64, 68, 72, 84, 124]

    def o_ld(kk):
        so = sCUR if kk < 4 else sCUR4
        return f"buffer_load_dwordx4 {v(OL[kk], 4)}, v{vOr}, {WS}, s{so} offen offset:{(kk % 4) * 1024} sc1"

    probe(sFOr, f"s{sS1}", 3, "o")
    for kk in range(8):
        p(o_ld(kk))
    st(10)
    issued = 5
    groups = [(0, 1), (2, 3), (4, 5), (6,), (7,)]
    for gi, grp in enumerate(groups):
        p(f"s_waitcnt vmcnt({7 - grp[-1]})")
        p.label(f"{tag}_o_chk{gi}")
        check_sent(p, [OL[kk] + i for kk in grp for i in (0, 2)], vT0, f"{tag}_o_retry{gi}")
        p.label(f"{tag}_o_ok{gi}")
        tail.label(f"{tag}_o_retry{gi}")
        retry_head(tail, 3, f"{tag}_o_ok{gi}")
        tail("s_waitcnt vmcnt(0)")
        rest = list(range(grp[0], 8))
        for part in (rest[:4], rest[4:]):
            if part:
                masked_reload(tail, [([OL[kk], OL[kk] + 2], o_ld(kk)) for kk in part])
        tail("s_waitcnt vmcnt(0)")
        tail(f"s_branch {tag}_o_chk{gi}")
        for kk in grp:
            for t in range(2):
                n = 2 * kk + t
                p(f"s_waitcnt lgkmcnt({2 * (issued - n - 1)})")
                E = E0 if t == 0 else E1
                p(f"v_smfmac_f32_16x16x64_bf16 {v(E, 4)}, {v(OL[kk], 4)}, {v(WB[n % NB], 8)}, v{vIdx}")
                if issued < 16:
                    wo_read(issued)
                    issued += 1
    st(11)
    p(f"s_mov_b32 s{sS}, s{sS1}")
    p(f"s_add_u32 s{sS1}, s{sS1}, 1")
    p(f"s_mov_b32 s{sPRV}, s{sCUR}")
    p(f"s_mov_b32 s{sCUR}, s{sNXT}")
    p(f"s_add_u32 s{sCUR4}, s{sCUR}, 4096")
    p(f"s_add_u32 s{sNXT}, s{sNXT}, {SLOT:#x}")
    p(f"s_and_b32 s{sNXT}, s{sNXT}, {3 * SLOT:#x}")
    p(f"s_mov_b32 s{sKV0}, s{sKV1}")
    p(f"s_add_u32 s{sKV1}, s{sKV1}, 0x40000")
    for r in range(4):
        p(f"v_permlane32_swap_b32 v{E0 + r}, v{E1 + r}")
    for r in range(4):
        p(f"v_add_f32 v{E0 + r}, v{E0 + r}, v{E1 + r}")
    p(f"ds_write_b128 v{vRw}, {v(E0, 4)}")
    p(f"s_mov_b32 s{sKMP}, s{sKM}")
    p(f"s_add_u32 s{sKM}, s{sKM}, 0x10000")
    if kvchk:
        p(f"s_add_u32 s{sKVC}, s{sS}, 2")
        p(f"s_lshr_b32 s{sKVC}, s{sKVC}, 3")
        p(f"s_min_u32 s{sKVC}, s{sKVC}, 7")
        p(f"s_lshl_b32 s{sKVC}, s{sKVC}, 2")
        p(f"s_add_u32 s{sKVC}, s{sKVC}, {D_KV * 4}")
    p("s_waitcnt lgkmcnt(0)")
    p("s_barrier")
    RD = 52
    for q in range(4):
        p(f"ds_read2_b32 {v(RD + 2 * q, 2)}, v{vRr} offset0:{8 * q} offset1:{36 + 8 * q}")
    p("s_waitcnt lgkmcnt(2)")
    p(f"v_add_f32 v{RD}, v{RD}, v{RD + 2}")
    p(f"v_add_f32 v{RD + 1}, v{RD + 1}, v{RD + 3}")
    p("s_waitcnt lgkmcnt(0)")
    p(f"v_add_f32 v{RD + 4}, v{RD + 4}, v{RD + 6}")
    p(f"v_add_f32 v{RD + 5}, v{RD + 5}, v{RD + 7}")
    p(f"v_add_f32 v{RD}, v{RD}, v{RD + 4}")
    p(f"v_add_f32 v{RD + 1}, v{RD + 1}, v{RD + 5}")
    p(f"v_cvt_pk_bf16_f32 v{vT1}, v{RD}, v{RD + 1}")
    p(f"buffer_store_dword v{vT1}, v{vMw}, {WS}, s{sCUR} offen{' sc1' if w in (1, 2) else loc}")
    if w == 0:
        flag_store(sFM, f"s{sS}")
    p(f"s_branch {tag}_top")

    p.label(f"{tag}_last")
    smv(0); smv(1)
    qk_to_lds()
    for u in range(2, 6):
        smv(u)
    p("s_waitcnt lgkmcnt(0)")
    p("s_barrier")
    if w < 2:
        for hh in range(2):
            p(f"ds_read_b64_tr_b16 {v(KMr + 2 * hh, 2)}, v{vXq} offset:{w * 1280 + hh * 320 + 16}")
    for u in range(6, 10):
        smv(u)
    if w < 2:
        p("s_waitcnt lgkmcnt(0)")
        p(f"buffer_store_dwordx4 {v(KMr, 4)}, v{vKM}, {WS}, s{sKM} offen sc1")
    for u in range(10, 16):
        smv(u)
    vm_pack()
    p(f"buffer_store_dword v{VMo}, v{vVM}, {WS}, s{sKM} offen sc1")
    p(f"s_branch {done}")
    p.items += tail.items


def stamp_flush(p, w, stamp):
    p("s_waitcnt lgkmcnt(0)")
    p(f"s_lshl_b32 s{sT0}, s{sX}, 5")
    p(f"s_add_u32 s{sT0}, s{sT0}, s{sR}")
    p(f"s_lshl_b32 s{sT0}, s{sT0}, 14")
    p(f"s_lshl_b32 s{sT1}, s{sS}, 6")
    p(f"s_add_u32 s{sT0}, s{sT0}, s{sT1}")
    p(f"s_add_u32 s{sT0}, s{sT0}, {STAT + w * 4096:#x}")
    p(f"v_mov_b32 v{vT0}, 0")
    for k in sorted(stamp):
        p(f"v_writelane_b32 v{vT0}, s{sTS + 2 * k}, {k}")
    for k in range(4):
        p(f"v_writelane_b32 v{vT0}, s{sCNT + k}, {12 + k}")
    p(f"v_mbcnt_lo_u32_b32 v{vT1}, -1, 0")
    p(f"v_lshlrev_b32 v{vT1}, 2, v{vT1}")
    p("s_mov_b64 exec, 0xffff")
    p(f"buffer_store_dword v{vT0}, v{vT1}, s[{sWS}:{sWS + 3}], s{sT0} offen")
    p("s_mov_b64 exec, -1")
```

```python
from asmlib import *
NAME = "parallel_sum__memory_aug_recurrent_mem_tr__dense_activation_silu__prompt"
HEADER = open("cdna_kernels/" + NAME + ".s.ref").read().split("; Override launch")[0]

def wrap(kernels, launches):
    o = [HEADER.rstrip()]
    if len(launches) == 1 and launches[0][0] == NAME + "_kernel":
        _, g, b, lds = launches[0]
        o.append(f"; @launch grid=({g},1,1) block=({b},1,1) lds={lds}")
    else:
        for lab, g, b, lds in launches:
            o.append(f"; @launch kernel={lab} grid=({g},1,1) block=({b},1,1) lds={lds}")
    o.append('.amdgcn_target "amdgcn-amd-amdhsa--gfx950"')
    o.append(".text")
    for lab, p, nv, ao in kernels:
        p.fix_hazards()
        o.append(f".globl {lab}\n.p2align 8\n.type {lab},@function\n{lab}:")
        o.append(p.text().rstrip())
    o.append('.section .rodata,"a"')
    for lab, p, nv, ao in kernels:
        o.append(f""".p2align 6
.amdhsa_kernel {lab}
  .amdhsa_next_free_vgpr {nv}
  .amdhsa_next_free_sgpr 102
  .amdhsa_accum_offset {ao}
  .amdhsa_group_segment_fixed_size 0
  .amdhsa_kernarg_size 104
  .amdhsa_user_sgpr_count 2
  .amdhsa_user_sgpr_kernarg_segment_ptr 1
  .amdhsa_system_sgpr_workgroup_id_x 1
.end_amdhsa_kernel""")
    return "\n".join(o) + "\n"

def srd(p, sreg, ptr_s, size):
    p(f"s_mov_b32 s{sreg}, s{ptr_s}")
    p(f"s_and_b32 s{sreg+1}, s{ptr_s+1}, 0xffff")
    p(f"s_mov_b32 s{sreg+2}, {size:#x}")
    p(f"s_mov_b32 s{sreg+3}, 0x20000")
```

```python
from chain import *

FL2 = 0x5200000
WS = f"s[{sWS}:{sWS + 3}]"
DBG = f"s[{sDBG}:{sDBG + 3}]"
WSRD = f"s[{sW}:{sW + 3}]"
sACT = 48
sA, sB, sBst, sIt = 52, 53, 54, 55
sKind, sBlk, sCol, sRnd, sM0b, sWsz, sOut, sOst, sWB = 60, 61, 62, 63, 64, 65, 66, 67, 68
sSeg, sU0, sU1, sU2, sU3 = 69, 70, 71, 72, 73
sMsk = 74
ACT = f"s[{sACT}:{sACT + 3}]"
K_K, K_V, K_H, K_Y, K_Q = 0, 1, 2, 3, 4
vL, vL16, vWa, vDm, vAa, vt0, vt1, vDp, vDr, vt2, vt3, vOa = 1, 2, 3, 7, 11, 13, 14, 15, 16, 17, 18, 19
vWA, vWB, vAcc = 64, 80, 128
LOG2E = 1.4426950408889634


def spin_ge(p, ld, reg, target, nm, budget=0x80000):
    lab = p.uid(nm)
    p(f"s_mov_b32 s{sWB}, {budget:#x}")
    p.label(lab)
    p(ld)
    p("s_waitcnt vmcnt(0)")
    p(f"v_cmp_gt_u32 vcc, {target}, v{reg}")
    p(f"s_cbranch_vccz {lab}_ok")
    p(f"s_sub_u32 s{sWB}, s{sWB}, 1")
    p(f"s_cmp_lg_u32 s{sWB}, 0")
    p(f"s_cbranch_scc1 {lab}")
    p.label(lab + "_ok")


def wait_cnt(p, word_s, target, nm):
    lab = p.uid(nm)
    p(f"s_cmp_lg_u32 s{sWV}, 0")
    p(f"s_cbranch_scc1 {lab}")
    spin_ge(p, f"buffer_load_dword v{vt0}, off, {DBG}, s{word_s} sc1", vt0, target, nm)
    p.label(lab)
    p("s_barrier")


def signal_cnt(p, word_s, nm):
    p("s_waitcnt vmcnt(0)")
    p("s_barrier")
    lab = p.uid(nm)
    p(f"s_cmp_lg_u32 s{sWV}, 0")
    p(f"s_cbranch_scc1 {lab}")
    p(f"v_mov_b32 v{vt0}, 1")
    p("s_mov_b64 exec, 1")
    p(f"buffer_atomic_add v{vt0}, off, {DBG}, s{word_s} sc1")
    p("s_mov_b64 exec, -1")
    p.label(lab)


LN_X, LN_F = 64, 80
LN_A = 60


def ln_issue(p):
    L, a = 61, LN_A
    p(f"v_and_b32 v{L}, 63, v0")
    p(f"v_and_b32 v{a}, 7, v{L}")
    p(f"v_lshlrev_b32 v{a}, 11, v{a}")
    p(f"v_lshrrev_b32 v62, 4, v{L}")
    p(f"v_lshl_add_u32 v{a}, v62, 5, v{a}")
    p(f"v_and_b32 v62, 8, v{L}")
    p(f"v_add_u32 v{a}, v{a}, v62")
    p(f"s_lshl_b32 s{sT0}, s2, 14")
    p(f"s_lshl_b32 s{sT1}, s{sWV}, 9")
    p(f"s_add_u32 s{sT0}, s{sT0}, s{sT1}")
    for n in range(4):
        for hh in range(2):
            p(f"buffer_load_dwordx2 {v(LN_X + 4 * n + 2 * hh, 2)}, v{a}, {WSRD}, s{sT0} offen offset:{n * 128 + hh * 16}")


def ln_finish(p, newer=0):
    L = 61
    S, T, LA = 56, 57, 58

    def reduce(base):
        p(f"v_add_f32_dpp v{S}, v{S}, v{S} row_ror:8 row_mask:0xf bank_mask:0xf")
        p(f"v_mov_b32 v{T}, v{S}")
        p(f"v_permlane16_swap_b32 v{S}, v{T}")
        p(f"v_add_f32 v{S}, v{S}, v{T}")
        p(f"v_mov_b32 v{T}, v{S}")
        p(f"v_permlane32_swap_b32 v{S}, v{T}")
        p(f"v_add_f32 v{S}, v{S}, v{T}")
        p(f"ds_write_b32 v{LA + 1}, v{S} offset:{base}")
        p("s_waitcnt lgkmcnt(0)")
        p("s_barrier")
        p(f"ds_read_b128 v[52:55], v{LA} offset:{base}")
        p("s_waitcnt lgkmcnt(0)")
        p("v_add_f32 v52, v52, v53")
        p("v_add_f32 v54, v54, v55")
        p(f"v_add_f32 v{S}, v52, v54")
        p(f"v_mul_f32 v{S}, {fhex(1.0 / 1024)}, v{S}")

    p(f"v_and_b32 v{LA}, 7, v{L}")
    p(f"v_lshlrev_b32 v{LA}, 4, v{LA}")
    p(f"s_lshl_b32 s{sT1}, s{sWV}, 2")
    p(f"v_add_u32 v{LA + 1}, s{sT1}, v{LA}")
    p(f"s_waitcnt vmcnt({newer})")
    for k in range(16):
        p(f"v_lshlrev_b32 v{LN_F + 2 * k}, 16, v{LN_X + k}")
        p(f"v_and_b32 v{LN_F + 2 * k + 1}, 0xffff0000, v{LN_X + k}")
    for k in range(4):
        p(f"v_add_f32 v{52 + k}, v{LN_F + k}, v{LN_F + 4 + k}")
    for k in range(8, 32):
        p(f"v_add_f32 v{52 + k % 4}, v{52 + k % 4}, v{LN_F + k}")
    p("v_add_f32 v52, v52, v53")
    p("v_add_f32 v54, v54, v55")
    p(f"v_add_f32 v{S}, v52, v54")
    reduce(64)
    M = 50
    p(f"v_cvt_pk_bf16_f32 v{M}, v{S}, v{S}")
    p(f"v_and_b32 v{M}, 0xffff0000, v{M}")
    for k in range(32):
        p(f"v_sub_f32 v{LN_X + k % 8}, v{LN_F + k}, v{S}")
        if k < 4:
            p(f"v_mul_f32 v{52 + k}, v{LN_X + k % 8}, v{LN_X + k % 8}")
        else:
            p(f"v_fmac_f32 v{52 + k % 4}, v{LN_X + k % 8}, v{LN_X + k % 8}")
    p("v_add_f32 v52, v52, v53")
    p("v_add_f32 v54, v54, v55")
    p(f"v_add_f32 v{S}, v52, v54")
    for k in range(32):
        p(f"v_sub_f32 v{LN_F + k}, v{LN_F + k}, v{M}")
    for k in range(16):
        p(f"v_cvt_pk_bf16_f32 v{LN_X + k}, v{LN_F + 2 * k}, v{LN_F + 2 * k + 1}")
    reduce(192)
    for op in (None, f"v_add_f32 v{S}, {fhex(1e-5)}, v{S}", f"v_sqrt_f32 v{S}, v{S}"):
        if op:
            p(op)
        p(f"v_cvt_pk_bf16_f32 v{S}, v{S}, v{S}")
        p(f"v_and_b32 v{S}, 0xffff0000, v{S}")
    p(f"v_rcp_f32 v{S}, v{S}")
    for k in range(16):
        p(f"v_lshlrev_b32 v{LN_F + 2 * k}, 16, v{LN_X + k}")
        p(f"v_and_b32 v{LN_F + 2 * k + 1}, 0xffff0000, v{LN_X + k}")
    for k in range(32):
        p(f"v_mul_f32 v{LN_F + k}, v{LN_F + k}, v{S}")
    a = LN_A
    p(f"v_lshrrev_b32 v{a}, 3, v{L}")
    p(f"v_lshlrev_b32 v{a}, 9, v{a}")
    p(f"v_add_u32 v{a}, v{a}, v{LA}")
    p(f"s_lshr_b32 s{sT0}, s2, 2")
    p(f"s_lshl_b32 s{sT0}, s{sT0}, 16")
    p(f"s_and_b32 s{sT1}, s2, 3")
    p(f"s_lshl_b32 s{sT1}, s{sT1}, 7")
    p(f"s_add_u32 s{sT0}, s{sT0}, s{sT1}")
    p(f"s_lshl_b32 s{sT1}, s{sWV}, 14")
    p(f"s_add_u32 s{sT0}, s{sT0}, s{sT1}")
    for n in range(4):
        for k in range(4):
            p(f"v_cvt_pk_bf16_f32 v{LN_X + 4 * n + k}, v{LN_F + 8 * n + 2 * k}, v{LN_F + 8 * n + 2 * k + 1}")
        p(f"buffer_store_dwordx4 {v(LN_X + 4 * n, 4)}, v{a}, {WS}, s{sT0} offen sc1")
        if n < 3:
            p(f"s_add_u32 s{sT0}, s{sT0}, 4096")
    p(f"v_lshlrev_b32 v{a}, 2, v{L}")
    p(f"v_mov_b32 v{T}, 0")
    p(f"s_lshl_b32 s{sT0}, s2, 6")
    p(f"s_add_u32 s{sT0}, s{sT0}, {FL2:#x}")
    p("s_mov_b64 exec, 0xffff")
    p(f"buffer_store_dword v{T}, v{a}, {WS}, s{sT0} offen sc1")
    p("s_mov_b64 exec, -1")
    p(f"s_lshr_b32 s{sT0}, s2, 5")
    p(f"s_lshl_b32 s{sT0}, s{sT0}, 2")
    p(f"s_add_u32 s{sT0}, s{sT0}, {D_XN * 4}")
    signal_cnt(p, sT0, "lnsig")


def worker_init(p):
    p(f"v_and_b32 v{vL}, 63, v0")
    p(f"v_lshlrev_b32 v{vL16}, 4, v{vL}")
    p(f"v_bfe_u32 v{vt0}, v{vL}, 2, 2")
    p(f"v_lshrrev_b32 v{vt1}, 5, v{vL}")
    p(f"v_lshl_add_u32 v{vt1}, v{vt1}, 2, v{vt0}")
    p(f"v_lshlrev_b32 v{vt1}, 8, v{vt1}")
    p(f"v_bfe_u32 v{vt2}, v{vL}, 4, 1")
    p(f"v_lshl_add_u32 v{vt1}, v{vt2}, 5, v{vt1}")
    p(f"v_and_b32 v{vt2}, 3, v{vL}")
    p(f"v_lshl_add_u32 v{vt1}, v{vt2}, 3, v{vt1}")
    for cb in range(4):
        p(f"v_xor_b32 v{vt2}, {cb}, v{vt0}")
        p(f"v_lshl_add_u32 v{vWa + cb}, v{vt2}, 6, v{vt1}")
    p(f"v_lshrrev_b32 v{vDr}, 4, v{vL}")
    p(f"v_and_b32 v{vt0}, 15, v{vL}")
    p(f"v_lshlrev_b32 v{vt1}, 2, v{vDr}")
    p(f"v_xor_b32 v{vt0}, v{vt0}, v{vt1}")
    p(f"v_lshlrev_b32 v{vDp}, 4, v{vt0}")
    p(f"s_lshl_b32 s{sT0}, s{sWV}, 4")
    p(f"v_add_u32 v{vDr}, s{sT0}, v{vDr}")
    p(f"s_lshl_b32 s{sM0b}, s{sWV}, 12")
    p(f"s_mov_b32 s{sACT}, s{sWS}")
    p(f"s_mov_b32 s{sACT + 1}, s{sWS + 1}")
    p(f"s_mov_b32 s{sACT + 3}, 0x20000")


def task_setup(p, kind, sentinels=True):
    ptr, stride, wsz, nit, abase, aseg, obase, oseg, oct_ = {
        K_K: (pWK, 8192, 0x800000, 4, XN, 65536, KF, 262144, 8192),
        K_V: (pWV, 8192, 0x800000, 4, XN, 65536, VF, 262144, 8192),
        K_Q: (pWQ, 8192, 0x800000, 4, XN, 65536, OF, 262144, 8192),
        K_H: (pW1, 7168, 1024 * 7168, 4, XN, 65536, HF, 224 * 1024, 8192),
        K_Y: (pW2, 2048, 3584 * 2048, 14, HF, 224 * 1024, YF, 65536, 8192),
    }[kind]
    p(f"s_mov_b32 s{sKind}, {kind}")
    srd(p, sW, ptr, wsz)
    p(f"s_mov_b32 s{sACT + 2}, 0x10000000")
    p(f"s_mov_b32 s{sBst}, {64 * stride}")
    p(f"s_mov_b32 s{sIt}, {nit}")
    p(f"s_lshl_b32 s{sSeg}, s{sBlk}, 3")
    p(f"s_lshl_b32 s{sT0}, s{sWV}, 1")
    p(f"s_add_u32 s{sSeg}, s{sSeg}, s{sT0}")
    p(f"s_mul_i32 s{sT0}, s{sSeg}, {aseg}")
    p(f"s_add_u32 s{sT0}, s{sT0}, {abase:#x}")
    p(f"v_add_u32 v{vAa}, s{sT0}, v{vL16}")
    p(f"v_add_u32 v{vAa + 1}, {aseg}, v{vAa}")
    p(f"s_mul_i32 s{sOut}, s{sSeg}, {oseg}")
    p(f"s_mul_i32 s{sT0}, s{sCol}, {oct_}")
    p(f"s_add_u32 s{sOut}, s{sOut}, s{sT0}")
    p(f"s_add_u32 s{sOut}, s{sOut}, {obase:#x}")
    p(f"s_mov_b32 s{sOst}, {oseg}")
    p(f"s_lshl_b32 s{sT0}, s{sCol}, 8")
    p(f"v_mul_u32_u24 v{vt0}, {stride}, v{vDr}")
    p(f"v_add3_u32 v{vDm}, v{vt0}, v{vDp}, s{sT0}")
    for n in range(1, 4):
        p(f"v_add_u32 v{vDm + n}, {n * (4 * stride - 1024)}, v{vDm}")
    p(f"s_mov_b32 s{sA}, 0")
    p(f"s_mov_b32 s{sB}, 0")
    if sentinels and kind in (K_K, K_V):
        sentinel_init(p, kind)
    word = D_HF if kind == K_Y else D_XN
    p(f"s_lshl_b32 s{sT0}, s{sBlk}, 2")
    p(f"s_add_u32 s{sT0}, s{sT0}, {word * 4}")
    wait_cnt(p, sT0, 28 if kind == K_Y else 32, "inwait")


def sentinel_init(p, kind):
    base = KM if kind == K_K else VM
    for k in range(4):
        p(f"v_mov_b32 v{vWA + k}, -1")
    p(f"s_lshl_b32 s{sT0}, s{sSeg}, 16")
    p(f"s_lshl_b32 s{sT1}, s{sCol}, 11")
    p(f"s_add_u32 s{sT0}, s{sT0}, s{sT1}")
    p(f"s_add_u32 s{sT0}, s{sT0}, {base:#x}")
    p(f"s_add_u32 s{sT1}, s{sT0}, 0x10000")
    for so in (sT0, sT1):
        for o in (0, 1024):
            p(f"buffer_store_dwordx4 {v(vWA, 4)}, v{vL16}, {WS}, s{so} offen offset:{o} sc1")


def vm_ops(buf):
    o = []
    for f in range(4):
        o.append([f"buffer_load_dwordx4 {a(32 * buf + 8 * f + 4 * tb, 4)}, v{vAa + tb}, {ACT}, s{sA} offen offset:{f * 1024} sc1"
                  for tb in range(2)]
                 + [f"buffer_load_dwordx4 v{vDm + f}, {WSRD}, s{sB} offen offset:{f * 1024} lds"])
    return o


def w_reads(buf, f, dst):
    return [f"ds_read_b64_tr_b16 {v(dst + 4 * cb + 2 * hh, 2)}, v{vWa + cb} offset:{buf * 16384 + f * 4096 + hh * 2048}"
            for cb in range(4) for hh in range(2)]


def gemm_prologue(p):
    for st in range(3):
        p(f"s_add_u32 m0, s{sM0b}, {st * 16384}")
        for grp in vm_ops(st):
            for x in grp:
                p(x)
        p(f"s_add_u32 s{sA}, s{sA}, 4096")
        p(f"s_add_u32 s{sB}, s{sB}, s{sBst}")
    for k in range(128):
        p(f"v_mov_b32 v{vAcc + k}, 0")
    p("s_waitcnt vmcnt(24)")
    p("s_barrier")
    for x in w_reads(0, 0, vWA):
        p(x)


def gemm_loop(p, lab, trans):
    p.label(lab)
    for u in range(4):
        nb = (u + 3) % 4
        vm = vm_ops(nb)
        for f in range(4):
            cur, nxt = (vWA, vWB) if f % 2 == 0 else (vWB, vWA)
            rd = w_reads(u, f + 1, nxt) if f < 3 else w_reads((u + 1) % 4, 0, nxt)
            gaps = [[] for _ in range(8)]
            r0 = 0 if f < 3 else 1
            for g in range(4):
                gaps[r0 + g] += rd[2 * g:2 * g + 2]
            if f == 3:
                gaps[0] += ["s_waitcnt vmcnt(21)", "s_barrier"]
            if f == 0:
                gaps[3] += [f"s_add_u32 m0, s{sM0b}, {nb * 16384}"]
                if u == 1:
                    gaps[0] += [f"s_cmp_eq_u32 s{sIt}, 1"]
                    gaps[1] += [f"s_cselect_b32 s{sACT + 2}, 0, s{sACT + 2}"]
                    gaps[2] += [f"s_cselect_b32 s{sW + 2}, 0, s{sW + 2}"]
            for k in range(3):
                gaps[5 + k].append(vm[f][k])
            if f == 3:
                gaps[7] += [f"s_add_u32 s{sA}, s{sA}, 4096", f"s_add_u32 s{sB}, s{sB}, s{sBst}"]
                if u == 3:
                    gaps[6] += [f"s_sub_u32 s{sIt}, s{sIt}, 1"]
            p("s_waitcnt lgkmcnt(0)")
            for g in range(8):
                cb, tb = g // 2, g % 2
                acc = v(vAcc + 16 * (4 * tb + cb), 16)
                W, A = v(cur + 4 * cb, 4), a(32 * u + 8 * f + 4 * tb, 4)
                if trans:
                    p(f"v_mfma_f32_32x32x16_bf16 {acc}, {W}, {A}, {acc}")
                else:
                    p(f"v_mfma_f32_32x32x16_bf16 {acc}, {A}, {W}, {acc}")
                for x in gaps[g]:
                    p(x)
    p(f"s_cmp_lg_u32 s{sIt}, 0")
    p(f"s_cbranch_scc1 {lab}")
    p("s_waitcnt lgkmcnt(0)")


def store_epilogue(p, silu):
    for tb in range(2):
        for half in range(2):
            if tb or half:
                p(f"s_add_u32 s{sT0}, s{sOut}, {half * 4096}")
                if tb:
                    p(f"s_add_u32 s{sT0}, s{sT0}, s{sOst}")
            so = sT0 if (tb or half) else sOut
            for fr in range(4):
                b = vAcc + 64 * tb + 32 * half + 8 * fr
                if silu:
                    t = vWA + 8 * (fr % 2)
                    for k in range(8):
                        p(f"v_mul_f32 v{t + k}, {fhex(-LOG2E)}, v{b + k}")
                    for k in range(8):
                        p(f"v_exp_f32 v{t + k}, v{t + k}")
                    for k in range(8):
                        p(f"v_add_f32 v{t + k}, 1.0, v{t + k}")
                    for k in range(8):
                        p(f"v_rcp_f32 v{t + k}, v{t + k}")
                    for k in range(8):
                        p(f"v_mul_f32 v{b + k}, v{b + k}, v{t + k}")
                for k in range(4):
                    p(f"v_cvt_pk_bf16_f32 v{b + k}, v{b + 2 * k}, v{b + 2 * k + 1}")
                p(f"buffer_store_dwordx4 {v(b, 4)}, v{vL16}, {WS}, s{so} offen offset:{fr * 1024} sc1")


vQ, vBias, vS, vSm, vKm, vVm, vPx, vPm, vO = 64, 20, 36, 128, 144, 176, 184, 52, 192
vKma, vVma, vPr = 54, 55, 56


def attn_epilogue(p):
    for tb in range(2):
        for k in range(32):
            p(f"v_cvt_pk_bf16_f32 v{vQ + 32 * tb + k}, v{vAcc + 64 * tb + 2 * k}, v{vAcc + 64 * tb + 2 * k + 1}")
    p(f"s_lshl_b32 s{sT0}, s{sBlk}, 2")
    p(f"s_add_u32 s{sT0}, s{sT0}, {D_KV * 4}")
    wait_cnt(p, sT0, 64, "kvwait")
    p("s_waitcnt vmcnt(0)")
    for tb in range(2):
        for kv in range(2):
            for half in range(2):
                p(f"s_add_u32 s{sT0}, s{sOut}, {((KF if kv == 0 else VF) - OF + tb * 262144 + half * 4096) & 0xffffffff:#x}")
                for fr in range(4):
                    p(f"buffer_load_dwordx4 {a(64 * tb + 32 * kv + 16 * half + 4 * fr, 4)}, v{vL16}, {WS}, s{sT0} offen offset:{fr * 1024} sc1")
    p(f"v_and_b32 v{vt0}, 31, v{vL}")
    p(f"v_lshrrev_b32 v{vt1}, 5, v{vL}")
    p(f"v_lshlrev_b32 v{vt2}, 2, v{vt1}")
    p(f"v_sub_u32 v{vt2}, v{vt0}, v{vt2}")
    p(f"v_mov_b32 v{vt3}, {fhex(-1e30)}")
    for q in range(4):
        for j in range(4):
            p(f"v_cmp_gt_i32 vcc, {8 * q + j}, v{vt2}")
            p(f"v_cndmask_b32 v{vBias + 4 * q + j}, 0, v{vt3}, vcc")
    p(f"v_and_b32 v{vt2}, 7, v{vL}")
    p(f"v_lshlrev_b32 v{vt2}, 4, v{vt2}")
    p(f"v_lshl_add_u32 v{vKma}, v{vt1}, 7, v{vt2}")
    p(f"v_lshlrev_b32 v{vt2}, 4, v{vt0}")
    p(f"v_lshl_add_u32 v{vVma}, v{vt1}, 3, v{vt2}")
    p(f"v_mul_u32_u24 v{vPr}, {0x400000 + 0}, v{vt1}")
    p(f"v_lshl_add_u32 v{vPr}, v{vt0}, 6, v{vPr}")
    p(f"s_mov_b32 s{sU3}, {fhex(CEXP)}")
    for tb in range(2):
        p(f"s_add_u32 s{sU0}, s{sSeg}, {tb}")
        p(f"s_lshl_b32 s{sU1}, s{sU0}, 16")
        p(f"s_lshl_b32 s{sT1}, s{sCol}, 11")
        p(f"s_add_u32 s{sU1}, s{sU1}, s{sT1}")
        p(f"s_add_u32 s{sU1}, s{sU1}, {KM:#x}")
        p(f"s_add_u32 s{sU2}, s{sU1}, {VM - KM:#x}")
        if tb == 0:
            p("s_waitcnt vmcnt(24)")
        for F in range(8):
            C = v(vBias, 16) if F == 0 else v(vS, 16)
            p(f"v_mfma_f32_32x32x16_bf16 {v(vS, 16)}, {a(64 * tb + 4 * F, 4)}, {v(vQ + 32 * tb + 4 * F, 4)}, {C}")
        lab = p.uid("km")
        p(f"s_mov_b32 s{sWB}, 0x100000")
        p.label(lab)
        p(f"buffer_load_dword v{vt0}, v{vPr}, {WS}, s{sU1} offen sc1")
        p("s_waitcnt vmcnt(0)")
        p(f"v_cmp_eq_u32 vcc, -1, v{vt0}")
        p(f"s_cbranch_vccnz {lab}_again")
        for F in range(8):
            p(f"buffer_load_dwordx4 {v(vKm + 4 * F, 4)}, v{vKma}, {WS}, s{sU1} offen offset:{F * 256} sc1")
        for eb in range(4):
            p(f"buffer_load_dwordx2 {v(vVm + 2 * eb, 2)}, v{vVma}, {WS}, s{sU2} offen offset:{eb * 512} sc1")
        p("s_waitcnt vmcnt(0)")
        regs = list(range(vKm, vKm + 40))
        p(f"v_max3_u32 v{vt0}, v{regs[0]}, v{regs[1]}, v{regs[2]}")
        p(f"v_max3_u32 v{vt1}, v{regs[3]}, v{regs[4]}, v{regs[5]}")
        rest = regs[6:]
        k = 0
        while rest:
            t = vt0 if k % 2 == 0 else vt1
            p(f"v_max3_u32 v{t}, v{t}, v{rest[0]}, v{rest[1]}")
            rest = rest[2:]
            k += 1
        p(f"v_max_u32 v{vt0}, v{vt0}, v{vt1}")
        p(f"v_cmp_eq_u32 vcc, -1, v{vt0}")
        p(f"s_cbranch_vccz {lab}_ok")
        p.label(lab + "_again")
        p(f"s_sub_u32 s{sWB}, s{sWB}, 1")
        p(f"s_cmp_lg_u32 s{sWB}, 0")
        p(f"s_cbranch_scc1 {lab}")
        p.label(lab + "_ok")
        for F in range(8):
            C = "0" if F == 0 else v(vSm, 16)
            p(f"v_mfma_f32_32x32x16_bf16 {v(vSm, 16)}, {v(vKm + 4 * F, 4)}, {v(vQ + 32 * tb + 4 * F, 4)}, {C}")
            if F == 0:
                p(f"v_max3_f32 v{vt0}, v{vS}, v{vS + 1}, v{vS + 2}")
                p(f"v_max3_f32 v{vt1}, v{vS + 3}, v{vS + 4}, v{vS + 5}")
            if F == 1:
                p(f"v_max3_f32 v{vt0}, v{vt0}, v{vS + 6}, v{vS + 7}")
                p(f"v_max3_f32 v{vt1}, v{vt1}, v{vS + 8}, v{vS + 9}")
                p(f"v_max3_f32 v{vt0}, v{vt0}, v{vS + 10}, v{vS + 11}")
                p(f"v_max3_f32 v{vt1}, v{vt1}, v{vS + 12}, v{vS + 13}")
            if F == 2:
                p(f"v_max3_f32 v{vt0}, v{vt0}, v{vS + 14}, v{vS + 15}")
        p(f"v_max3_f32 v{vt0}, v{vt0}, v{vSm}, v{vSm + 1}")
        p(f"v_max3_f32 v{vt1}, v{vt1}, v{vSm + 2}, v{vSm + 3}")
        p(f"v_max_f32 v{vt0}, v{vt0}, v{vt1}")
        p(f"v_mov_b32 v{vt1}, v{vt0}")
        p(f"v_permlane32_swap_b32 v{vt0}, v{vt1}")
        p(f"v_max_f32 v{vt0}, v{vt0}, v{vt1}")
        p(f"v_mul_f32 v{vt0}, {fhex(-CEXP)}, v{vt0}")
        el = [vSm + k for k in range(4)] + [vS + k for k in range(16)]
        for r in el:
            p(f"v_fma_f32 v{r}, v{r}, s{sU3}, v{vt0}")
        for r in el:
            p(f"v_exp_f32 v{r}, v{r}")
        p(f"v_add_f32 v{vt0}, v{el[0]}, v{el[1]}")
        p(f"v_add_f32 v{vt1}, v{el[2]}, v{el[3]}")
        for k in range(4, 20):
            t = vt0 if k % 2 == 0 else vt1
            p(f"v_add_f32 v{t}, v{t}, v{el[k]}")
        p(f"v_add_f32 v{vt0}, v{vt0}, v{vt1}")
        p(f"v_mov_b32 v{vt1}, v{vt0}")
        p(f"v_permlane32_swap_b32 v{vt0}, v{vt1}")
        p(f"v_add_f32 v{vt0}, v{vt0}, v{vt1}")
        p(f"v_rcp_f32 v{vt0}, v{vt0}")
        for r in el:
            p(f"v_mul_f32 v{r}, v{r}, v{vt0}")
        for k in range(2):
            p(f"v_cvt_pk_bf16_f32 v{vPm + k}, v{vSm + 2 * k}, v{vSm + 2 * k + 1}")
        for k in range(8):
            p(f"v_cvt_pk_bf16_f32 v{vPx + k}, v{vS + 2 * k}, v{vS + 2 * k + 1}")
        for eb in range(4):
            O = v(vO + 16 * eb, 16)
            p(f"v_mfma_f32_32x32x8_bf16 {O}, {v(vVm + 2 * eb, 2)}, {v(vPm, 2)}, 0")
            for f in range(2):
                p(f"v_mfma_f32_32x32x16_bf16 {O}, {a(64 * tb + 32 + 8 * eb + 4 * f, 4)}, {v(vPx + 4 * f, 4)}, {O}")
        p(f"s_add_u32 s{sT0}, s{sOut}, {tb * 262144}")
        p(f"s_add_u32 s{sT1}, s{sT0}, 4096")
        for F in range(8):
            b = vO + 8 * F
            for k in range(4):
                p(f"v_cvt_pk_bf16_f32 v{b + k}, v{b + 2 * k}, v{b + 2 * k + 1}")
            p(f"buffer_store_dwordx4 {v(b, 4)}, v{vL16}, {WS}, s{sT0 if F < 4 else sT1} offen offset:{(F % 4) * 1024} sc1")
        p(f"s_lshl_b32 s{sT0}, s{sU0}, 8")
        p(f"s_lshr_b32 s{sT1}, s{sCol}, 3")
        p(f"s_lshl_b32 s{sT1}, s{sT1}, 6")
        p(f"s_add_u32 s{sT0}, s{sT0}, s{sT1}")
        p(f"s_and_b32 s{sT1}, s{sCol}, 7")
        p(f"s_lshl_b32 s{sT1}, s{sT1}, 2")
        p(f"s_add_u32 s{sT0}, s{sT0}, s{sT1}")
        p(f"s_add_u32 s{sT0}, s{sT0}, {FL2:#x}")
        p(f"v_mov_b32 v{vt0}, 1")
        p("s_waitcnt vmcnt(0)")
        p("s_mov_b64 exec, 1")
        p(f"buffer_store_dword v{vt0}, off, {WS}, s{sT0} sc1")
        p("s_mov_b64 exec, -1")


vData = 64
vHF, vHY, vHX = 20, 22, 24
vOr_, vFl, vYa, vXa, vRw_, vRr_, vE = 26, 27, 28, 29, 30, 31, 32
sT_, sOo, sOn, sFn, sYo, sXo = 60, 63, 65, 66, 67, 69
sXS, sOS = 76, 80


def wo_stream(p, done):
    srd(p, sW, pWO, 0x800000)
    srd(p, sXS, pX, 0x400000)
    srd(p, sOS, pOUT, 0x400000)
    X = f"s[{sXS}:{sXS + 3}]"
    OUT = f"s[{sOS}:{sOS + 3}]"
    g, c = 40, 41
    p(f"v_lshrrev_b32 v{g}, 4, v{vL}")
    p(f"v_and_b32 v{c}, 15, v{vL}")
    p(f"v_lshrrev_b32 v{vt0}, 2, v{vL}")
    p(f"v_lshlrev_b32 v{vt0}, 11, v{vt0}")
    p(f"v_and_b32 v{vt1}, 3, v{vL}")
    p(f"v_lshl_add_u32 v{vt0}, v{vt1}, 4, v{vt0}")
    p(f"s_lshl_b32 s{sT0}, s{sWV}, 21")
    p(f"s_lshl_b32 s{sT1}, s{sCol}, 6")
    p(f"s_add_u32 s{sT0}, s{sT0}, s{sT1}")
    p(f"v_add_u32 v{vDm}, s{sT0}, v{vt0}")
    p(f"v_lshrrev_b32 v{vt0}, 1, v{g}")
    p(f"v_lshlrev_b32 v{vt0}, 4, v{vt0}")
    p(f"v_and_b32 v{vt1}, 1, v{g}")
    p(f"v_lshl_add_u32 v{vt0}, v{vt1}, 2, v{vt0}")
    p(f"v_lshrrev_b32 v{vt1}, 2, v{c}")
    p(f"v_add_u32 v{vt0}, v{vt0}, v{vt1}")
    p(f"v_lshlrev_b32 v{vt0}, 6, v{vt0}")
    p(f"v_and_b32 v{vt1}, 3, v{c}")
    p(f"v_lshl_add_u32 v{vt0}, v{vt1}, 3, v{vt0}")
    p(f"s_lshl_b32 s{sM0b}, s{sWV}, 15")
    p(f"v_add_u32 v{vWa}, s{sM0b}, v{vt0}")
    p("s_barrier")
    for ch in range(2):
        for n in range(32):
            p(f"s_add_u32 m0, s{sM0b}, {n * 1024}")
            p(f"s_mov_b32 s{sT0}, {(ch * 512 + n * 16) * 2048}")
            p(f"buffer_load_dwordx4 v{vDm}, {WSRD}, s{sT0} offen lds")
        p("s_waitcnt vmcnt(0)")
        for kb in range(16):
            for cb in range(2):
                for hh in range(2):
                    r = 8 * (16 * ch + kb) + 4 * cb + 2 * hh
                    p(f"ds_read_b64_tr_b16 {a(r, 2)}, v{vWa} offset:{kb * 2048 + hh * 512 + cb * 32}")
            if kb % 2 == 1:
                p("s_waitcnt lgkmcnt(0)")
    p(f"v_lshlrev_b32 v{vt0}, 9, v{g}")
    p(f"v_lshl_add_u32 v{vt0}, v{c}, 4, v{vt0}")
    p(f"s_lshl_b32 s{sT0}, s{sWV}, 16")
    p(f"s_lshl_b32 s{sT1}, s{sBlk}, 8")
    p(f"s_add_u32 s{sT0}, s{sT0}, s{sT1}")
    p(f"s_add_u32 s{sT0}, s{sT0}, {OF:#x}")
    p(f"v_add_u32 v{vOr_}, s{sT0}, v{vt0}")
    p(f"s_lshr_b32 s{sT0}, s{sCol}, 3")
    p(f"s_lshl_b32 s{sT0}, s{sT0}, 6")
    p(f"s_bfe_u32 s{sT1}, s{sCol}, 0x10002")
    p(f"s_lshl_b32 s{sT1}, s{sT1}, 2")
    p(f"s_add_u32 s{sT0}, s{sT0}, s{sT1}")
    p(f"s_add_u32 s{sT0}, s{sT0}, {FL2 + 32:#x}")
    p(f"s_lshl_b32 s{sT1}, s{sWV}, 6")
    p(f"s_add_u32 s{sT1}, s{sT1}, {FL2:#x}")
    p(f"v_lshlrev_b32 v{vt0}, 2, v{c}")
    p(f"v_add_u32 v{vt0}, s{sT1}, v{vt0}")
    p(f"v_mov_b32 v{vt1}, s{sT0}")
    p(f"v_cmp_gt_u32 vcc, 8, v{c}")
    p(f"v_cndmask_b32 v{vFl}, v{vt1}, v{vt0}, vcc")
    p(f"s_lshl_b32 s{sT0}, s{sWV}, 2")
    p(f"s_lshl_b32 s{sT1}, s{sBlk}, 4")
    p(f"s_add_u32 s{sT1}, s{sT1}, s{sT0}")
    p(f"v_add_u32 v{vt2}, s{sT1}, v{g}")
    p(f"v_lshlrev_b32 v{vt0}, 11, v{vt2}")
    p(f"v_lshl_add_u32 v{vt0}, v{c}, 2, v{vt0}")
    p(f"s_lshl_b32 s{sT1}, s{sCol}, 6")
    p(f"v_add_u32 v{vXa}, s{sT1}, v{vt0}")
    p(f"v_lshrrev_b32 v{vt0}, 3, v{c}")
    p(f"v_lshlrev_b32 v{vt0}, 10, v{vt0}")
    p(f"v_bfe_u32 v{vt1}, v{c}, 1, 1")
    p(f"v_lshl_add_u32 v{vt0}, v{vt1}, 9, v{vt0}")
    p(f"v_lshl_add_u32 v{vt0}, v{vt2}, 4, v{vt0}")
    p(f"v_bfe_u32 v{vt1}, v{c}, 2, 1")
    p(f"v_lshl_add_u32 v{vt0}, v{vt1}, 3, v{vt0}")
    p(f"v_and_b32 v{vt1}, 1, v{c}")
    p(f"v_lshl_add_u32 v{vt0}, v{vt1}, 2, v{vt0}")
    p(f"s_lshl_b32 s{sT1}, s{sCol}, 11")
    p(f"s_add_u32 s{sT1}, s{sT1}, {YF:#x}")
    p(f"v_add_u32 v{vYa}, s{sT1}, v{vt0}")
    RB = 131072
    p(f"v_mul_u32_u24 v{vt0}, 144, v{c}")
    p(f"v_lshl_add_u32 v{vt0}, v{g}, 4, v{vt0}")
    p(f"s_mul_i32 s{sT0}, s{sWV}, 2304")
    p(f"s_add_u32 s{sT0}, s{sT0}, {RB}")
    p(f"v_add_u32 v{vRw_}, s{sT0}, v{vt0}")
    p(f"v_mul_u32_u24 v{vt0}, 144, v{g}")
    p(f"v_lshl_add_u32 v{vt0}, v{c}, 3, v{vt0}")
    p(f"s_mul_i32 s{sT0}, s{sWV}, 576")
    p(f"s_add_u32 s{sT0}, s{sT0}, {RB}")
    p(f"v_add_u32 v{vRr_}, s{sT0}, v{vt0}")
    p(f"v_and_b32 v{vt1}, 28, v{vL}")
    spin_ge(p, f"buffer_load_dword v{vt0}, v{vt1}, {DBG}, 0 offen offset:{D_XN * 4} sc1", vt0, 32, "xnall")

    def data_ld(kb, so):
        return f"buffer_load_dwordx4 {v(vData + 4 * kb, 4)}, v{vOr_}, {WS}, s{so} offen offset:{(kb % 2) * 2048} sc1"

    def hdr(par):
        p(f"buffer_load_dword v{vHF + par}, v{vFl}, {WS}, s{sFn} offen sc1")
        p(f"buffer_load_dword v{vHY + par}, v{vYa}, {WS}, s{sYo} offen sc1")
        p(f"buffer_load_dword v{vHX + par}, v{vXa}, {X}, s{sYo} offen")

    def compute(par, stream):
        for kb in range(32):
            p(f"s_waitcnt vmcnt({35 if stream else 32 - kb})")
            for cb in range(2):
                C = "0" if kb == 0 else v(vE + 4 * cb, 4)
                p(f"v_mfma_f32_16x16x32_bf16 {v(vE + 4 * cb, 4)}, {a(8 * kb + 4 * cb, 4)}, {v(vData + 4 * kb, 4)}, {C}")
            if stream:
                p(data_ld(kb, sOn))
                if kb % 2 == 1:
                    p(f"s_add_u32 s{sOn}, s{sOn}, 4096")

    def final(par):
        for cb in range(2):
            p(f"ds_write_b128 v{vRw_}, {v(vE + 4 * cb, 4)} offset:{par * 9216 + cb * 64}")
        p("s_waitcnt lgkmcnt(0)")
        p("s_barrier")
        for w in range(4):
            p(f"ds_read_b64 {v(40 + 2 * w, 2)}, v{vRr_} offset:{par * 9216 + w * 2304}")
        p(f"v_lshlrev_b32 v48, 16, v{vHX + par}")
        p(f"v_and_b32 v49, 0xffff0000, v{vHX + par}")
        p(f"v_lshlrev_b32 v50, 16, v{vHY + par}")
        p(f"v_and_b32 v51, 0xffff0000, v{vHY + par}")
        p("s_waitcnt lgkmcnt(0)")
        for k in range(2):
            p(f"v_add_f32 v{40 + k}, v{40 + k}, v{42 + k}")
            p(f"v_add_f32 v{44 + k}, v{44 + k}, v{46 + k}")
        for k in range(2):
            p(f"v_add_f32 v{40 + k}, v{40 + k}, v{44 + k}")
        for add in (48, 50):
            p("v_cvt_pk_bf16_f32 v40, v40, v41")
            p("v_and_b32 v41, 0xffff0000, v40")
            p("v_lshlrev_b32 v40, 16, v40")
            p(f"v_add_f32 v40, v40, v{add}")
            p(f"v_add_f32 v41, v41, v{add + 1}")
        p("v_cvt_pk_bf16_f32 v40, v40, v41")
        p(f"buffer_store_dword v40, v{vXa}, {OUT}, s{sXo} offen")

    def fetch(par):
        p(f"s_lshl_b32 s{sFn}, s{sT_}, 8")
        spin_ge(p, f"buffer_load_dword v{vt0}, v{vFl}, {WS}, s{sFn} offen sc1", vt0, 1, "oflag", 0x100000)
        p(f"s_add_u32 s{sFn}, s{sFn}, 256")
        p(f"s_lshl_b32 s{sYo}, s{sT_}, 16")
        p(f"s_lshl_b32 s{sOn}, s{sT_}, 18")
        hdr(par)
        for kb in range(32):
            p(data_ld(kb, sOn))
            if kb % 2 == 1:
                p(f"s_add_u32 s{sOn}, s{sOn}, 4096")
        p(f"buffer_load_dword v{vt0}, v{vFl}, {WS}, s{sFn} offen sc1")

    p(f"s_mov_b32 s{sT_}, 0")
    fetch(0)
    for par in range(2):
        p.label(f"wo_seg{par}")
        p("s_waitcnt vmcnt(32)")
        p(f"s_mov_b32 s{sXo}, s{sYo}")
        p(f"s_add_u32 s{sT_}, s{sT_}, 1")
        p(f"v_cmp_eq_u32 vcc, 0, v{vHF + par}")
        p(f"s_cmp_eq_u32 s{sT_}, 64")
        p(f"s_cbranch_scc1 wo_drain{par}")
        p(f"s_cbranch_vccnz wo_drain{par}")
        p(f"s_add_u32 s{sFn}, s{sFn}, 256")
        p(f"s_lshl_b32 s{sYo}, s{sT_}, 16")
        p(f"s_lshl_b32 s{sOn}, s{sT_}, 18")
        hdr(1 - par)
        compute(par, True)
        final(par)
        p(f"s_branch wo_seg{1 - par}")
        p.label(f"wo_drain{par}")
        compute(par, False)
        final(par)
        p(f"s_cmp_eq_u32 s{sT_}, 64")
        p(f"s_cbranch_scc1 {done}")
        fetch(1 - par)
        if par == 1:
            p("s_branch wo_seg0")


def worker(p, done, sentinels=True, stop_after=None, stat=None):
    worker_init(p)
    p(f"s_mov_b32 s{sRnd}, 0")
    sI = sU0
    p.label("W_NEXT")
    if stat:
        stat(p)
    p(f"s_lshl_b32 s{sI}, s{sX}, 5")
    p(f"s_add_u32 s{sI}, s{sI}, s{sR}")
    p(f"s_add_u32 s{sRnd}, s{sRnd}, 1")
    if stop_after is not None:
        p(f"s_cmp_gt_u32 s{sRnd}, {stop_after}")
        p(f"s_cbranch_scc1 {done}")
    p(f"s_cmp_le_u32 s{sRnd}, 2")
    p("s_cbranch_scc1 W_R12")
    p(f"s_cmp_eq_u32 s{sRnd}, 3")
    p("s_cbranch_scc1 W_R3")
    p(f"s_cmp_eq_u32 s{sRnd}, 4")
    p("s_cbranch_scc1 W_R4")
    p(f"s_cmp_ge_u32 s{sX}, 4")
    p("s_cbranch_scc1 W_R5B")
    p(f"s_cmp_ge_u32 s{sRnd}, 7")
    p(f"s_cbranch_scc1 {done}")
    p(f"s_sub_u32 s{sBlk}, s{sRnd}, 5")
    p(f"s_lshl_b32 s{sBlk}, s{sBlk}, 2")
    p(f"s_add_u32 s{sBlk}, s{sBlk}, s{sX}")
    p(f"s_mov_b32 s{sCol}, s{sR}")
    p("s_branch W_SET_Q")
    p.label("W_R5B")
    p(f"s_cmp_ge_u32 s{sRnd}, 6")
    p("s_cbranch_scc1 W_WO")
    p(f"s_sub_u32 s{sI}, s{sI}, 128")
    p(f"s_lshr_b32 s{sBlk}, s{sI}, 3")
    p(f"s_and_b32 s{sCol}, s{sI}, 7")
    p("s_branch W_SET_Y")
    p.label("W_R12")
    p(f"s_mul_i32 s{sCol}, s{sI}, 43691")
    p(f"s_lshr_b32 s{sCol}, s{sCol}, 17")
    p(f"s_mul_i32 s{sT0}, s{sCol}, 3")
    p(f"s_sub_u32 s{sBlk}, s{sI}, s{sT0}")
    p(f"s_cmp_eq_u32 s{sRnd}, 2")
    p(f"s_cselect_b32 s{sT0}, 3, 0")
    p(f"s_add_u32 s{sBlk}, s{sBlk}, s{sT0}")
    p("s_branch W_KV")
    p.label("W_R3")
    p(f"s_cmp_ge_u32 s{sX}, 4")
    p("s_cbranch_scc1 W_R3B")
    p(f"s_lshr_b32 s{sCol}, s{sI}, 1")
    p(f"s_and_b32 s{sBlk}, s{sI}, 1")
    p(f"s_add_u32 s{sBlk}, s{sBlk}, 6")
    p.label("W_KV")
    p(f"s_mov_b32 s{sT0}, s{sCol}")
    p(f"s_lshr_b32 s{sCol}, s{sCol}, 1")
    p(f"s_bitcmp1_b32 s{sT0}, 0")
    p("s_cbranch_scc1 W_SET_V")
    p("s_branch W_SET_K")
    p.label("W_R3B")
    p(f"s_sub_u32 s{sI}, s{sI}, 128")
    p("s_branch W_H")
    p.label("W_R4")
    p(f"s_cmp_ge_u32 s{sX}, 5")
    p("s_cbranch_scc1 W_NEXT")
    p(f"s_add_u32 s{sI}, s{sI}, 64")
    p.label("W_H")
    p(f"s_and_b32 s{sBlk}, s{sI}, 7")
    p(f"s_lshr_b32 s{sCol}, s{sI}, 3")
    for lab, kind in (("W_SET_H", K_H), ("W_SET_K", K_K), ("W_SET_Q", K_Q), ("W_SET_Y", K_Y), ("W_SET_V", K_V)):
        p.label(lab)
        task_setup(p, kind, sentinels)
        if kind != K_V:
            p("s_branch W_GT")
    gemm_prologue(p)
    gemm_loop(p, "W_LOOP_N", False)
    p("s_branch W_EP_ST")
    p.label("W_GT")
    gemm_prologue(p)
    gemm_loop(p, "W_LOOP_T", True)
    p(f"s_cmp_eq_u32 s{sKind}, {K_Q}")
    p("s_cbranch_scc1 W_EP_Q")
    p(f"s_cmp_eq_u32 s{sKind}, {K_H}")
    p("s_cbranch_scc1 W_EP_H")
    p.label("W_EP_ST")
    store_epilogue(p, False)
    p(f"s_cmp_eq_u32 s{sKind}, {K_Y}")
    p("s_cbranch_scc1 W_SIG_Y")
    p(f"s_lshl_b32 s{sT0}, s{sBlk}, 2")
    p(f"s_add_u32 s{sT0}, s{sT0}, {D_KV * 4}")
    signal_cnt(p, sT0, "kvsig")
    p("s_branch W_NEXT")
    p.label("W_SIG_Y")
    p(f"s_lshl_b32 s{sT0}, s{sSeg}, 8")
    p(f"s_lshr_b32 s{sT1}, s{sCol}, 1")
    p(f"s_lshl_b32 s{sT1}, s{sT1}, 6")
    p(f"s_add_u32 s{sT0}, s{sT0}, s{sT1}")
    p(f"s_and_b32 s{sT1}, s{sCol}, 1")
    p(f"s_lshl_b32 s{sT1}, s{sT1}, 2")
    p(f"s_add_u32 s{sT0}, s{sT0}, s{sT1}")
    p(f"s_add_u32 s{sT0}, s{sT0}, {FL2 + 32:#x}")
    p(f"v_mov_b32 v{vt0}, 1")
    p("s_waitcnt vmcnt(0)")
    p("s_mov_b64 exec, 1")
    p(f"buffer_store_dword v{vt0}, off, {WS}, s{sT0} sc1")
    p(f"buffer_store_dword v{vt0}, off, {WS}, s{sT0} offset:256 sc1")
    p("s_mov_b64 exec, -1")
    p("s_branch W_NEXT")
    p.label("W_EP_H")
    store_epilogue(p, True)
    p(f"s_lshl_b32 s{sT0}, s{sBlk}, 2")
    p(f"s_add_u32 s{sT0}, s{sT0}, {D_HF * 4}")
    signal_cnt(p, sT0, "hsig")
    p("s_branch W_NEXT")
    p.label("W_EP_Q")
    attn_epilogue(p)
    p("s_branch W_NEXT")
    p.label("W_WO")
    p(f"s_sub_u32 s{sBlk}, s{sX}, 4")
    p(f"s_mov_b32 s{sCol}, s{sR}")
    wo_stream(p, done)
```

```python
import sys
from worker import *

def prologue(p):
    p("s_cmp_ge_u32 s2, 256")
    p("s_cbranch_scc1 EXIT")
    p("s_load_dwordx16 s[16:31], s[0:1], 0")
    p("s_load_dwordx8 s[32:39], s[0:1], 64")
    p("s_load_dwordx2 s[40:41], s[0:1], 96")
    p(f"s_getreg_b32 s{sX}, hwreg(HW_REG_XCC_ID, 0, 4)")
    p("v_lshrrev_b32 v1, 6, v0")
    p(f"v_readfirstlane_b32 s{sWV}, v1")
    p("s_waitcnt lgkmcnt(0)")
    srd(p, sWS, pWSP, 0x10000000)
    srd(p, sDBG, pDBG, 256)
    srd(p, sW, pX, 0x400000)
    p(f"s_cmp_lg_u32 s{sWV}, 0")
    p("s_cbranch_scc1 RANK_SKIP")
    p(f"s_min_u32 s{sT0}, s{sX}, 8")
    p(f"s_lshl_b32 s{sT0}, s{sT0}, 2")
    p("s_mov_b64 exec, 1")
    p("v_mov_b32 v1, 1")
    p(f"buffer_atomic_add v1, off, {DBG}, s{sT0} sc0 sc1")
    p("s_mov_b64 exec, -1")
    p.label("RANK_SKIP")
    ln_issue(p)
    p(f"s_cmp_lg_u32 s{sWV}, 0")
    p("s_cbranch_scc1 RANK_WAIT")
    p("v_mov_b32 v2, 0")
    p("s_waitcnt vmcnt(8)")
    p("s_mov_b64 exec, 1")
    p("ds_write_b32 v2, v1")
    p("s_mov_b64 exec, -1")
    p.label("RANK_WAIT")
    ln_finish(p, 0)
    p("v_mov_b32 v2, 0")
    p("ds_read_b32 v1, v2")
    p("s_waitcnt lgkmcnt(0)")
    p(f"v_readfirstlane_b32 s{sR}, v1")
    p("s_barrier")


def task_stat(p):
    p("s_memrealtime s[96:97]")
    p(f"s_lshl_b32 s98, s{sX}, 5")
    p(f"s_add_u32 s98, s98, s{sR}")
    p("s_lshl_b32 s98, s98, 6")
    p(f"s_lshl_b32 s99, s{sRnd}, 2")
    p("s_add_u32 s98, s98, s99")
    p(f"s_add_u32 s98, s98, {STAT + 0x300000:#x}")
    p("s_waitcnt lgkmcnt(0)")
    p(f"v_mov_b32 v{vt0}, s96")
    p("s_mov_b64 exec, 1")
    p(f"buffer_store_dword v{vt0}, off, {WS}, s98")
    p("s_mov_b64 exec, -1")


def gen(chain=True, stop_after=None, stat=False, copt=None):
    p = Prog()
    if stat:
        p("s_memrealtime s[94:95]")
    prologue(p)
    p(f"s_cmp_ge_u32 s{sR}, 32")
    p("s_cbranch_scc1 EXIT")
    p(f"s_cmp_ge_u32 s{sX}, 2")
    p("s_cbranch_scc1 WORKER")
    if chain:
        chain_init(p)
        if stat:
            p("s_memrealtime s[30:31]")
        for w in range(3):
            p(f"s_cmp_eq_u32 s{sWV}, {w}")
            p(f"s_cbranch_scc1 c{w}_entry")
        p("s_branch c3_entry")
        for w in range(4):
            chain_loop(p, w, f"c{w}", done="CDONE", opt=copt)
        p.label("CDONE")
        if stat:
            p("s_memrealtime s[28:29]")
            p("s_waitcnt lgkmcnt(0)")
            p("v_mov_b32 v1, 0")
            for k, sr in enumerate([60, 61, 62, 63, 94, 30, 28, sBUD, 93]):
                p(f"v_writelane_b32 v1, s{sr}, {k}")
            p(f"s_lshl_b32 s{sT0}, s{sX}, 5")
            p(f"s_add_u32 s{sT0}, s{sT0}, s{sR}")
            p(f"s_lshl_b32 s{sT0}, s{sT0}, 2")
            p(f"s_add_u32 s{sT0}, s{sT0}, s{sWV}")
            p(f"s_lshl_b32 s{sT0}, s{sT0}, 6")
            p(f"s_add_u32 s{sT0}, s{sT0}, {STAT + 0x200000:#x}")
            p("v_mbcnt_lo_u32_b32 v2, -1, 0")
            p("v_lshlrev_b32 v2, 2, v2")
            p("s_mov_b64 exec, 0xffff")
            p(f"buffer_store_dword v1, v2, {WS}, s{sT0} offen")
    p("s_endpgm")
    p.label("WORKER")
    p(f"s_sub_u32 s{sX}, s{sX}, 2")
    worker(p, "WDONE", sentinels=chain, stop_after=stop_after, stat=task_stat if stat else None)
    p.label("WDONE")
    if stat:
        p(f"s_mov_b32 s{sRnd}, 8")
        task_stat(p)
        p("s_mov_b32 s96, s94")
        p(f"s_add_u32 s98, s98, 4")
        p(f"v_mov_b32 v{vt0}, s96")
        p("s_mov_b64 exec, 1")
        p(f"buffer_store_dword v{vt0}, off, {WS}, s98")
    p.label("EXIT")
    p("s_endpgm")
    return wrap([(NAME + "_kernel", p, 512, 256)], [(NAME + "_kernel", 256, 256, 163840)]), p


if __name__ == "__main__":
    t, p = gen(chain=False, stat=True)
    open("k_w.s", "w").write(t)
    t, p = gen(chain=True, stat=True)
    open("k_f.s", "w").write(t)
    t, p = gen(chain=True, stat=False)
    open("k_full.s", "w").write(t)
    print(p.count(), len(t))
```

```python
from common import *

XN = 0x0000000
KF = 0x0400000
VF = 0x1400000
KM = 0x2400000
VM = 0x2800000
OF = 0x2C00000
HF = 0x3C00000
YF = 0x4A00000
RING = 0x5000000
STAT = 0x5400000
XS = 0x80000
SLOT = 0x20000
R_MO, R_MX, R_O, R_S = 0, 0x4000, 0x8000, 0x10000
FLG = 0x5100000
FL2 = 0x5200000
OOB = 0x80000000

D_RANK = 0
D_CBAR = 9
D_XN = 16
D_KV = 24
D_HF = 32
D_Y = 40
D_OF = 48

sWS, sDBG, sW = 4, 8, 12
pX, pMEM, pWQ, pWK, pWV, pWO, pW1, pW2, pOUT, pDBG, pWSP = 16, 18, 20, 22, 24, 26, 32, 34, 36, 38, 40
sX, sR, sWV = 42, 43, 44
sS, sCUR, sNXT, sPRV, sCUR4 = 45, 46, 50, 48, 49
sKV0, sKV1, sKM, sKXM0, sBUD = 51, 52, 53, 54, 55
sT0, sT1, sT2, sT3 = 56, 57, 58, 59
sCNT = 60
sTS = 64
sKMP, sFO, sFM, sFOr, sFMr, sS1 = 3, 88, 89, 90, 91, 92
sKVC, sKVB = 47, 24
sMK = 16

L_ST, L_KX, L_X, L_R, L_WO = 0, 16384, 24576, 27648, 32768

(vMOr, vMXr, vOr, vOw, vSw, vSr, vMw, vKM, vVM, vVx, vKxg, vRst, vSt, vXw, vXq, vKxl, vRw, vRr, vWo,
 vIdx) = range(1, 21)
vFr = 0
vT0, vT1 = 22, 23
vID = 24
vONE = 26
vONEM = 30
vSENT = 32
vVX = 36
vDq, vDk, vDv = 40, 44, 48
vF = 52
vMO, vMX, vACC = 52, 68, 84
vFREE = 116
vWV = 128

CEXP = 0.08838834764831845 * 1.4426950408889634


def fhex(x):
    import struct
    return "0x%08x" % struct.unpack("<I", struct.pack("<f", x))[0]


def chain_init(p, kvwait=True):
    L, G, C, t0, t1, t2, t3 = 52, 53, 54, 55, 56, 57, 58
    p(f"v_and_b32 v{L}, 63, v0")
    p(f"v_lshrrev_b32 v{G}, 4, v{L}")
    p(f"v_and_b32 v{C}, 15, v{L}")
    sH, sJ, sB = sT0, sT1, sT2
    p(f"s_lshr_b32 s{sH}, s{sR}, 1")
    p(f"s_lshl_b32 s{sT3}, s{sX}, 4")
    p(f"s_add_u32 s{sH}, s{sH}, s{sT3}")
    p(f"s_and_b32 s{sJ}, s{sR}, 1")
    vWg, vWog, vTr0, vTr1 = 60, 61, 62, 63
    vWoT0, vWoT1 = 64, 65
    p(f"v_lshrrev_b32 v{t0}, 5, v{L}")
    p(f"s_and_b32 s{sB}, s{sWV}, 1")
    p(f"s_lshl_b32 s{sB}, s{sB}, 1")
    p(f"v_add_u32 v{t0}, s{sB}, v{t0}")
    p(f"v_lshlrev_b32 v{t0}, 1, v{t0}")
    p(f"v_and_b32 v{t1}, 7, v{L}")
    p(f"v_xor_b32 v{t0}, v{t0}, v{t1}")
    p(f"v_lshlrev_b32 v{t0}, 4, v{t0}")
    p(f"v_lshrrev_b32 v{t1}, 3, v{L}")
    p(f"v_lshl_add_u32 v{vWg}, v{t1}, 13, v{t0}")
    p(f"s_lshl_b32 s{sB}, s{sWV}, 16")
    p(f"s_lshl_b32 s{sT3}, s{sH}, 8")
    p(f"s_add_u32 s{sB}, s{sB}, s{sT3}")
    p(f"s_lshl_b32 s{sT3}, s{sJ}, 7")
    p(f"s_add_u32 s{sB}, s{sB}, s{sT3}")
    p(f"v_add_u32 v{vWg}, s{sB}, v{vWg}")
    sM0, sSO = 64, 65
    p(f"s_lshl_b32 s{sM0}, s{sWV}, 10")
    p(f"s_add_u32 s{sM0}, s{sM0}, {L_WO}")

    def dma_chunk(half, src_off, vaddr, step):
        for n in range(16):
            p(f"s_add_u32 m0, s{sM0}, {half * 65536 + n * 4096}")
            p(f"s_mov_b32 s{sSO}, {src_off + n * step:#x}")
            p(f"buffer_load_dwordx4 v{vaddr}, s[{sW}:{sW + 3}], s{sSO} offen lds")

    srd(p, sW, pWQ, 0x800000)
    dma_chunk(0, 0, vWg, 262144)
    dma_chunk(1, 512 * 8192, vWg, 262144)

    sRB = 66
    p(f"s_mul_i32 s{sRB}, s{sX}, {XS:#x}")
    p(f"s_add_u32 s{sRB}, s{sRB}, {RING:#x}")
    p(f"v_lshlrev_b32 v{t0}, 4, v{L}")
    p(f"s_lshl_b32 s{sB}, s{sWV}, 12")
    p(f"s_add_u32 s{sT3}, s{sB}, s{sRB}")
    p(f"v_add_u32 v{vMOr}, s{sT3}, v{t0}")
    p(f"s_xor_b32 s{sT3}, s{sT3}, {XS:#x}")
    p(f"s_add_u32 s{sT3}, s{sT3}, {R_MX:#x}")
    p(f"v_add_u32 v{vMXr}, s{sT3}, v{t0}")
    p(f"s_lshl_b32 s{sT3}, s{sWV}, 13")
    p(f"s_add_u32 s{sT3}, s{sT3}, s{sRB}")
    p(f"s_add_u32 s{sT3}, s{sT3}, {R_O:#x}")
    p(f"v_add_u32 v{vOr}, s{sT3}, v{t0}")
    p(f"v_mov_b32 v{vSt}, v{t0}")
    p(f"v_add_u32 v{vKxl}, {L_KX}, v{t0}")
    p(f"s_lshl_b32 s{sT3}, s{sWV}, 15")
    p(f"s_add_u32 s{sT3}, s{sT3}, {L_WO}")
    p(f"v_add_u32 v{vWo}, s{sT3}, v{t0}")
    p(f"v_cmp_gt_u32 s[70:71], 8, v{C}")
    p(f"v_cmp_gt_u32 s[72:73], 32, v{L}")
    p(f"v_mov_b32 v{t3}, {OOB:#x}")
    p(f"v_lshrrev_b32 v{t1}, 1, v{G}")
    p(f"v_lshl_add_u32 v{t1}, v{t1}, 3, v{C}")
    p(f"v_and_b32 v{t2}, 1, v{G}")
    p(f"v_lshlrev_b32 v{t2}, 3, v{t2}")
    p(f"v_lshl_add_u32 v{t1}, v{t1}, 4, v{t2}")
    p(f"s_lshl_b32 s{sB}, s{sR}, 10")
    p(f"s_lshl_b32 s{sT3}, s{sWV}, 8")
    p(f"s_add_u32 s{sB}, s{sB}, s{sT3}")
    p(f"s_add_u32 s{sB}, s{sB}, s{sRB}")
    p(f"s_add_u32 s{sB}, s{sB}, {R_O:#x}")
    p(f"v_add_u32 v{t1}, s{sB}, v{t1}")
    p(f"v_cndmask_b32 v{vOw}, v{t3}, v{t1}, s[70:71]")
    p(f"v_and_b32 v{t1}, 7, v{C}")
    p(f"v_lshl_add_u32 v{t1}, v{G}, 3, v{t1}")
    p(f"v_lshlrev_b32 v{t1}, 4, v{t1}")
    p(f"s_lshl_b32 s{sB}, s{sR}, 11")
    p(f"s_add_u32 s{sB}, s{sB}, s{sRB}")
    p(f"s_add_u32 s{sB}, s{sB}, {R_S:#x}")
    p(f"s_xor_b32 s{sT3}, s{sB}, 2048")
    p(f"v_add_u32 v{vSr}, s{sT3}, v{t1}")
    p(f"s_lshl_b32 s{sT3}, s{sWV}, 9")
    p(f"s_add_u32 s{sB}, s{sB}, s{sT3}")
    p(f"v_add_u32 v{t1}, s{sB}, v{t1}")
    p(f"v_cndmask_b32 v{vSw}, v{t3}, v{t1}, s[70:71]")
    p(f"s_lshl_b32 s{sB}, s{sR}, 9")
    p(f"s_lshr_b32 s{sT3}, s{sWV}, 1")
    p(f"s_lshl_b32 s68, s{sT3}, 8")
    p(f"s_add_u32 s{sB}, s{sB}, s68")
    p(f"s_xor_b32 s{sT3}, s{sT3}, s{sWV}")
    p(f"s_and_b32 s{sT3}, s{sT3}, 1")
    p(f"s_mul_i32 s{sT3}, s{sT3}, {R_MX:#x}")
    p(f"s_add_u32 s{sB}, s{sB}, s{sT3}")
    p(f"s_add_u32 s{sB}, s{sB}, s{sRB}")
    p(f"v_lshlrev_b32 v{t1}, 2, v{L}")
    p(f"v_add_u32 v{vMw}, s{sB}, v{t1}")
    p(f"v_and_b32 v{vFr}, 124, v{t1}")
    p(f"s_lshl_b32 s{sB}, s{sX}, 12")
    p(f"s_add_u32 s{sB}, s{sB}, {FLG:#x}")
    p(f"s_mul_i32 s{sT3}, s{sWV}, 0x180")
    p(f"s_add_u32 s{sFOr}, s{sB}, s{sT3}")
    p(f"s_add_u32 s{sFMr}, s{sB}, 0x800")
    p(f"s_lshl_b32 s{sT3}, s{sR}, 2")
    p(f"s_add_u32 s{sFM}, s{sFMr}, s{sT3}")
    p(f"s_lshr_b32 s{sT3}, s{sR}, 3")
    p(f"s_mul_i32 s{sT3}, s{sT3}, 0x180")
    p(f"s_add_u32 s{sB}, s{sB}, s{sT3}")
    p(f"s_and_b32 s{sT3}, s{sR}, 7")
    p(f"s_lshl_b32 s{sT3}, s{sT3}, 2")
    p(f"s_add_u32 s{sT3}, s{sT3}, s{sWV}")
    p(f"s_lshl_b32 s{sT3}, s{sT3}, 2")
    p(f"s_add_u32 s{sFO}, s{sB}, s{sT3}")
    p(f"v_lshlrev_b32 v{t1}, 7, v{G}")
    p(f"v_lshl_add_u32 v{t1}, v{C}, 4, v{t1}")
    p(f"s_lshl_b32 s{sB}, s{sH}, 11")
    p(f"s_lshl_b32 s{sT3}, s{sJ}, 10")
    p(f"s_add_u32 s{sB}, s{sB}, s{sT3}")
    p(f"s_mov_b32 s67, s{sB}")
    p(f"s_and_b32 s{sT3}, s{sWV}, 1")
    p(f"s_lshl_b32 s{sT3}, s{sT3}, 9")
    p(f"s_add_u32 s{sB}, s{sB}, s{sT3}")
    p(f"s_add_u32 s{sB}, s{sB}, {KM:#x}")
    p(f"v_add_u32 v{t1}, s{sB}, v{t1}")
    p(f"v_cndmask_b32 v{vKM}, v{t3}, v{t1}, s[70:71]")
    p(f"v_and_b32 v{t1}, 1, v{G}")
    p(f"v_lshlrev_b32 v{t1}, 3, v{t1}")
    p(f"v_lshrrev_b32 v{t2}, 1, v{G}")
    p(f"v_lshl_add_u32 v{t1}, v{t2}, 2, v{t1}")
    p(f"v_lshl_add_u32 v{t1}, v{C}, 4, v{t1}")
    p(f"s_lshl_b32 s{sT3}, s{sWV}, 8")
    p(f"s_add_u32 s{sB}, s67, s{sT3}")
    p(f"s_add_u32 s{sB}, s{sB}, {VM:#x}")
    p(f"v_add_u32 v{vVM}, s{sB}, v{t1}")
    p(f"v_lshlrev_b32 v{t1}, 9, v{G}")
    p(f"v_lshl_add_u32 v{t1}, v{C}, 4, v{t1}")
    p(f"s_lshl_b32 s67, s{sH}, 13")
    p(f"s_lshl_b32 s{sT3}, s{sJ}, 12")
    p(f"s_add_u32 s67, s67, s{sT3}")
    p(f"s_lshr_b32 s{sT3}, s{sWV}, 1")
    p(f"s_lshl_b32 s{sT3}, s{sT3}, 11")
    p(f"s_add_u32 s{sB}, s67, s{sT3}")
    p(f"s_and_b32 s{sT3}, s{sWV}, 1")
    p(f"s_lshl_b32 s{sT3}, s{sT3}, 8")
    p(f"s_add_u32 s{sB}, s{sB}, s{sT3}")
    p(f"s_add_u32 s{sB}, s{sB}, {VF:#x}")
    p(f"v_add_u32 v{vVx}, s{sB}, v{t1}")
    p(f"v_lshrrev_b32 v{t1}, 3, v{C}")
    p(f"v_lshlrev_b32 v{t1}, 4, v{t1}")
    p(f"v_and_b32 v{t2}, 7, v{C}")
    p(f"v_add_u32 v{t1}, v{t1}, v{t2}")
    p(f"v_lshlrev_b32 v{t2}, 9, v{G}")
    p(f"v_lshl_add_u32 v{t1}, v{t1}, 4, v{t2}")
    p(f"s_and_b32 s{sT3}, s{sWV}, 1")
    p(f"s_lshl_b32 s{sT3}, s{sT3}, 11")
    p(f"s_add_u32 s{sB}, s67, s{sT3}")
    p(f"s_lshr_b32 s{sT3}, s{sWV}, 1")
    p(f"s_lshl_b32 s{sT3}, s{sT3}, 7")
    p(f"s_add_u32 s{sB}, s{sB}, s{sT3}")
    p(f"s_add_u32 s{sB}, s{sB}, {KF:#x}")
    p(f"v_add_u32 v{vKxg}, s{sB}, v{t1}")
    p(f"v_mul_u32_u24 v{t1}, 40, v{C}")
    p(f"v_lshl_add_u32 v{t1}, v{G}, 3, v{t1}")
    p(f"s_mul_i32 s{sB}, s{sWV}, 640")
    p(f"s_add_u32 s{sB}, s{sB}, {L_X}")
    p(f"v_add_u32 v{vXw}, s{sB}, v{t1}")
    p(f"v_lshrrev_b32 v{t1}, 1, v{G}")
    p(f"v_lshlrev_b32 v{t1}, 4, v{t1}")
    p(f"v_and_b32 v{t2}, 1, v{G}")
    p(f"v_lshl_add_u32 v{t1}, v{t2}, 2, v{t1}")
    p(f"v_mov_b32 v59, v{t1}")
    p(f"v_lshrrev_b32 v{t2}, 2, v{C}")
    p(f"v_add_u32 v{t1}, v{t1}, v{t2}")
    p(f"v_mul_u32_u24 v{t1}, 40, v{t1}")
    p(f"v_and_b32 v{t2}, 1, v{C}")
    p(f"v_lshl_add_u32 v{t1}, v{t2}, 3, v{t1}")
    p(f"v_add_u32 v{vXq}, {L_X}, v{t1}")
    p(f"v_lshrrev_b32 v{t1}, 1, v{G}")
    p(f"v_lshl_add_u32 v{t1}, v{t1}, 4, v{C}")
    p(f"v_mul_u32_u24 v{t1}, 144, v{t1}")
    p(f"v_and_b32 v{t2}, 1, v{G}")
    p(f"v_lshl_add_u32 v{t1}, v{t2}, 4, v{t1}")
    p(f"s_lshl_b32 s{sB}, s{sWV}, 5")
    p(f"s_add_u32 s{sB}, s{sB}, {L_R}")
    p(f"v_add_u32 v{vRw}, s{sB}, v{t1}")
    p(f"v_and_b32 v{t1}, 3, v{L}")
    p(f"v_mul_u32_u24 v{t1}, 288, v{t1}")
    p(f"v_and_b32 v{t2}, 28, v{L}")
    p(f"v_add_u32 v{t1}, v{t1}, v{t2}")
    p(f"v_lshrrev_b32 v{t2}, 5, v{L}")
    p(f"v_mul_u32_u24 v{t2}, 1152, v{t2}")
    p(f"v_add_u32 v{t1}, v{t1}, v{t2}")
    p(f"s_lshr_b32 s{sB}, s{sWV}, 1")
    p(f"s_mul_i32 s{sB}, s{sB}, 2304")
    p(f"s_add_u32 s{sB}, s{sB}, {L_R}")
    p(f"v_add_u32 v{vRr}, s{sB}, v{t1}")
    p(f"v_mov_b32 v{t1}, 0x4444")
    p(f"v_mov_b32 v{t2}, 0xeeee")
    p(f"v_cndmask_b32 v{vIdx}, v{t2}, v{t1}, s[70:71]")
    for k in range(4):
        p(f"v_mov_b32 v{vONE + k}, 0x3f803f80")
        p(f"v_mov_b32 v{vSENT + k}, -1")
    p(f"v_cndmask_b32 v{vONEM}, 0, v{vONE}, s[72:73]")
    p(f"v_cndmask_b32 v{vONEM + 1}, 0, v{vONE}, s[72:73]")
    p(f"v_mov_b32 v{t1}, 0x3f80")
    p(f"v_mov_b32 v{t2}, 0x3f800000")
    p(f"v_and_b32 v{t0}, 1, v{L}")
    p(f"v_cmp_eq_u32 vcc, 1, v{t0}")
    p(f"v_cndmask_b32 v{t1}, v{t1}, v{t2}, vcc")
    p(f"v_and_b32 v{t0}, 2, v{L}")
    p(f"v_cmp_eq_u32 vcc, 0, v{t0}")
    p(f"v_cndmask_b32 v{vID}, 0, v{t1}, vcc")
    p(f"v_cndmask_b32 v{vID + 1}, v{t1}, 0, vcc")
    p(f"v_lshlrev_b32 v{t0}, 4, v{L}")
    p(f"s_mul_i32 s{sB}, s{sWV}, {SLOT:#x}")
    p(f"s_add_u32 s{sB}, s{sB}, s{sRB}")
    p(f"s_lshl_b32 s{sT3}, s{sR}, 11")
    p(f"s_add_u32 s67, s{sB}, s{sT3}")
    p(f"s_add_u32 s67, s67, {R_S:#x}")
    p(f"buffer_store_dwordx4 v[{vSENT}:{vSENT + 3}], v{t0}, s[{sWS}:{sWS + 3}], s67 offen sc1")
    p(f"buffer_store_dwordx4 v[{vSENT}:{vSENT + 3}], v{t0}, s[{sWS}:{sWS + 3}], s67 offen offset:1024 sc1")
    p(f"s_lshl_b32 s{sT3}, s{sR}, 10")
    p(f"s_add_u32 s68, s{sB}, s{sT3}")
    p(f"s_add_u32 s68, s68, {R_O:#x}")
    p(f"buffer_store_dwordx4 v[{vSENT}:{vSENT + 3}], v{t0}, s[{sWS}:{sWS + 3}], s68 offen sc1")
    p(f"v_cndmask_b32 v{t1}, v{t3}, v{t0}, s[72:73]")
    p(f"s_lshl_b32 s{sT3}, s{sR}, 9")
    p(f"s_add_u32 s69, s{sB}, s{sT3}")
    p(f"buffer_store_dwordx4 v[{vSENT}:{vSENT + 3}], v{t1}, s[{sWS}:{sWS + 3}], s69 offen sc1")
    p(f"s_add_u32 s67, s69, {R_MX:#x}")
    p(f"buffer_store_dwordx4 v[{vSENT}:{vSENT + 3}], v{t1}, s[{sWS}:{sWS + 3}], s67 offen sc1")
    p(f"v_mov_b32 v{t1}, 0")
    p("s_mov_b64 exec, 1")
    p(f"buffer_store_dword v{t1}, off, s[{sWS}:{sWS + 3}], s{sFO} sc1")
    p(f"buffer_store_dword v{t1}, off, s[{sWS}:{sWS + 3}], s{sFM} sc1")
    p("s_mov_b64 exec, -1")
    p(f"s_lshl_b32 s67, s{sR}, 11")
    p(f"s_add_u32 s67, s67, {R_S:#x}")
    p(f"s_lshl_b32 s68, s{sR}, 10")
    p(f"s_add_u32 s68, s68, {R_O:#x}")
    p(f"s_cmp_eq_u32 s{sWV}, 1")
    p(f"s_cselect_b32 s67, s68, s67")
    p(f"s_lshl_b32 s68, s{sR}, 9")
    p(f"s_cmp_eq_u32 s{sWV}, 2")
    p(f"s_cselect_b32 s67, s68, s67")
    p(f"s_add_u32 s68, s68, {R_MX:#x}")
    p(f"s_cmp_eq_u32 s{sWV}, 3")
    p(f"s_cselect_b32 s67, s68, s67")
    p(f"s_add_u32 s67, s67, s{sRB}")
    p(f"s_cmp_ge_u32 s{sWV}, 2")
    p(f"s_cselect_b64 s[74:75], s[72:73], -1")
    p(f"v_add_u32 v{t1}, s67, v{t0}")
    p(f"v_cndmask_b32 v{vRst}, v{t3}, v{t1}, s[74:75]")
    p(f"v_lshrrev_b32 v{t0}, 3, v{C}")
    p(f"v_lshl_add_u32 v{t1}, v{t0}, 3, v59")
    p(f"v_bfe_u32 v{t2}, v{C}, 2, 1")
    p(f"v_add_u32 v{t1}, v{t1}, v{t2}")
    p(f"v_and_b32 v{t2}, 1, v{G}")
    p(f"v_lshl_add_u32 v{t2}, v{t0}, 1, v{t2}")
    p(f"v_lshlrev_b32 v{t2}, 1, v{t2}")
    p(f"v_bfe_u32 v{t0}, v{C}, 1, 1")
    p(f"s_lshl_b32 s{sB}, s{sWV}, 1")
    p(f"v_add_u32 v{t0}, s{sB}, v{t0}")
    p(f"v_xor_b32 v{t0}, v{t0}, v{t2}")
    p(f"v_lshlrev_b32 v{t0}, 4, v{t0}")
    p(f"v_lshl_add_u32 v{t1}, v{t1}, 7, v{t0}")
    p(f"v_and_b32 v{t0}, 1, v{C}")
    p(f"v_lshl_add_u32 v{t1}, v{t0}, 3, v{t1}")
    p(f"v_add_u32 v{vTr0}, {L_WO}, v{t1}")
    p(f"v_add_u32 v{vTr1}, {L_WO + 65536}, v{t1}")
    p(f"v_lshrrev_b32 v{t0}, 2, v{L}")
    p(f"v_and_b32 v{t1}, 9, v{t0}")
    p(f"v_bfe_u32 v{t2}, v{t0}, 1, 1")
    p(f"v_lshl_add_u32 v{t1}, v{t2}, 2, v{t1}")
    p(f"v_bfe_u32 v{t2}, v{t0}, 2, 1")
    p(f"v_lshl_add_u32 v{t1}, v{t2}, 1, v{t1}")
    p(f"v_lshrrev_b32 v{t0}, 5, v{L}")
    p(f"v_lshlrev_b32 v{t0}, 1, v{t0}")
    p(f"v_and_b32 v{t2}, 3, v{L}")
    p(f"v_xor_b32 v{t0}, v{t0}, v{t2}")
    p(f"v_lshlrev_b32 v{t0}, 4, v{t0}")
    p(f"v_lshl_add_u32 v{t1}, v{t1}, 11, v{t0}")
    p(f"s_lshl_b32 s{sB}, s{sX}, 22")
    p(f"s_lshl_b32 s{sT3}, s{sWV}, 15")
    p(f"s_add_u32 s{sB}, s{sB}, s{sT3}")
    p(f"s_lshl_b32 s{sT3}, s{sR}, 6")
    p(f"s_add_u32 s{sB}, s{sB}, s{sT3}")
    p(f"v_add_u32 v{vWog}, s{sB}, v{t1}")
    p(f"v_lshrrev_b32 v{t0}, 3, v{C}")
    p(f"v_and_b32 v{t1}, 1, v{G}")
    p(f"v_lshlrev_b32 v{t1}, 1, v{t1}")
    p(f"v_lshl_add_u32 v{t1}, v{t0}, 3, v{t1}")
    p(f"v_bfe_u32 v{t2}, v{C}, 2, 1")
    p(f"v_add_u32 v{t1}, v{t1}, v{t2}")
    p(f"v_lshlrev_b32 v{t1}, 6, v{t1}")
    p(f"v_lshl_add_u32 v{t1}, v{t0}, 5, v{t1}")
    p(f"v_and_b32 v{t2}, 3, v{C}")
    p(f"v_lshl_add_u32 v{t1}, v{t2}, 3, v{t1}")
    p(f"v_lshrrev_b32 v{t0}, 1, v{G}")
    p(f"v_lshl_add_u32 v{t1}, v{t0}, 10, v{t1}")
    p(f"s_lshl_b32 s{sT3}, s{sWV}, 15")
    p(f"s_add_u32 s{sT3}, s{sT3}, {L_WO}")
    p(f"v_add_u32 v{vWoT0}, s{sT3}, v{t1}")
    p(f"v_xor_b32 v{vWoT1}, 32, v{vWoT0}")
    vM0a = 66
    p(f"v_and_b32 v{t0}, 7, v{C}")
    p(f"v_lshlrev_b32 v{t0}, 11, v{t0}")
    p(f"v_lshl_add_u32 v{t0}, v{G}, 5, v{t0}")
    p(f"v_lshrrev_b32 v{t1}, 3, v{C}")
    p(f"v_lshl_add_u32 v{t0}, v{t1}, 4, v{t0}")
    p(f"s_lshl_b32 s{sT3}, s{sWV}, 9")
    p(f"v_add_u32 v{vM0a}, s{sT3}, v{t0}")

    def read_chunk(half, dst, isa):
        va = vTr0 if half == 0 else vTr1
        for kk in range(8):
            ks = half * 8 + kk
            for q, off in enumerate((0, 256, 4096, 4352)):
                r = dst + 8 * ks + 2 * q
                reg = a(r, 2) if isa else v(r, 2)
                p(f"ds_read_b64_tr_b16 {reg}, v{va} offset:{kk * 8192 + off}")
        p("s_waitcnt lgkmcnt(0)")
        p("s_barrier")

    p("s_waitcnt vmcnt(23)")
    p("s_barrier")
    read_chunk(0, 0, True)
    srd(p, sW, pWK, 0x800000)
    dma_chunk(0, 0, vWg, 262144)
    p("s_waitcnt vmcnt(16)")
    p("s_barrier")
    lab = p.uid("nobar")
    p(f"s_cmp_lg_u32 s{sWV}, 0")
    p(f"s_cbranch_scc1 {lab}")
    p("s_mov_b64 exec, 1")
    p(f"v_mov_b32 v{t0}, 1")
    p(f"buffer_atomic_add v{t0}, off, s[{sDBG}:{sDBG + 3}], 0 offset:{D_CBAR * 4} sc1")
    p("s_mov_b64 exec, -1")
    p("s_waitcnt vmcnt(0)")
    p.label(lab)
    read_chunk(1, 0, True)
    dma_chunk(1, 512 * 8192, vWg, 262144)
    p("s_waitcnt vmcnt(16)")
    p("s_barrier")
    read_chunk(0, 128, True)
    srd(p, sW, pWV, 0x800000)
    dma_chunk(0, 0, vWg, 262144)
    p("s_waitcnt vmcnt(16)")
    p("s_barrier")
    read_chunk(1, 128, True)
    dma_chunk(1, 512 * 8192, vWg, 262144)
    p("s_waitcnt vmcnt(16)")
    p("s_barrier")
    read_chunk(0, vWV, False)
    srd(p, sW, pWO, 0x800000)
    dma_chunk(0, 0, vWog, 64 * 2048)
    p("s_waitcnt vmcnt(16)")
    p("s_barrier")
    read_chunk(1, vWV, False)
    dma_chunk(1, 1024 * 2048, vWog, 64 * 2048)
    p("s_waitcnt vmcnt(0)")
    p("s_barrier")
    for kk in range(8):
        b = 68 + 16 * (kk % 2)
        for t in range(2):
            va = vWoT0 if t == 0 else vWoT1
            for q, off in enumerate((0, 256, 2048, 2304)):
                p(f"ds_read_b64_tr_b16 {v(b + 8 * t + 2 * q, 2)}, v{va} offset:{kk * 4096 + off}")
        p("s_waitcnt lgkmcnt(0)")
        for q in range(4):
            p(f"ds_write_b128 v{vWo}, {v(b + 4 * q, 4)} offset:{kk * 4096 + q * 1024}")
    srd(p, sW, pMEM, 16384)
    p(f"v_mov_b32 v{vT0}, v{vM0a}")
    for kk in range(4):
        p(f"buffer_load_dwordx4 {v(vF + 4 * kk, 4)}, v{vT0}, s[{sW}:{sW + 3}], 0 offen offset:{kk * 128}")
    lab = p.uid("cbar")
    p(f"s_mov_b32 s{sBUD}, 0x40000")
    p.label(lab)
    p(f"buffer_load_dword v{vT1}, off, s[{sDBG}:{sDBG + 3}], 0 offset:{D_CBAR * 4} sc1")
    p("s_waitcnt vmcnt(0)")
    p(f"v_readfirstlane_b32 s{sT0}, v{vT1}")
    p(f"s_cmp_ge_u32 s{sT0}, 64")
    p(f"s_cbranch_scc1 {lab}_ok")
    p(f"s_sub_u32 s{sBUD}, s{sBUD}, 1")
    p(f"s_cmp_lg_u32 s{sBUD}, 0")
    p(f"s_cbranch_scc1 {lab}")
    p.label(lab + "_ok")
    p(f"s_lshr_b32 s{sKVB}, s{sR}, 1")
    p(f"s_lshl_b32 s{sT3}, s{sX}, 4")
    p(f"s_add_u32 s{sKVB}, s{sKVB}, s{sT3}")
    p(f"s_lshl_b32 s{sKVB}, s{sKVB}, 6")
    p(f"s_add_u32 s{sKVB}, s{sKVB}, {FL2 + 40:#x}")
    p(f"s_mov_b32 s{sKVC}, s{sKVB}")
    if kvwait:
        for nm, tgt, msk, ld in (
                ("xn0", 32, 28, f"buffer_load_dword v{vT1}, v{vT0}, s[{sDBG}:{sDBG + 3}], 0 offen offset:{D_XN * 4} sc1"),
                ("kv0", 1, 4, f"buffer_load_dword v{vT1}, v{vT0}, s[{sWS}:{sWS + 3}], s{sKVC} offen sc1")):
            lab = p.uid(nm)
            p(f"v_and_b32 v{vT0}, {msk}, v{vFr}")
            p.label(lab)
            p(ld)
            p("s_waitcnt vmcnt(0)")
            p(f"v_cmp_gt_u32 vcc, {tgt}, v{vT1}")
            p(f"s_cbranch_vccz {lab}_ok")
            p(f"s_sub_u32 s{sBUD}, s{sBUD}, 1")
            p(f"s_cmp_lg_u32 s{sBUD}, 0")
            p(f"s_cbranch_scc1 {lab}")
            p.label(lab + "_ok")
    p(f"s_mov_b32 s{sBUD}, 0x40000")
    p(f"s_mov_b32 s{sS}, 0")
    p(f"s_mov_b32 s{sS1}, 1")
    p(f"s_mov_b32 s{sCUR}, 0")
    p(f"s_mov_b32 s{sCUR4}, 4096")
    p(f"s_mov_b32 s{sNXT}, {SLOT:#x}")
    p("s_mov_b32 s93, 0")
    p(f"s_mov_b32 s{sPRV}, {3 * SLOT:#x}")
    p(f"s_mov_b32 s{sKV0}, 0")
    p(f"s_mov_b32 s{sKV1}, 0x40000")
    p(f"s_mov_b32 s{sKM}, 0")
    p(f"s_mov_b32 s{sKMP}, 0x4000000")
    for k in range(4):
        p(f"s_mov_b32 s{sCNT + k}, 0")
    p(f"s_lshl_b32 s{sKXM0}, s{sWV}, 10")
    p(f"s_add_u32 s{sKXM0}, s{sKXM0}, {L_KX}")
    p(f"s_mov_b32 m0, s{sKXM0}")
    p(f"s_xor_b32 s{sKXM0}, s{sKXM0}, 4096")
    p(f"buffer_load_dwordx4 v{vKxg}, s[{sWS}:{sWS + 3}], s{sKV0} offen sc1 lds")
    for k in range(12):
        p(f"v_mov_b32 v{vDq + k}, 0")
    p("s_waitcnt vmcnt(0)")


def retry_head(p, site, cont):
    p(f"s_add_u32 s{sCNT + site}, s{sCNT + site}, 1")
    p(f"s_cmp_eq_u32 s{sBUD}, 0")
    p(f"s_cbranch_scc1 {cont}")
    p(f"s_sub_u32 s{sBUD}, s{sBUD}, 1")


def check_sent(p, regs, tmp, target):
    regs = list(regs)
    first = regs[:3]
    rest = regs[3:]
    if len(first) == 3:
        p(f"v_max3_u32 v{tmp}, v{first[0]}, v{first[1]}, v{first[2]}")
    else:
        p(f"v_max_u32 v{tmp}, v{first[0]}, v{first[1]}")
    while rest:
        if len(rest) >= 2:
            p(f"v_max3_u32 v{tmp}, v{tmp}, v{rest[0]}, v{rest[1]}")
            rest = rest[2:]
        else:
            p(f"v_max_u32 v{tmp}, v{tmp}, v{rest[0]}")
            rest = []
    p(f"v_cmp_eq_u32 vcc, -1, v{tmp}")
    p(f"s_cbranch_vccnz {target}")


def masked_reload(q, items):
    for k, (regs, _) in enumerate(items):
        if len(regs) == 1:
            q(f"v_cmp_eq_u32 s[{sMK + 2 * k}:{sMK + 2 * k + 1}], -1, v{regs[0]}")
        else:
            q(f"v_max_u32 v{vT0}, v{regs[0]}, v{regs[1]}")
            q(f"v_cmp_eq_u32 s[{sMK + 2 * k}:{sMK + 2 * k + 1}], -1, v{vT0}")
    for k, (_, ld) in enumerate(items):
        q(f"s_mov_b64 exec, s[{sMK + 2 * k}:{sMK + 2 * k + 1}]")
        q(ld)
    q("s_mov_b64 exec, -1")


def chain_loop(p, w, tag, sc_all=False, stamp=None, done="DONE", opt=None):
    opt = opt or {}
    WS = f"s[{sWS}:{sWS + 3}]"
    loc = " sc1" if sc_all else ""
    tail = Prog()

    def st(k):
        if stamp is not None and (k in stamp):
            p(f"s_memtime s[{sTS + 2 * k}:{sTS + 2 * k + 1}]")

    def F(u):
        return v(vF + 4 * u, 4)

    def ks_of(u):
        return (4 * w + u) % 16

    def smq(u):
        p(f"v_smfmac_f32_16x16x64_bf16 {v(vDq, 4)}, {F(u)}, {a(8 * ks_of(u), 8)}, v{vIdx}")

    def smk(u):
        p(f"v_smfmac_f32_16x16x64_bf16 {v(vDk, 4)}, {F(u)}, {a(128 + 8 * ks_of(u), 8)}, v{vIdx}")

    def smv(u, reg=None):
        r = F(u) if reg is None else v(reg, 4)
        p(f"v_smfmac_f32_16x16x64_bf16 {v(vDv, 4)}, {r}, {v(vWV + 8 * ks_of(u), 8)}, v{vIdx}")

    def stw(kk):
        p(f"ds_write_b128 v{vSt}, {F(kk)} offset:{L_ST + (4 * w + kk) * 1024}")

    def mo_ld(kk):
        return f"buffer_load_dwordx4 {v(vMO + 4 * kk, 4)}, v{vMOr}, {WS}, s{sCUR} offen offset:{kk * 1024} sc1"

    def mx_ld(kk):
        return f"buffer_load_dwordx4 {v(vMX + 4 * kk, 4)}, v{vMXr}, {WS}, s{sCUR} offen offset:{kk * 1024} sc1"

    def flag_store(sa, val):
        p(f"v_mov_b32 v{vT0}, {val}")
        p("s_mov_b64 exec, 1")
        p(f"buffer_store_dword v{vT0}, off, {WS}, s{sa}{loc}")
        p("s_mov_b64 exec, -1")

    def probe(sa, val, site, nm):
        p.label(f"{tag}_{nm}_probe")
        p(f"buffer_load_dword v{vT1}, v{vFr}, {WS}, s{sa} offen sc1")
        p("s_waitcnt vmcnt(0)")
        p(f"v_cmp_gt_u32 vcc, {val}, v{vT1}")
        p(f"s_cbranch_vccnz {tag}_{nm}_again")
        p.label(f"{tag}_{nm}_go")
        tail.label(f"{tag}_{nm}_again")
        tail(f"s_add_u32 s93, s93, 1")
        tail(f"s_cmp_eq_u32 s{sBUD}, 0")
        tail(f"s_cbranch_scc1 {tag}_{nm}_go")
        tail(f"s_sub_u32 s{sBUD}, s{sBUD}, 1")
        tail(f"s_branch {tag}_{nm}_probe")

    KMr = vFREE
    VMo = 21

    def slow_ops():
        p(f"s_mov_b32 m0, s{sKXM0}")
        p(f"s_xor_b32 s{sKXM0}, s{sKXM0}, 4096")
        p(f"buffer_load_dwordx4 v{vKxg}, {WS}, s{sKV1} offen sc1 lds")
        p(f"buffer_load_dwordx4 {v(vVX, 4)}, v{vVx}, {WS}, s{sKV0} offen sc1")

    p.label(f"{tag}_entry")
    if w == 3:
        p(f"v_mov_b32 v{vKM}, 1")
    for kk in range(4):
        stw(kk)
    slow_ops()
    p(f"s_branch {tag}_apost")

    p.label(f"{tag}_top")
    st(0)
    if w < 2:
        for hh in range(2):
            p(f"ds_read_b64_tr_b16 {v(KMr + 2 * hh, 2)}, v{vXq} offset:{w * 1280 + hh * 320 + 16}")
    for k in range(12):
        p(f"v_mov_b32 v{vDq + k}, 0")
    mmode = opt.get("m", "flag")
    if mmode == "flag":
        if w == 0:
            probe(sFMr, f"s{sS}", 0, "m")
        p("s_barrier")
        for kk in range(4):
            p(mo_ld(kk))
        for kk in range(4):
            p(mx_ld(kk))
    elif mmode == "flag2":
        if w == 0:
            p("s_waitcnt vmcnt(0)")
            for kk in range(4):
                p(mo_ld(kk))
            probe(sFMr, f"s{sS}", 0, "m")
        else:
            if w == 3:
                p("s_waitcnt vmcnt(0)")
            for kk in range(4):
                p(mo_ld(kk))
        p("s_barrier")
        for kk in range(4):
            p(mx_ld(kk))
    st(1)
    p("s_waitcnt vmcnt(4)")
    p.label(f"{tag}_mo_chk")
    check_sent(p, [vMO + 4 * k for k in range(4)], vT0, f"{tag}_mo_retry")
    p.label(f"{tag}_mo_ok")
    tail.label(f"{tag}_mo_retry")
    retry_head(tail, 0, f"{tag}_mo_ok")
    masked_reload(tail, [([vMO + 4 * k], mo_ld(k)) for k in range(4)])
    tail("s_waitcnt vmcnt(0)")
    tail(f"s_branch {tag}_mo_chk")
    for i in range(8):
        p(f"v_mfma_f32_4x4x4_16b_bf16 {v(vACC + 4 * i, 4)}, {v(vID, 2)}, {v(vMO + 2 * i, 2)}, 0")
    st(2)
    p("s_waitcnt vmcnt(0) lgkmcnt(0)")
    p.label(f"{tag}_mx_chk")
    check_sent(p, [vMX + 4 * k for k in range(4)], vT0, f"{tag}_mx_retry")
    p.label(f"{tag}_mx_ok")
    tail.label(f"{tag}_mx_retry")
    retry_head(tail, 1, f"{tag}_mx_ok")
    masked_reload(tail, [([vMX + 4 * k], mx_ld(k)) for k in range(4)])
    tail("s_waitcnt vmcnt(0)")
    tail(f"s_branch {tag}_mx_chk")
    st(3)

    def acc(i):
        p(f"v_mfma_f32_4x4x4_16b_bf16 {v(vACC + 4 * i, 4)}, {v(vID, 2)}, {v(vMX + 2 * i, 2)}, {v(vACC + 4 * i, 4)}")

    def cv(i):
        p(f"v_cvt_pk_bf16_f32 v{vF + 2 * i}, v{vACC + 4 * i}, v{vACC + 4 * i + 1}")
        p(f"v_cvt_pk_bf16_f32 v{vF + 2 * i + 1}, v{vACC + 4 * i + 2}, v{vACC + 4 * i + 3}")

    acc(0); acc(1); acc(2)
    slow_ops()
    acc(3); acc(4); acc(5)
    cv(0)
    acc(6)
    cv(1)
    stw(0)
    acc(7)
    cv(2); cv(3); stw(1)
    cv(4); cv(5); stw(2)
    cv(6); cv(7); stw(3)
    p.label(f"{tag}_apost")
    smq(0); smk(0); smq(1); smk(1)
    p("s_waitcnt lgkmcnt(0)")
    p("s_barrier")
    st(4)
    for u in range(4, 16):
        p(f"ds_read_b128 {F(u)}, v{vSt} offset:{L_ST + ks_of(u) * 1024}")
        if u == 7:
            smq(2)
        if u == 10:
            smk(2)
        if u == 13:
            smq(3)
    smk(3)
    extra = []
    rsc = " sc1" if (w == 3 or sc_all) else ""
    if w < 2:
        extra.append(f"buffer_store_dwordx4 {v(KMr, 4)}, v{vKM}, {WS}, s{sKMP} offen sc1")
    extra.append(f"buffer_store_dword v{VMo}, v{vVM}, {WS}, s{sKMP} offen sc1")
    extra.append(f"buffer_store_dwordx4 {v(vSENT, 4)}, v{vRst}, {WS}, s{sPRV} offen{rsc}")
    if w == 0:
        extra.append(f"buffer_store_dwordx4 {v(vSENT, 4)}, v{vRst}, {WS}, s{sPRV} offen offset:1024{rsc}")
    kvchk = w == 3 and opt.get("kv", True)
    vKVF = vKM
    kv_ld = ["s_mov_b64 exec, 3", f"buffer_load_dword v{vKVF}, v{vFr}, {WS}, s{sKVC} offen sc1", "s_mov_b64 exec, -1"]
    if kvchk:
        extra.append(kv_ld)
    for u in range(4, 16):
        p(f"s_waitcnt lgkmcnt({15 - u})")
        smq(u)
        if extra:
            x = extra.pop(0)
            for y in (x if isinstance(x, list) else [x]):
                p(y)
        smk(u)
    assert not extra
    st(5)
    KX, Q2, K2, SO, SP = vF, vFREE, vF + 16, vF + 24, vF

    def qk_to_lds():
        for r in range(4):
            p(f"v_permlane32_swap_b32 v{vDq + r}, v{vDk + r}")
        for r in range(4):
            p(f"v_add_f32 v{vDq + r}, v{vDq + r}, v{vDk + r}")
        p(f"v_cvt_pk_bf16_f32 v{vDq}, v{vDq}, v{vDq + 1}")
        p(f"v_cvt_pk_bf16_f32 v{vDq + 1}, v{vDq + 2}, v{vDq + 3}")
        p(f"ds_write_b64 v{vXw}, {v(vDq, 2)}")

    p(f"s_cmp_eq_u32 s{sS}, 63")
    p(f"s_cbranch_scc1 {tag}_last")
    for b in range(4):
        p(f"ds_read_b128 {v(KX + 4 * b, 4)}, v{vKxl} offset:{b * 1024}")
    qk_to_lds()
    p(f"v_xor_b32 v{vKxl}, 4096, v{vKxl}")
    p("s_waitcnt lgkmcnt(0)")
    p("s_barrier")
    for ks in range(2):
        for hh in range(2):
            p(f"ds_read_b64_tr_b16 {v(Q2 + 4 * ks + 2 * hh, 2)}, v{vXq} offset:{ks * 1280 + hh * 320}")
    for ks in range(2):
        for hh in range(2):
            p(f"ds_read_b64_tr_b16 {v(K2 + 4 * ks + 2 * hh, 2)}, v{vXq} offset:{ks * 1280 + hh * 320 + 16}")
    smv(9); smv(10); smv(11)

    def tile(t):
        for ks in range(2):
            A = v(K2 + 4 * ks, 4) if t == 2 else v(KX + 8 * t + 4 * ks, 4)
            C = "0" if ks == 0 else v(SO + 4 * t, 4)
            p(f"v_mfma_f32_16x16x32_bf16 {v(SO + 4 * t, 4)}, {A}, {v(Q2 + 4 * ks, 4)}, {C}")

    first = w % 3
    order = [first] + [t for t in (0, 1, 2) if t != first]
    if first == 2:
        p("s_waitcnt lgkmcnt(0)")
        tile(2); tile(0)
        p(f"buffer_store_dwordx4 {v(SO + 4 * first, 4)}, v{vSw}, {WS}, s{sCUR} offen{loc}")
        tile(1)
    else:
        p("s_waitcnt lgkmcnt(4)")
        tile(order[0]); tile(order[1])
        p(f"buffer_store_dwordx4 {v(SO + 4 * first, 4)}, v{vSw}, {WS}, s{sCUR} offen{loc}")
        p("s_waitcnt lgkmcnt(0)")
        tile(2)
    st(6)
    RE = {u: (vF + 4 * u if u < 6 else vFREE + 4 * (u - 6)) for u in range(9)}
    for u in range(9):
        p(f"ds_read_b128 {v(RE[u], 4)}, v{vSt} offset:{L_ST + ks_of(u) * 1024}")
        if u % 2 == 1:
            smv(12 + u // 2)
    for u in range(3):
        p(f"s_waitcnt lgkmcnt({8 - u})")
        smv(u, RE[u])
    WB = [vF + 36 + 8 * i for i in range(3)] + [vFREE]
    WB.append(vF + 24)
    NB = len(WB)

    def wo_read(n, q=p):
        b = WB[n % NB]
        for hh in range(2):
            q(f"ds_read_b128 {v(b + 4 * hh, 4)}, v{vWo} offset:{n * 2048 + hh * 1024}")

    def s_ld(t):
        return f"buffer_load_dwordx4 {v(SP + 4 * t, 4)}, v{vSr}, {WS}, s{sCUR} offen offset:{t * 512} sc1"

    spos = opt.get("s_pos", 9)
    sack = opt.get("s_ack", True)

    def s_issue():
        if stamp is not None:
            stamp_flush(p, w, stamp)
            if sack:
                p("s_waitcnt vmcnt(1)")
        elif sack:
            p("s_waitcnt vmcnt(0)")
        for t in range(3):
            p(s_ld(t))
        if kvchk:
            assert sack
            p.label(f"{tag}_kv_chk")
            p(f"v_cmp_eq_u32 vcc, 0, v{vKVF}")
            p(f"s_cbranch_vccnz {tag}_kv_retry")
            p.label(f"{tag}_kv_ok")
            tail.label(f"{tag}_kv_retry")
            tail(f"s_cmp_eq_u32 s{sBUD}, 0")
            tail(f"s_cbranch_scc1 {tag}_kv_ok")
            tail(f"s_sub_u32 s{sBUD}, s{sBUD}, 1")
            for y in kv_ld:
                tail(y)
            tail("s_waitcnt vmcnt(0)")
            tail(f"s_branch {tag}_kv_chk")

    p("s_waitcnt lgkmcnt(0)")
    for u in range(3, 10):
        if u == spos:
            s_issue()
        if u < 9:
            smv(u, RE[u])
        if u < 6:
            wo_read(u - 3)
    wo_read(3)
    VMc = 64
    p(f"v_cvt_pk_bf16_f32 v{VMc}, v{vDv}, v{vDv + 1}")
    p(f"v_cvt_pk_bf16_f32 v{VMc + 1}, v{vDv + 2}, v{vDv + 3}")

    def vm_pack():
        p(f"v_permlane32_swap_b32 v{vDv}, v{vDv + 2}")
        p(f"v_permlane32_swap_b32 v{vDv + 1}, v{vDv + 3}")
        p(f"v_add_f32 v{vDv}, v{vDv}, v{vDv + 2}")
        p(f"v_add_f32 v{vDv + 1}, v{vDv + 1}, v{vDv + 3}")
        p(f"v_cvt_pk_bf16_f32 v{VMo}, v{vDv}, v{vDv + 1}")

    vm_pack()
    p(f"s_mov_b32 s{sT0}, {fhex(CEXP)}")
    st(7)
    p("s_waitcnt vmcnt(0)")
    p.label(f"{tag}_s_chk")
    for k in range(12):
        p(f"v_add_f32 v{SP + k}, v{SP + k}, v{SO + k}")
    p(f"v_maximum3_f32 v{vT0}, v{SP}, v{SP + 1}, v{SP + 2}")
    p(f"v_maximum3_f32 v{vT1}, v{SP + 3}, v{SP + 4}, v{SP + 5}")
    p(f"v_maximum3_f32 v{vT0}, v{vT0}, v{SP + 6}, v{SP + 7}")
    p(f"v_maximum3_f32 v{vT1}, v{vT1}, v{SP + 8}, v{SP + 9}")
    p(f"v_maximum3_f32 v{vT0}, v{vT0}, v{SP + 10}, v{SP + 11}")
    p(f"v_maximum3_f32 v{vT0}, v{vT0}, v{vT1}, v{vT1}")
    p(f"v_mov_b32 v{vT1}, v{vT0}")
    p(f"v_cmp_u_f32 vcc, v{vT0}, v{vT0}")
    p(f"s_cbranch_vccnz {tag}_s_retry")
    p.label(f"{tag}_s_ok")
    tail.label(f"{tag}_s_retry")
    retry_head(tail, 2, f"{tag}_s_ok")
    for t in range(3):
        tail(s_ld(t))
    tail("s_waitcnt vmcnt(0)")
    tail(f"s_branch {tag}_s_chk")
    st(8)
    p(f"v_permlane32_swap_b32 v{vT0}, v{vT1}")
    p(f"v_max_f32 v{vT0}, v{vT0}, v{vT1}")
    p(f"v_mov_b32 v{vT1}, v{vT0}")
    p(f"v_permlane16_swap_b32 v{vT0}, v{vT1}")
    p(f"v_max_f32 v{vT0}, v{vT0}, v{vT1}")
    p(f"v_mul_f32 v{vT0}, {fhex(-CEXP)}, v{vT0}")
    P2, P01 = 66, 68
    O, LL = vDq, vDk
    for k in range(8, 12):
        p(f"v_fma_f32 v{SP + k}, v{SP + k}, s{sT0}, v{vT0}")
    for k in range(8, 12):
        p(f"v_exp_f32 v{SP + k}, v{SP + k}")
    for k in range(0, 4):
        p(f"v_fma_f32 v{SP + k}, v{SP + k}, s{sT0}, v{vT0}")
    p(f"v_cvt_pk_bf16_f32 v{P2}, v{SP + 8}, v{SP + 9}")
    p(f"v_cvt_pk_bf16_f32 v{P2 + 1}, v{SP + 10}, v{SP + 11}")
    for k in range(4, 8):
        p(f"v_fma_f32 v{SP + k}, v{SP + k}, s{sT0}, v{vT0}")
    p(f"v_mfma_f32_16x16x16_bf16 {v(LL, 4)}, {v(vONEM, 2)}, {v(P2, 2)}, 0")
    for k in range(0, 4):
        p(f"v_exp_f32 v{SP + k}, v{SP + k}")
    p(f"v_mfma_f32_16x16x16_bf16 {v(O, 4)}, {v(VMc, 2)}, {v(P2, 2)}, 0")
    for k in range(4, 8):
        p(f"v_exp_f32 v{SP + k}, v{SP + k}")
    for k in range(4):
        p(f"v_cvt_pk_bf16_f32 v{P01 + k}, v{SP + 2 * k}, v{SP + 2 * k + 1}")
    p(f"v_mfma_f32_16x16x32_bf16 {v(LL, 4)}, {v(vONE, 4)}, {v(P01, 4)}, {v(LL, 4)}")
    p(f"v_mfma_f32_16x16x32_bf16 {v(O, 4)}, {v(vVX, 4)}, {v(P01, 4)}, {v(O, 4)}")
    wo_read(4)
    p(f"v_rcp_f32 v{vT0}, v{LL}")
    for r in range(4):
        p(f"v_mul_f32 v{O + r}, v{O + r}, v{vT0}")
    OP = 114
    p(f"v_cvt_pk_bf16_f32 v{OP}, v{O}, v{O + 1}")
    p(f"v_cvt_pk_bf16_f32 v{OP + 1}, v{O + 2}, v{O + 3}")
    p(f"buffer_store_dwordx2 {v(OP, 2)}, v{vOw}, {WS}, s{sCUR} offen{loc}")
    flag_store(sFO, f"s{sS1}")
    st(9)
    E0, E1 = vDq, vDk
    for k in range(8):
        p(f"v_mov_b32 v{E0 + k}, 0")
    OL = [52, 56, 60, 64, 68, 72, 84, 124]

    def o_ld(kk):
        so = sCUR if kk < 4 else sCUR4
        return f"buffer_load_dwordx4 {v(OL[kk], 4)}, v{vOr}, {WS}, s{so} offen offset:{(kk % 4) * 1024} sc1"

    probe(sFOr, f"s{sS1}", 3, "o")
    for kk in range(8):
        p(o_ld(kk))
    st(10)
    issued = 5
    groups = [(0, 1), (2, 3), (4, 5), (6,), (7,)]
    for gi, grp in enumerate(groups):
        p(f"s_waitcnt vmcnt({7 - grp[-1]})")
        p.label(f"{tag}_o_chk{gi}")
        check_sent(p, [OL[kk] + i for kk in grp for i in (0, 2)], vT0, f"{tag}_o_retry{gi}")
        p.label(f"{tag}_o_ok{gi}")
        tail.label(f"{tag}_o_retry{gi}")
        retry_head(tail, 3, f"{tag}_o_ok{gi}")
        tail("s_waitcnt vmcnt(0)")
        rest = list(range(grp[0], 8))
        for part in (rest[:4], rest[4:]):
            if part:
                masked_reload(tail, [([OL[kk], OL[kk] + 2], o_ld(kk)) for kk in part])
        tail("s_waitcnt vmcnt(0)")
        tail(f"s_branch {tag}_o_chk{gi}")
        for kk in grp:
            for t in range(2):
                n = 2 * kk + t
                p(f"s_waitcnt lgkmcnt({2 * (issued - n - 1)})")
                E = E0 if t == 0 else E1
                p(f"v_smfmac_f32_16x16x64_bf16 {v(E, 4)}, {v(OL[kk], 4)}, {v(WB[n % NB], 8)}, v{vIdx}")
                if issued < 16:
                    wo_read(issued)
                    issued += 1
    st(11)
    p(f"s_mov_b32 s{sS}, s{sS1}")
    p(f"s_add_u32 s{sS1}, s{sS1}, 1")
    p(f"s_mov_b32 s{sPRV}, s{sCUR}")
    p(f"s_mov_b32 s{sCUR}, s{sNXT}")
    p(f"s_add_u32 s{sCUR4}, s{sCUR}, 4096")
    p(f"s_add_u32 s{sNXT}, s{sNXT}, {SLOT:#x}")
    p(f"s_and_b32 s{sNXT}, s{sNXT}, {3 * SLOT:#x}")
    p(f"s_mov_b32 s{sKV0}, s{sKV1}")
    p(f"s_add_u32 s{sKV1}, s{sKV1}, 0x40000")
    for r in range(4):
        p(f"v_permlane32_swap_b32 v{E0 + r}, v{E1 + r}")
    for r in range(4):
        p(f"v_add_f32 v{E0 + r}, v{E0 + r}, v{E1 + r}")
    p(f"ds_write_b128 v{vRw}, {v(E0, 4)}")
    p(f"s_mov_b32 s{sKMP}, s{sKM}")
    p(f"s_add_u32 s{sKM}, s{sKM}, 0x10000")
    if kvchk:
        p(f"s_add_u32 s{sKVC}, s{sS}, 2")
        p(f"s_lshr_b32 s{sKVC}, s{sKVC}, 3")
        p(f"s_min_u32 s{sKVC}, s{sKVC}, 7")
        p(f"s_lshl_b32 s{sKVC}, s{sKVC}, 11")
        p(f"s_add_u32 s{sKVC}, s{sKVC}, s{sKVB}")
    p("s_waitcnt lgkmcnt(0)")
    p("s_barrier")
    RD = 52
    for q in range(4):
        p(f"ds_read2_b32 {v(RD + 2 * q, 2)}, v{vRr} offset0:{8 * q} offset1:{36 + 8 * q}")
    p("s_waitcnt lgkmcnt(2)")
    p(f"v_add_f32 v{RD}, v{RD}, v{RD + 2}")
    p(f"v_add_f32 v{RD + 1}, v{RD + 1}, v{RD + 3}")
    p("s_waitcnt lgkmcnt(0)")
    p(f"v_add_f32 v{RD + 4}, v{RD + 4}, v{RD + 6}")
    p(f"v_add_f32 v{RD + 5}, v{RD + 5}, v{RD + 7}")
    p(f"v_add_f32 v{RD}, v{RD}, v{RD + 4}")
    p(f"v_add_f32 v{RD + 1}, v{RD + 1}, v{RD + 5}")
    p(f"v_cvt_pk_bf16_f32 v{vT1}, v{RD}, v{RD + 1}")
    p(f"buffer_store_dword v{vT1}, v{vMw}, {WS}, s{sCUR} offen{' sc1' if w in (1, 2) else loc}")
    if w == 0:
        flag_store(sFM, f"s{sS}")
    p(f"s_branch {tag}_top")

    p.label(f"{tag}_last")
    smv(0); smv(1)
    qk_to_lds()
    for u in range(2, 6):
        smv(u)
    p("s_waitcnt lgkmcnt(0)")
    p("s_barrier")
    if w < 2:
        for hh in range(2):
            p(f"ds_read_b64_tr_b16 {v(KMr + 2 * hh, 2)}, v{vXq} offset:{w * 1280 + hh * 320 + 16}")
    for u in range(6, 10):
        smv(u)
    if w < 2:
        p("s_waitcnt lgkmcnt(0)")
        p(f"buffer_store_dwordx4 {v(KMr, 4)}, v{vKM}, {WS}, s{sKM} offen sc1")
    for u in range(10, 16):
        smv(u)
    vm_pack()
    p(f"buffer_store_dword v{VMo}, v{vVM}, {WS}, s{sKM} offen sc1")
    p(f"s_branch {done}")
    p.items += tail.items


def stamp_flush(p, w, stamp):
    p("s_waitcnt lgkmcnt(0)")
    p(f"s_lshl_b32 s{sT0}, s{sX}, 5")
    p(f"s_add_u32 s{sT0}, s{sT0}, s{sR}")
    p(f"s_lshl_b32 s{sT0}, s{sT0}, 14")
    p(f"s_lshl_b32 s{sT1}, s{sS}, 6")
    p(f"s_add_u32 s{sT0}, s{sT0}, s{sT1}")
    p(f"s_add_u32 s{sT0}, s{sT0}, {STAT + w * 4096:#x}")
    p(f"v_mov_b32 v{vT0}, 0")
    for k in sorted(stamp):
        p(f"v_writelane_b32 v{vT0}, s{sTS + 2 * k}, {k}")
    for k in range(4):
        p(f"v_writelane_b32 v{vT0}, s{sCNT + k}, {12 + k}")
    p(f"v_mbcnt_lo_u32_b32 v{vT1}, -1, 0")
    p(f"v_lshlrev_b32 v{vT1}, 2, v{vT1}")
    p("s_mov_b64 exec, 0xffff")
    p(f"buffer_store_dword v{vT0}, v{vT1}, s[{sWS}:{sWS + 3}], s{sT0} offen")
    p("s_mov_b64 exec, -1")
```

```python
from chain import *

WS = f"s[{sWS}:{sWS + 3}]"
DBG = f"s[{sDBG}:{sDBG + 3}]"
WSRD = f"s[{sW}:{sW + 3}]"
sACT = 48
sA, sB, sBst, sIt = 52, 53, 54, 55
sKind, sBlk, sCol, sRnd, sM0b, sWsz, sOut, sOst, sWB = 60, 61, 62, 63, 64, 65, 66, 67, 68
sSeg, sU0, sU1, sU2, sU3 = 69, 70, 71, 72, 73
sMsk = 74
ACT = f"s[{sACT}:{sACT + 3}]"
K_K, K_V, K_H, K_Y, K_Q = 0, 1, 2, 3, 4
vL, vL16, vWa, vDm, vAa, vt0, vt1, vDp, vDr, vt2, vt3, vOa = 1, 2, 3, 7, 11, 13, 14, 15, 16, 17, 18, 19
vWA, vWB, vAcc = 64, 80, 128
OUTSC = " sc0 sc1 nt"
LOG2E = 1.4426950408889634


def spin_ge(p, ld, reg, target, nm, budget=0x80000):
    lab = p.uid(nm)
    p(f"s_mov_b32 s{sWB}, {budget:#x}")
    p.label(lab)
    p(ld)
    p("s_waitcnt vmcnt(0)")
    p(f"v_cmp_gt_u32 vcc, {target}, v{reg}")
    p(f"s_cbranch_vccz {lab}_ok")
    p(f"s_sub_u32 s{sWB}, s{sWB}, 1")
    p(f"s_cmp_lg_u32 s{sWB}, 0")
    p(f"s_cbranch_scc1 {lab}")
    p.label(lab + "_ok")


def wait_cnt(p, word_s, target, nm):
    lab = p.uid(nm)
    p(f"s_cmp_lg_u32 s{sWV}, 0")
    p(f"s_cbranch_scc1 {lab}")
    spin_ge(p, f"buffer_load_dword v{vt0}, off, {DBG}, s{word_s} sc1", vt0, target, nm)
    p.label(lab)
    p("s_barrier")


def wait_flags(p, ld, nm):
    lab = p.uid(nm)
    p(f"s_cmp_lg_u32 s{sWV}, 0")
    p(f"s_cbranch_scc1 {lab}")
    spin_ge(p, ld, vt0, 1, nm)
    p.label(lab)
    p("s_barrier")


def signal_flag(p, word, nm):
    p(f"s_lshl_b32 s{sT0}, s{sBlk}, 5")
    p(f"s_add_u32 s{sT0}, s{sT0}, s{sCol}")
    p(f"s_lshl_b32 s{sT0}, s{sT0}, 6")
    p(f"s_add_u32 s{sT0}, s{sT0}, {word}")
    p("s_waitcnt vmcnt(0)")
    p("s_barrier")
    lab = p.uid(nm)
    p(f"s_cmp_lg_u32 s{sWV}, 0")
    p(f"s_cbranch_scc1 {lab}")
    p(f"v_mov_b32 v{vt0}, 1")
    p("s_mov_b64 exec, 1")
    p(f"buffer_store_dword v{vt0}, off, {WS}, s{sT0} sc1")
    p("s_mov_b64 exec, -1")
    p.label(lab)


def signal_cnt(p, word_s, nm):
    p("s_waitcnt vmcnt(0)")
    p("s_barrier")
    lab = p.uid(nm)
    p(f"s_cmp_lg_u32 s{sWV}, 0")
    p(f"s_cbranch_scc1 {lab}")
    p(f"v_mov_b32 v{vt0}, 1")
    p("s_mov_b64 exec, 1")
    p(f"buffer_atomic_add v{vt0}, off, {DBG}, s{word_s} sc1")
    p("s_mov_b64 exec, -1")
    p.label(lab)


LN_X, LN_F = 64, 80
LN_A = 60


def ln_issue(p):
    L, a = 61, LN_A
    p(f"v_and_b32 v{L}, 63, v0")
    p(f"v_and_b32 v{a}, 7, v{L}")
    p(f"v_lshlrev_b32 v{a}, 11, v{a}")
    p(f"v_lshrrev_b32 v62, 4, v{L}")
    p(f"v_lshl_add_u32 v{a}, v62, 5, v{a}")
    p(f"v_and_b32 v62, 8, v{L}")
    p(f"v_add_u32 v{a}, v{a}, v62")
    p(f"s_lshl_b32 s{sT0}, s2, 14")
    p(f"s_lshl_b32 s{sT1}, s{sWV}, 9")
    p(f"s_add_u32 s{sT0}, s{sT0}, s{sT1}")
    for n in range(4):
        for hh in range(2):
            p(f"buffer_load_dwordx2 {v(LN_X + 4 * n + 2 * hh, 2)}, v{a}, {WSRD}, s{sT0} offen offset:{n * 128 + hh * 16}")


def ln_finish(p, newer=0):
    L = 61
    S, T, LA = 56, 57, 58

    def reduce(base):
        p(f"v_add_f32_dpp v{S}, v{S}, v{S} row_ror:8 row_mask:0xf bank_mask:0xf")
        p(f"v_mov_b32 v{T}, v{S}")
        p(f"v_permlane16_swap_b32 v{S}, v{T}")
        p(f"v_add_f32 v{S}, v{S}, v{T}")
        p(f"v_mov_b32 v{T}, v{S}")
        p(f"v_permlane32_swap_b32 v{S}, v{T}")
        p(f"v_add_f32 v{S}, v{S}, v{T}")
        p(f"ds_write_b32 v{LA + 1}, v{S} offset:{base}")
        p("s_waitcnt lgkmcnt(0)")
        p("s_barrier")
        p(f"ds_read_b128 v[52:55], v{LA} offset:{base}")
        p("s_waitcnt lgkmcnt(0)")
        p("v_add_f32 v52, v52, v53")
        p("v_add_f32 v54, v54, v55")
        p(f"v_add_f32 v{S}, v52, v54")
        p(f"v_mul_f32 v{S}, {fhex(1.0 / 1024)}, v{S}")

    p(f"v_and_b32 v{LA}, 7, v{L}")
    p(f"v_lshlrev_b32 v{LA}, 4, v{LA}")
    p(f"s_lshl_b32 s{sT1}, s{sWV}, 2")
    p(f"v_add_u32 v{LA + 1}, s{sT1}, v{LA}")
    p(f"s_waitcnt vmcnt({newer})")
    for k in range(16):
        p(f"v_lshlrev_b32 v{LN_F + 2 * k}, 16, v{LN_X + k}")
        p(f"v_and_b32 v{LN_F + 2 * k + 1}, 0xffff0000, v{LN_X + k}")
    for k in range(4):
        p(f"v_add_f32 v{52 + k}, v{LN_F + k}, v{LN_F + 4 + k}")
    for k in range(8, 32):
        p(f"v_add_f32 v{52 + k % 4}, v{52 + k % 4}, v{LN_F + k}")
    p("v_add_f32 v52, v52, v53")
    p("v_add_f32 v54, v54, v55")
    p(f"v_add_f32 v{S}, v52, v54")
    reduce(64)
    M = 50
    p(f"v_cvt_pk_bf16_f32 v{M}, v{S}, v{S}")
    p(f"v_and_b32 v{M}, 0xffff0000, v{M}")
    for k in range(32):
        p(f"v_sub_f32 v{LN_X + k % 8}, v{LN_F + k}, v{S}")
        if k < 4:
            p(f"v_mul_f32 v{52 + k}, v{LN_X + k % 8}, v{LN_X + k % 8}")
        else:
            p(f"v_fmac_f32 v{52 + k % 4}, v{LN_X + k % 8}, v{LN_X + k % 8}")
    p("v_add_f32 v52, v52, v53")
    p("v_add_f32 v54, v54, v55")
    p(f"v_add_f32 v{S}, v52, v54")
    for k in range(32):
        p(f"v_sub_f32 v{LN_F + k}, v{LN_F + k}, v{M}")
    for k in range(16):
        p(f"v_cvt_pk_bf16_f32 v{LN_X + k}, v{LN_F + 2 * k}, v{LN_F + 2 * k + 1}")
    reduce(192)
    for op in (None, f"v_add_f32 v{S}, {fhex(1e-5)}, v{S}", f"v_sqrt_f32 v{S}, v{S}"):
        if op:
            p(op)
        p(f"v_cvt_pk_bf16_f32 v{S}, v{S}, v{S}")
        p(f"v_and_b32 v{S}, 0xffff0000, v{S}")
    p(f"v_rcp_f32 v{S}, v{S}")
    for k in range(16):
        p(f"v_lshlrev_b32 v{LN_F + 2 * k}, 16, v{LN_X + k}")
        p(f"v_and_b32 v{LN_F + 2 * k + 1}, 0xffff0000, v{LN_X + k}")
    for k in range(32):
        p(f"v_mul_f32 v{LN_F + k}, v{LN_F + k}, v{S}")
    a = LN_A
    p(f"v_lshrrev_b32 v{a}, 3, v{L}")
    p(f"v_lshlrev_b32 v{a}, 9, v{a}")
    p(f"v_add_u32 v{a}, v{a}, v{LA}")
    p(f"s_lshr_b32 s{sT0}, s2, 2")
    p(f"s_lshl_b32 s{sT0}, s{sT0}, 16")
    p(f"s_and_b32 s{sT1}, s2, 3")
    p(f"s_lshl_b32 s{sT1}, s{sT1}, 7")
    p(f"s_add_u32 s{sT0}, s{sT0}, s{sT1}")
    p(f"s_lshl_b32 s{sT1}, s{sWV}, 14")
    p(f"s_add_u32 s{sT0}, s{sT0}, s{sT1}")
    for n in range(4):
        for k in range(4):
            p(f"v_cvt_pk_bf16_f32 v{LN_X + 4 * n + k}, v{LN_F + 8 * n + 2 * k}, v{LN_F + 8 * n + 2 * k + 1}")
        p(f"buffer_store_dwordx4 {v(LN_X + 4 * n, 4)}, v{a}, {WS}, s{sT0} offen sc1")
        if n < 3:
            p(f"s_add_u32 s{sT0}, s{sT0}, 4096")
    p(f"v_lshlrev_b32 v{a}, 2, v{L}")
    p(f"v_mov_b32 v{T}, 0")
    p(f"s_lshl_b32 s{sT0}, s2, 6")
    p(f"s_add_u32 s{sT0}, s{sT0}, {FL2:#x}")
    p("s_mov_b64 exec, 0xffff")
    p(f"buffer_store_dword v{T}, v{a}, {WS}, s{sT0} offen sc1")
    p("s_mov_b64 exec, -1")
    p(f"s_lshr_b32 s{sT0}, s2, 5")
    p(f"s_lshl_b32 s{sT0}, s{sT0}, 2")
    p(f"s_add_u32 s{sT0}, s{sT0}, {D_XN * 4}")
    signal_cnt(p, sT0, "lnsig")


def worker_init(p):
    p(f"v_and_b32 v{vL}, 63, v0")
    p(f"v_lshlrev_b32 v{vL16}, 4, v{vL}")
    p(f"v_bfe_u32 v{vt0}, v{vL}, 2, 2")
    p(f"v_lshrrev_b32 v{vt1}, 5, v{vL}")
    p(f"v_lshl_add_u32 v{vt1}, v{vt1}, 2, v{vt0}")
    p(f"v_lshlrev_b32 v{vt1}, 8, v{vt1}")
    p(f"v_bfe_u32 v{vt2}, v{vL}, 4, 1")
    p(f"v_lshl_add_u32 v{vt1}, v{vt2}, 5, v{vt1}")
    p(f"v_and_b32 v{vt2}, 3, v{vL}")
    p(f"v_lshl_add_u32 v{vt1}, v{vt2}, 3, v{vt1}")
    for cb in range(4):
        p(f"v_xor_b32 v{vt2}, {cb}, v{vt0}")
        p(f"v_lshl_add_u32 v{vWa + cb}, v{vt2}, 6, v{vt1}")
    p(f"v_lshrrev_b32 v{vDr}, 4, v{vL}")
    p(f"v_and_b32 v{vt0}, 15, v{vL}")
    p(f"v_lshlrev_b32 v{vt1}, 2, v{vDr}")
    p(f"v_xor_b32 v{vt0}, v{vt0}, v{vt1}")
    p(f"v_lshlrev_b32 v{vDp}, 4, v{vt0}")
    p(f"s_lshl_b32 s{sT0}, s{sWV}, 4")
    p(f"v_add_u32 v{vDr}, s{sT0}, v{vDr}")
    p(f"s_lshl_b32 s{sM0b}, s{sWV}, 12")
    p(f"s_mov_b32 s{sACT}, s{sWS}")
    p(f"s_mov_b32 s{sACT + 1}, s{sWS + 1}")
    p(f"s_mov_b32 s{sACT + 3}, 0x20000")


def task_setup(p, kind, sentinels=True):
    ptr, stride, wsz, nit, abase, aseg, obase, oseg, oct_ = {
        K_K: (pWK, 8192, 0x800000, 4, XN, 65536, KF, 262144, 8192),
        K_V: (pWV, 8192, 0x800000, 4, XN, 65536, VF, 262144, 8192),
        K_Q: (pWQ, 8192, 0x800000, 4, XN, 65536, OF, 262144, 8192),
        K_H: (pW1, 7168, 1024 * 7168, 4, XN, 65536, HF, 224 * 1024, 8192),
        K_Y: (pW2, 2048, 3584 * 2048, 14, HF, 224 * 1024, YF, 65536, 8192),
    }[kind]
    p(f"s_mov_b32 s{sKind}, {kind}")
    srd(p, sW, ptr, wsz)
    p(f"s_mov_b32 s{sACT + 2}, 0x10000000")
    p(f"s_mov_b32 s{sBst}, {64 * stride}")
    p(f"s_mov_b32 s{sIt}, {nit}")
    p(f"s_lshl_b32 s{sSeg}, s{sBlk}, 3")
    p(f"s_lshl_b32 s{sT0}, s{sWV}, 1")
    p(f"s_add_u32 s{sSeg}, s{sSeg}, s{sT0}")
    p(f"s_mul_i32 s{sT0}, s{sSeg}, {aseg}")
    p(f"s_add_u32 s{sT0}, s{sT0}, {abase:#x}")
    p(f"v_add_u32 v{vAa}, s{sT0}, v{vL16}")
    p(f"v_add_u32 v{vAa + 1}, {aseg}, v{vAa}")
    p(f"s_mul_i32 s{sOut}, s{sSeg}, {oseg}")
    p(f"s_mul_i32 s{sT0}, s{sCol}, {oct_}")
    p(f"s_add_u32 s{sOut}, s{sOut}, s{sT0}")
    p(f"s_add_u32 s{sOut}, s{sOut}, {obase:#x}")
    p(f"s_mov_b32 s{sOst}, {oseg}")
    p(f"s_lshl_b32 s{sT0}, s{sCol}, 8")
    p(f"v_mul_u32_u24 v{vt0}, {stride}, v{vDr}")
    p(f"v_add3_u32 v{vDm}, v{vt0}, v{vDp}, s{sT0}")
    for n in range(1, 4):
        p(f"v_add_u32 v{vDm + n}, {n * (4 * stride - 1024)}, v{vDm}")
    p(f"s_mov_b32 s{sA}, 0")
    p(f"s_mov_b32 s{sB}, 0")
    if sentinels and kind in (K_K, K_V):
        sentinel_init(p, kind)
    if kind == K_Y:
        p(f"s_lshl_b32 s{sT0}, s{sBlk}, 11")
        p(f"s_add_u32 s{sT0}, s{sT0}, {FL2 + 48:#x}")
        p(f"v_min_u32 v{vt1}, 27, v{vL}")
        p(f"v_lshlrev_b32 v{vt1}, 6, v{vt1}")
        wait_flags(p, f"buffer_load_dword v{vt0}, v{vt1}, {WS}, s{sT0} offen sc1", "hwait")
    elif kind in (K_K, K_V, K_H):
        lab = p.uid("xnw")
        p(f"s_cmp_gt_u32 s{sRnd}, 2")
        p(f"s_cbranch_scc1 {lab}")
        p(f"s_cmp_lg_u32 s{sWV}, 0")
        p(f"s_cbranch_scc1 {lab}")
        p(f"s_lshl_b32 s{sT0}, s{sBlk}, 2")
        p(f"v_and_b32 v{vt1}, 28, v{vL}")
        p(f"s_cmp_eq_u32 s{sRnd}, 1")
        p(f"s_cbranch_scc0 {lab}_all")
        p(f"v_mov_b32 v{vt1}, s{sT0}")
        p.label(lab + "_all")
        spin_ge(p, f"buffer_load_dword v{vt0}, v{vt1}, {DBG}, 0 offen offset:{D_XN * 4} sc1", vt0, 32, "xn")
        p.label(lab)
        p("s_barrier")
    else:
        p("s_barrier")


def sentinel_init(p, kind):
    base = KM if kind == K_K else VM
    for k in range(4):
        p(f"v_mov_b32 v{vWA + k}, -1")
    p(f"s_lshl_b32 s{sT0}, s{sSeg}, 16")
    p(f"s_lshl_b32 s{sT1}, s{sCol}, 11")
    p(f"s_add_u32 s{sT0}, s{sT0}, s{sT1}")
    p(f"s_add_u32 s{sT0}, s{sT0}, {base:#x}")
    p(f"s_add_u32 s{sT1}, s{sT0}, 0x10000")
    for so in (sT0, sT1):
        for o in (0, 1024):
            p(f"buffer_store_dwordx4 {v(vWA, 4)}, v{vL16}, {WS}, s{so} offen offset:{o} sc1")


def vm_ops(buf):
    o = []
    for f in range(4):
        o.append([f"buffer_load_dwordx4 {a(32 * buf + 8 * f + 4 * tb, 4)}, v{vAa + tb}, {ACT}, s{sA} offen offset:{f * 1024} sc1"
                  for tb in range(2)]
                 + [f"buffer_load_dwordx4 v{vDm + f}, {WSRD}, s{sB} offen offset:{f * 1024} lds"])
    return o


def w_reads(buf, f, dst):
    return [f"ds_read_b64_tr_b16 {v(dst + 4 * cb + 2 * hh, 2)}, v{vWa + cb} offset:{buf * 16384 + f * 4096 + hh * 2048}"
            for cb in range(4) for hh in range(2)]


def gemm_prologue(p):
    for st in range(3):
        p(f"s_add_u32 m0, s{sM0b}, {st * 16384}")
        for grp in vm_ops(st):
            for x in grp:
                p(x)
        p(f"s_add_u32 s{sA}, s{sA}, 4096")
        p(f"s_add_u32 s{sB}, s{sB}, s{sBst}")
    for k in range(128):
        p(f"v_mov_b32 v{vAcc + k}, 0")
    p("s_waitcnt vmcnt(24)")
    p("s_barrier")
    for x in w_reads(0, 0, vWA):
        p(x)


def gemm_loop(p, lab, trans):
    p.label(lab)
    for u in range(4):
        nb = (u + 3) % 4
        vm = vm_ops(nb)
        for f in range(4):
            cur, nxt = (vWA, vWB) if f % 2 == 0 else (vWB, vWA)
            rd = w_reads(u, f + 1, nxt) if f < 3 else w_reads((u + 1) % 4, 0, nxt)
            gaps = [[] for _ in range(8)]
            r0 = 0 if f < 3 else 1
            for g in range(4):
                gaps[r0 + g] += rd[2 * g:2 * g + 2]
            if f == 3:
                gaps[0] += ["s_waitcnt vmcnt(21)", "s_barrier"]
            if f == 0:
                gaps[3] += [f"s_add_u32 m0, s{sM0b}, {nb * 16384}"]
                if u == 1:
                    gaps[0] += [f"s_cmp_eq_u32 s{sIt}, 1"]
                    gaps[1] += [f"s_cselect_b32 s{sACT + 2}, 0, s{sACT + 2}"]
                    gaps[2] += [f"s_cselect_b32 s{sW + 2}, 0, s{sW + 2}"]
            for k in range(3):
                gaps[5 + k].append(vm[f][k])
            if f == 3:
                gaps[7] += [f"s_add_u32 s{sA}, s{sA}, 4096", f"s_add_u32 s{sB}, s{sB}, s{sBst}"]
                if u == 3:
                    gaps[6] += [f"s_sub_u32 s{sIt}, s{sIt}, 1"]
            p("s_waitcnt lgkmcnt(0)")
            for g in range(8):
                cb, tb = g // 2, g % 2
                acc = v(vAcc + 16 * (4 * tb + cb), 16)
                W, A = v(cur + 4 * cb, 4), a(32 * u + 8 * f + 4 * tb, 4)
                if trans:
                    p(f"v_mfma_f32_32x32x16_bf16 {acc}, {W}, {A}, {acc}")
                else:
                    p(f"v_mfma_f32_32x32x16_bf16 {acc}, {A}, {W}, {acc}")
                for x in gaps[g]:
                    p(x)
    p(f"s_cmp_lg_u32 s{sIt}, 0")
    p(f"s_cbranch_scc1 {lab}")
    p("s_waitcnt lgkmcnt(0)")


def store_epilogue(p, silu):
    for tb in range(2):
        for half in range(2):
            if tb or half:
                p(f"s_add_u32 s{sT0}, s{sOut}, {half * 4096}")
                if tb:
                    p(f"s_add_u32 s{sT0}, s{sT0}, s{sOst}")
            so = sT0 if (tb or half) else sOut
            for fr in range(4):
                b = vAcc + 64 * tb + 32 * half + 8 * fr
                if silu:
                    t = vWA + 8 * (fr % 2)
                    for k in range(8):
                        p(f"v_mul_f32 v{t + k}, {fhex(-LOG2E)}, v{b + k}")
                    for k in range(8):
                        p(f"v_exp_f32 v{t + k}, v{t + k}")
                    for k in range(8):
                        p(f"v_add_f32 v{t + k}, 1.0, v{t + k}")
                    for k in range(8):
                        p(f"v_rcp_f32 v{t + k}, v{t + k}")
                    for k in range(8):
                        p(f"v_mul_f32 v{b + k}, v{b + k}, v{t + k}")
                for k in range(4):
                    p(f"v_cvt_pk_bf16_f32 v{b + k}, v{b + 2 * k}, v{b + 2 * k + 1}")
                p(f"buffer_store_dwordx4 {v(b, 4)}, v{vL16}, {WS}, s{so} offen offset:{fr * 1024} sc1")


vQ, vBias, vS, vSm, vKm, vVm, vPx, vPm, vO = 64, 20, 36, 128, 144, 176, 184, 52, 192
vKma, vVma, vPr = 54, 55, 56


def attn_epilogue(p):
    for tb in range(2):
        for k in range(32):
            p(f"v_cvt_pk_bf16_f32 v{vQ + 32 * tb + k}, v{vAcc + 64 * tb + 2 * k}, v{vAcc + 64 * tb + 2 * k + 1}")
    p(f"s_lshl_b32 s{sT0}, s{sBlk}, 5")
    p(f"s_add_u32 s{sT0}, s{sT0}, s{sCol}")
    p(f"s_lshl_b32 s{sT0}, s{sT0}, 6")
    p(f"s_add_u32 s{sT0}, s{sT0}, {FL2 + 40:#x}")
    p(f"v_and_b32 v{vt1}, 4, v{vL}")
    spin_ge(p, f"buffer_load_dword v{vt0}, v{vt1}, {WS}, s{sT0} offen sc1", vt0, 1, "kvwait")
    p("s_waitcnt vmcnt(0)")
    for tb in range(2):
        for kv in range(2):
            for half in range(2):
                p(f"s_add_u32 s{sT0}, s{sOut}, {((KF if kv == 0 else VF) - OF + tb * 262144 + half * 4096) & 0xffffffff:#x}")
                for fr in range(4):
                    p(f"buffer_load_dwordx4 {a(64 * tb + 32 * kv + 16 * half + 4 * fr, 4)}, v{vL16}, {WS}, s{sT0} offen offset:{fr * 1024} sc1")
    p(f"v_and_b32 v{vt0}, 31, v{vL}")
    p(f"v_lshrrev_b32 v{vt1}, 5, v{vL}")
    p(f"v_lshlrev_b32 v{vt2}, 2, v{vt1}")
    p(f"v_sub_u32 v{vt2}, v{vt0}, v{vt2}")
    p(f"v_mov_b32 v{vt3}, {fhex(-1e30)}")
    for q in range(4):
        for j in range(4):
            p(f"v_cmp_gt_i32 vcc, {8 * q + j}, v{vt2}")
            p(f"v_cndmask_b32 v{vBias + 4 * q + j}, 0, v{vt3}, vcc")
    p(f"v_and_b32 v{vt2}, 7, v{vL}")
    p(f"v_lshlrev_b32 v{vt2}, 4, v{vt2}")
    p(f"v_lshl_add_u32 v{vKma}, v{vt1}, 7, v{vt2}")
    p(f"v_lshlrev_b32 v{vt2}, 4, v{vt0}")
    p(f"v_lshl_add_u32 v{vVma}, v{vt1}, 3, v{vt2}")
    p(f"v_mul_u32_u24 v{vPr}, {0x400000 + 0}, v{vt1}")
    p(f"v_lshl_add_u32 v{vPr}, v{vt0}, 6, v{vPr}")
    p(f"s_mov_b32 s{sU3}, {fhex(CEXP)}")
    for tb in range(2):
        p(f"s_add_u32 s{sU0}, s{sSeg}, {tb}")
        p(f"s_lshl_b32 s{sU1}, s{sU0}, 16")
        p(f"s_lshl_b32 s{sT1}, s{sCol}, 11")
        p(f"s_add_u32 s{sU1}, s{sU1}, s{sT1}")
        p(f"s_add_u32 s{sU1}, s{sU1}, {KM:#x}")
        p(f"s_add_u32 s{sU2}, s{sU1}, {VM - KM:#x}")
        if tb == 0:
            p("s_waitcnt vmcnt(24)")
        for F in range(8):
            C = v(vBias, 16) if F == 0 else v(vS, 16)
            p(f"v_mfma_f32_32x32x16_bf16 {v(vS, 16)}, {a(64 * tb + 4 * F, 4)}, {v(vQ + 32 * tb + 4 * F, 4)}, {C}")
        lab = p.uid("km")
        p(f"s_mov_b32 s{sWB}, 0x100000")
        p.label(lab)
        p(f"buffer_load_dword v{vt0}, v{vPr}, {WS}, s{sU1} offen sc1")
        p("s_waitcnt vmcnt(0)")
        p(f"v_cmp_eq_u32 vcc, -1, v{vt0}")
        p(f"s_cbranch_vccnz {lab}_again")
        for F in range(8):
            p(f"buffer_load_dwordx4 {v(vKm + 4 * F, 4)}, v{vKma}, {WS}, s{sU1} offen offset:{F * 256} sc1")
        for eb in range(4):
            p(f"buffer_load_dwordx2 {v(vVm + 2 * eb, 2)}, v{vVma}, {WS}, s{sU2} offen offset:{eb * 512} sc1")
        p("s_waitcnt vmcnt(0)")
        regs = list(range(vKm, vKm + 40))
        p(f"v_max3_u32 v{vt0}, v{regs[0]}, v{regs[1]}, v{regs[2]}")
        p(f"v_max3_u32 v{vt1}, v{regs[3]}, v{regs[4]}, v{regs[5]}")
        rest = regs[6:]
        k = 0
        while rest:
            t = vt0 if k % 2 == 0 else vt1
            p(f"v_max3_u32 v{t}, v{t}, v{rest[0]}, v{rest[1]}")
            rest = rest[2:]
            k += 1
        p(f"v_max_u32 v{vt0}, v{vt0}, v{vt1}")
        p(f"v_cmp_eq_u32 vcc, -1, v{vt0}")
        p(f"s_cbranch_vccz {lab}_ok")
        p.label(lab + "_again")
        p(f"s_sub_u32 s{sWB}, s{sWB}, 1")
        p(f"s_cmp_lg_u32 s{sWB}, 0")
        p(f"s_cbranch_scc1 {lab}")
        p.label(lab + "_ok")
        for F in range(8):
            C = "0" if F == 0 else v(vSm, 16)
            p(f"v_mfma_f32_32x32x16_bf16 {v(vSm, 16)}, {v(vKm + 4 * F, 4)}, {v(vQ + 32 * tb + 4 * F, 4)}, {C}")
            if F == 0:
                p(f"v_max3_f32 v{vt0}, v{vS}, v{vS + 1}, v{vS + 2}")
                p(f"v_max3_f32 v{vt1}, v{vS + 3}, v{vS + 4}, v{vS + 5}")
            if F == 1:
                p(f"v_max3_f32 v{vt0}, v{vt0}, v{vS + 6}, v{vS + 7}")
                p(f"v_max3_f32 v{vt1}, v{vt1}, v{vS + 8}, v{vS + 9}")
                p(f"v_max3_f32 v{vt0}, v{vt0}, v{vS + 10}, v{vS + 11}")
                p(f"v_max3_f32 v{vt1}, v{vt1}, v{vS + 12}, v{vS + 13}")
            if F == 2:
                p(f"v_max3_f32 v{vt0}, v{vt0}, v{vS + 14}, v{vS + 15}")
        p(f"v_max3_f32 v{vt0}, v{vt0}, v{vSm}, v{vSm + 1}")
        p(f"v_max3_f32 v{vt1}, v{vt1}, v{vSm + 2}, v{vSm + 3}")
        p(f"v_max_f32 v{vt0}, v{vt0}, v{vt1}")
        p(f"v_mov_b32 v{vt1}, v{vt0}")
        p(f"v_permlane32_swap_b32 v{vt0}, v{vt1}")
        p(f"v_max_f32 v{vt0}, v{vt0}, v{vt1}")
        p(f"v_mul_f32 v{vt0}, {fhex(-CEXP)}, v{vt0}")
        el = [vSm + k for k in range(4)] + [vS + k for k in range(16)]
        for r in el:
            p(f"v_fma_f32 v{r}, v{r}, s{sU3}, v{vt0}")
        for r in el:
            p(f"v_exp_f32 v{r}, v{r}")
        p(f"v_add_f32 v{vt0}, v{el[0]}, v{el[1]}")
        p(f"v_add_f32 v{vt1}, v{el[2]}, v{el[3]}")
        for k in range(4, 20):
            t = vt0 if k % 2 == 0 else vt1
            p(f"v_add_f32 v{t}, v{t}, v{el[k]}")
        p(f"v_add_f32 v{vt0}, v{vt0}, v{vt1}")
        p(f"v_mov_b32 v{vt1}, v{vt0}")
        p(f"v_permlane32_swap_b32 v{vt0}, v{vt1}")
        p(f"v_add_f32 v{vt0}, v{vt0}, v{vt1}")
        p(f"v_rcp_f32 v{vt0}, v{vt0}")
        for r in el:
            p(f"v_mul_f32 v{r}, v{r}, v{vt0}")
        for k in range(2):
            p(f"v_cvt_pk_bf16_f32 v{vPm + k}, v{vSm + 2 * k}, v{vSm + 2 * k + 1}")
        for k in range(8):
            p(f"v_cvt_pk_bf16_f32 v{vPx + k}, v{vS + 2 * k}, v{vS + 2 * k + 1}")
        for eb in range(4):
            O = v(vO + 16 * eb, 16)
            p(f"v_mfma_f32_32x32x8_bf16 {O}, {v(vVm + 2 * eb, 2)}, {v(vPm, 2)}, 0")
            for f in range(2):
                p(f"v_mfma_f32_32x32x16_bf16 {O}, {a(64 * tb + 32 + 8 * eb + 4 * f, 4)}, {v(vPx + 4 * f, 4)}, {O}")
        p(f"s_add_u32 s{sT0}, s{sOut}, {tb * 262144}")
        p(f"s_add_u32 s{sT1}, s{sT0}, 4096")
        for F in range(8):
            b = vO + 8 * F
            for k in range(4):
                p(f"v_cvt_pk_bf16_f32 v{b + k}, v{b + 2 * k}, v{b + 2 * k + 1}")
            p(f"buffer_store_dwordx4 {v(b, 4)}, v{vL16}, {WS}, s{sT0 if F < 4 else sT1} offen offset:{(F % 4) * 1024} sc1")
        p(f"s_lshl_b32 s{sT0}, s{sU0}, 8")
        p(f"s_lshr_b32 s{sT1}, s{sCol}, 3")
        p(f"s_lshl_b32 s{sT1}, s{sT1}, 6")
        p(f"s_add_u32 s{sT0}, s{sT0}, s{sT1}")
        p(f"s_and_b32 s{sT1}, s{sCol}, 7")
        p(f"s_lshl_b32 s{sT1}, s{sT1}, 2")
        p(f"s_add_u32 s{sT0}, s{sT0}, s{sT1}")
        p(f"s_add_u32 s{sT0}, s{sT0}, {FL2:#x}")
        p(f"v_mov_b32 v{vt0}, 1")
        p("s_waitcnt vmcnt(0)")
        p("s_mov_b64 exec, 1")
        p(f"buffer_store_dword v{vt0}, off, {WS}, s{sT0} sc1")
        p("s_mov_b64 exec, -1")


vData = 64
vHF, vHY, vHX = 20, 22, 24
vOr_, vFl, vYa, vXa, vRw_, vRr_, vE = 26, 27, 28, 29, 30, 31, 128
sT_, sOo, sOn, sFn, sYo, sXo = 60, 63, 65, 66, 67, 69
sXS, sOS = 76, 80


def wo_stream(p, done):
    srd(p, sW, pWO, 0x800000)
    srd(p, sXS, pX, 0x400000)
    srd(p, sOS, pOUT, 0x400000)
    X = f"s[{sXS}:{sXS + 3}]"
    OUT = f"s[{sOS}:{sOS + 3}]"
    g, c = 40, 41
    p(f"v_lshrrev_b32 v{g}, 4, v{vL}")
    p(f"v_and_b32 v{c}, 15, v{vL}")
    p(f"v_lshrrev_b32 v{vt0}, 2, v{vL}")
    p(f"v_lshlrev_b32 v{vt0}, 11, v{vt0}")
    p(f"v_and_b32 v{vt1}, 3, v{vL}")
    p(f"v_lshl_add_u32 v{vt0}, v{vt1}, 4, v{vt0}")
    p(f"s_lshl_b32 s{sT0}, s{sWV}, 21")
    p(f"s_lshl_b32 s{sT1}, s{sCol}, 6")
    p(f"s_add_u32 s{sT0}, s{sT0}, s{sT1}")
    p(f"v_add_u32 v{vDm}, s{sT0}, v{vt0}")
    p(f"v_lshrrev_b32 v{vt0}, 1, v{g}")
    p(f"v_lshlrev_b32 v{vt0}, 4, v{vt0}")
    p(f"v_and_b32 v{vt1}, 1, v{g}")
    p(f"v_lshl_add_u32 v{vt0}, v{vt1}, 2, v{vt0}")
    p(f"v_lshrrev_b32 v{vt1}, 2, v{c}")
    p(f"v_add_u32 v{vt0}, v{vt0}, v{vt1}")
    p(f"v_lshlrev_b32 v{vt0}, 6, v{vt0}")
    p(f"v_and_b32 v{vt1}, 3, v{c}")
    p(f"v_lshl_add_u32 v{vt0}, v{vt1}, 3, v{vt0}")
    p(f"s_lshl_b32 s{sM0b}, s{sWV}, 15")
    p(f"v_add_u32 v{vWa}, s{sM0b}, v{vt0}")
    p("s_barrier")
    for ch in range(2):
        for n in range(32):
            p(f"s_add_u32 m0, s{sM0b}, {n * 1024}")
            p(f"s_mov_b32 s{sT0}, {(ch * 512 + n * 16) * 2048}")
            p(f"buffer_load_dwordx4 v{vDm}, {WSRD}, s{sT0} offen lds")
        p("s_waitcnt vmcnt(0)")
        for kb in range(16):
            for cb in range(2):
                for hh in range(2):
                    r = 8 * (16 * ch + kb) + 4 * cb + 2 * hh
                    p(f"ds_read_b64_tr_b16 {a(r, 2)}, v{vWa} offset:{kb * 2048 + hh * 512 + cb * 32}")
            if kb % 2 == 1:
                p("s_waitcnt lgkmcnt(0)")
    p(f"v_lshlrev_b32 v{vt0}, 9, v{g}")
    p(f"v_and_b32 v{vt1}, 7, v{c}")
    p(f"v_lshl_add_u32 v{vt0}, v{vt1}, 4, v{vt0}")
    p(f"v_lshrrev_b32 v{vt1}, 3, v{c}")
    p(f"v_lshl_add_u32 v{vt0}, v{vt1}, 11, v{vt0}")
    p(f"s_lshl_b32 s{sT0}, s{sWV}, 16")
    p(f"s_lshl_b32 s{sT1}, s{sBlk}, 7")
    p(f"s_add_u32 s{sT0}, s{sT0}, s{sT1}")
    p(f"s_add_u32 s{sT0}, s{sT0}, {OF:#x}")
    p(f"v_add_u32 v{vOr_}, s{sT0}, v{vt0}")
    p(f"s_lshr_b32 s{sT0}, s{sCol}, 3")
    p(f"s_lshl_b32 s{sT0}, s{sT0}, 6")
    p(f"s_bfe_u32 s{sT1}, s{sCol}, 0x10002")
    p(f"s_lshl_b32 s{sT1}, s{sT1}, 2")
    p(f"s_add_u32 s{sT0}, s{sT0}, s{sT1}")
    p(f"s_add_u32 s{sT0}, s{sT0}, {FL2 + 32:#x}")
    p(f"s_lshl_b32 s{sT1}, s{sWV}, 6")
    p(f"s_add_u32 s{sT1}, s{sT1}, {FL2:#x}")
    p(f"v_lshlrev_b32 v{vt0}, 2, v{c}")
    p(f"v_add_u32 v{vt0}, s{sT1}, v{vt0}")
    p(f"v_mov_b32 v{vt1}, s{sT0}")
    p(f"v_cmp_gt_u32 vcc, 8, v{c}")
    p(f"v_cndmask_b32 v{vFl}, v{vt1}, v{vt0}, vcc")
    p(f"s_lshl_b32 s{sT0}, s{sWV}, 1")
    p(f"s_lshl_b32 s{sT1}, s{sBlk}, 3")
    p(f"s_add_u32 s{sT1}, s{sT1}, s{sT0}")
    p(f"v_and_b32 v{vt3}, 1, v{g}")
    p(f"v_add_u32 v{vt2}, s{sT1}, v{vt3}")
    p(f"v_lshlrev_b32 v{vt0}, 11, v{vt2}")
    p(f"v_lshl_add_u32 v{vt0}, v{c}, 2, v{vt0}")
    p(f"s_lshl_b32 s{sT1}, s{sCol}, 6")
    p(f"v_add_u32 v{vt0}, s{sT1}, v{vt0}")
    p(f"v_mov_b32 v{vt1}, {OOB:#x}")
    p(f"v_cmp_gt_u32 vcc, 32, v{vL}")
    p(f"v_cndmask_b32 v{vXa}, v{vt1}, v{vt0}, vcc")
    p(f"v_lshrrev_b32 v{vt0}, 3, v{c}")
    p(f"v_lshlrev_b32 v{vt0}, 10, v{vt0}")
    p(f"v_bfe_u32 v{vt1}, v{c}, 1, 1")
    p(f"v_lshl_add_u32 v{vt0}, v{vt1}, 9, v{vt0}")
    p(f"v_lshl_add_u32 v{vt0}, v{vt2}, 4, v{vt0}")
    p(f"v_bfe_u32 v{vt1}, v{c}, 2, 1")
    p(f"v_lshl_add_u32 v{vt0}, v{vt1}, 3, v{vt0}")
    p(f"v_and_b32 v{vt1}, 1, v{c}")
    p(f"v_lshl_add_u32 v{vt0}, v{vt1}, 2, v{vt0}")
    p(f"s_lshl_b32 s{sT1}, s{sCol}, 11")
    p(f"s_add_u32 s{sT1}, s{sT1}, {YF:#x}")
    p(f"v_add_u32 v{vYa}, s{sT1}, v{vt0}")
    RB = 131072
    p(f"v_mul_u32_u24 v{vt0}, 144, v{c}")
    p(f"v_lshl_add_u32 v{vt0}, v{g}, 4, v{vt0}")
    p(f"s_mul_i32 s{sT0}, s{sWV}, 2304")
    p(f"s_add_u32 s{sT0}, s{sT0}, {RB}")
    p(f"v_add_u32 v{vRw_}, s{sT0}, v{vt0}")
    p(f"v_mul_u32_u24 v{vt0}, 144, v{vt3}")
    p(f"v_lshl_add_u32 v{vt0}, v{c}, 3, v{vt0}")
    p(f"s_mul_i32 s{sT0}, s{sWV}, 288")
    p(f"s_add_u32 s{sT0}, s{sT0}, {RB}")
    p(f"v_add_u32 v{vRr_}, s{sT0}, v{vt0}")

    ND = 16

    def data_ld(i, so):
        return f"buffer_load_dwordx4 {v(vData + 4 * i, 4)}, v{vOr_}, {WS}, s{so} offen sc1"

    def hdr(par):
        p(f"buffer_load_dword v{vHF + par}, v{vFl}, {WS}, s{sFn} offen sc1")
        p(f"buffer_load_dword v{vHY + par}, v{vYa}, {WS}, s{sYo} offen sc1")
        p(f"buffer_load_dword v{vHX + par}, v{vXa}, {X}, s{sYo} offen")

    def compute(par, stream):
        for i in range(ND):
            p(f"s_waitcnt vmcnt({ND + 3 if stream else ND - i})")
            for hb in range(2):
                for cb in range(2):
                    E = v(vE + 8 * hb + 4 * cb, 4)
                    C = "0" if i == 0 else E
                    p(f"v_mfma_f32_16x16x32_bf16 {E}, {a(8 * (2 * i + hb) + 4 * cb, 4)}, {v(vData + 4 * i, 4)}, {C}")
            if stream:
                p(data_ld(i, sOn))
                p(f"s_add_u32 s{sOn}, s{sOn}, 4096")
        for k in range(8):
            p(f"v_add_f32_dpp v{vE + k}, v{vE + 8 + k}, v{vE + k} row_ror:8 row_mask:0xf bank_mask:0xf")

    def final(par):
        for cb in range(2):
            p(f"ds_write_b128 v{vRw_}, {v(vE + 4 * cb, 4)} offset:{par * 9216 + cb * 64}")
        p("s_waitcnt lgkmcnt(0)")
        p("s_barrier")
        for w in range(4):
            p(f"ds_read_b64 {v(40 + 2 * w, 2)}, v{vRr_} offset:{par * 9216 + w * 2304}")
        p(f"v_lshlrev_b32 v48, 16, v{vHX + par}")
        p(f"v_and_b32 v49, 0xffff0000, v{vHX + par}")
        p(f"v_lshlrev_b32 v50, 16, v{vHY + par}")
        p(f"v_and_b32 v51, 0xffff0000, v{vHY + par}")
        p("s_waitcnt lgkmcnt(0)")
        for k in range(2):
            p(f"v_add_f32 v{40 + k}, v{40 + k}, v{42 + k}")
            p(f"v_add_f32 v{44 + k}, v{44 + k}, v{46 + k}")
        for k in range(2):
            p(f"v_add_f32 v{40 + k}, v{40 + k}, v{44 + k}")
        for add in (48, 50):
            p("v_cvt_pk_bf16_f32 v40, v40, v41")
            p("v_and_b32 v41, 0xffff0000, v40")
            p("v_lshlrev_b32 v40, 16, v40")
            p(f"v_add_f32 v40, v40, v{add}")
            p(f"v_add_f32 v41, v41, v{add + 1}")
        p("v_cvt_pk_bf16_f32 v40, v40, v41")
        p(f"buffer_store_dword v40, v{vXa}, {OUT}, s{sXo} offen" + OUTSC)

    def fetch(par):
        p(f"s_lshl_b32 s{sFn}, s{sT_}, 8")
        spin_ge(p, f"buffer_load_dword v{vt0}, v{vFl}, {WS}, s{sFn} offen sc1", vt0, 1, "oflag", 0x100000)
        p(f"s_add_u32 s{sFn}, s{sFn}, 256")
        p(f"s_lshl_b32 s{sYo}, s{sT_}, 16")
        p(f"s_lshl_b32 s{sOn}, s{sT_}, 18")
        hdr(par)
        for i in range(ND):
            p(data_ld(i, sOn))
            p(f"s_add_u32 s{sOn}, s{sOn}, 4096")
        p(f"buffer_load_dword v{vt0}, v{vFl}, {WS}, s{sFn} offen sc1")

    p(f"s_mov_b32 s{sT_}, 0")
    fetch(0)
    for par in range(2):
        p.label(f"wo_seg{par}")
        p(f"s_waitcnt vmcnt({ND})")
        p(f"s_mov_b32 s{sXo}, s{sYo}")
        p(f"s_add_u32 s{sT_}, s{sT_}, 1")
        p(f"v_cmp_eq_u32 vcc, 0, v{vHF + par}")
        p(f"s_cmp_eq_u32 s{sT_}, 64")
        p(f"s_cbranch_scc1 wo_drain{par}")
        p(f"s_cbranch_vccnz wo_drain{par}")
        p(f"s_add_u32 s{sFn}, s{sFn}, 256")
        p(f"s_lshl_b32 s{sYo}, s{sT_}, 16")
        p(f"s_lshl_b32 s{sOn}, s{sT_}, 18")
        hdr(1 - par)
        compute(par, True)
        final(par)
        p(f"s_branch wo_seg{1 - par}")
        p.label(f"wo_drain{par}")
        compute(par, False)
        final(par)
        p(f"s_cmp_eq_u32 s{sT_}, 64")
        p(f"s_cbranch_scc1 {done}")
        fetch(1 - par)
        if par == 1:
            p("s_branch wo_seg0")


def worker(p, done, sentinels=True, stop_after=None, stat=None, mark=None):
    mark = mark or (lambda p, k: None)
    worker_init(p)
    p(f"s_mov_b32 s{sRnd}, 0")
    sI = sU0
    p.label("W_NEXT")
    if stat:
        stat(p)
    mark(p, 0)
    p(f"s_lshl_b32 s{sI}, s{sX}, 5")
    p(f"s_add_u32 s{sI}, s{sI}, s{sR}")
    p(f"s_add_u32 s{sRnd}, s{sRnd}, 1")
    if stop_after is not None:
        p(f"s_cmp_gt_u32 s{sRnd}, {stop_after}")
        p(f"s_cbranch_scc1 {done}")
    def div3(src):
        p(f"s_mul_i32 s{sCol}, s{src}, 43691")
        p(f"s_lshr_b32 s{sCol}, s{sCol}, 17")
        p(f"s_mul_i32 s{sT0}, s{sCol}, 3")
        p(f"s_sub_u32 s{sBlk}, s{src}, s{sT0}")

    for r in (1, 2, 3, 4):
        p(f"s_cmp_eq_u32 s{sRnd}, {r}")
        p(f"s_cbranch_scc1 W_R{r}")
    p(f"s_cmp_ge_u32 s{sX}, 2")
    p("s_cbranch_scc1 W_R5B")
    p(f"s_cmp_ge_u32 s{sRnd}, 9")
    p(f"s_cbranch_scc1 {done}")
    p(f"s_sub_u32 s{sBlk}, s{sRnd}, 5")
    p(f"s_lshl_b32 s{sBlk}, s{sBlk}, 1")
    p(f"s_add_u32 s{sBlk}, s{sBlk}, s{sX}")
    p(f"s_mov_b32 s{sCol}, s{sR}")
    p("s_branch W_SET_Q")
    p.label("W_R5B")
    p(f"s_cmp_ge_u32 s{sRnd}, 6")
    p("s_cbranch_scc1 W_WO")
    p(f"s_cmp_lg_u32 s{sX}, 2")
    p("s_cbranch_scc1 W_WO")
    p(f"s_add_u32 s{sI}, s{sR}, 32")
    p("s_branch W_R4C")
    p.label("W_R1")
    div3(sI)
    p("s_branch W_KV")
    p.label("W_R3")
    p(f"s_cmp_eq_u32 s{sX}, 5")
    p("s_cbranch_scc1 W_R3C")
    p(f"s_cmp_eq_u32 s{sX}, 4")
    p("s_cbranch_scc1 W_R3B")
    p(f"s_lshr_b32 s{sCol}, s{sI}, 1")
    p(f"s_and_b32 s{sBlk}, s{sI}, 1")
    p(f"s_add_u32 s{sBlk}, s{sBlk}, 3")
    p("s_branch W_KV")
    p.label("W_R3B")
    p(f"s_mov_b32 s{sCol}, s{sR}")
    p(f"s_mov_b32 s{sBlk}, 5")
    p("s_branch W_KV")
    p.label("W_R4")
    p(f"s_cmp_ge_u32 s{sX}, 4")
    p("s_cbranch_scc1 W_R4Y")
    p(f"s_cmp_eq_u32 s{sX}, 3")
    p("s_cbranch_scc1 W_R4B")
    div3(sI)
    p(f"s_add_u32 s{sCol}, s{sCol}, 32")
    p(f"s_add_u32 s{sBlk}, s{sBlk}, 5")
    p("s_branch W_KV")
    p.label("W_R4Y")
    p(f"s_sub_u32 s{sI}, s{sI}, 128")
    p(f"s_lshr_b32 s{sBlk}, s{sI}, 3")
    p(f"s_and_b32 s{sCol}, s{sI}, 7")
    p("s_branch W_SET_Y")
    p.label("W_R4B")
    p(f"s_mov_b32 s{sI}, s{sR}")
    p.label("W_R4C")
    p(f"s_lshr_b32 s{sCol}, s{sI}, 1")
    p(f"s_and_b32 s{sBlk}, s{sI}, 1")
    p(f"s_add_u32 s{sBlk}, s{sBlk}, 6")
    p.label("W_KV")
    p(f"s_mov_b32 s{sT0}, s{sCol}")
    p(f"s_lshr_b32 s{sCol}, s{sCol}, 1")
    p(f"s_bitcmp1_b32 s{sT0}, 0")
    p("s_cbranch_scc1 W_SET_V")
    p("s_branch W_SET_K")
    p.label("W_R3C")
    p(f"s_add_u32 s{sI}, s{sR}, 192")
    p.label("W_R2")
    p(f"s_and_b32 s{sBlk}, s{sI}, 7")
    p(f"s_lshr_b32 s{sCol}, s{sI}, 3")
    for lab, kind in (("W_SET_H", K_H), ("W_SET_K", K_K), ("W_SET_Q", K_Q), ("W_SET_Y", K_Y), ("W_SET_V", K_V)):
        p.label(lab)
        task_setup(p, kind, sentinels)
        if kind != K_V:
            p("s_branch W_GT")
    mark(p, 1)
    gemm_prologue(p)
    mark(p, 2)
    gemm_loop(p, "W_LOOP_N", False)
    mark(p, 3)
    p("s_branch W_EP_ST")
    p.label("W_GT")
    mark(p, 1)
    gemm_prologue(p)
    mark(p, 2)
    gemm_loop(p, "W_LOOP_T", True)
    mark(p, 3)
    p(f"s_cmp_eq_u32 s{sKind}, {K_Q}")
    p("s_cbranch_scc1 W_EP_Q")
    p(f"s_cmp_eq_u32 s{sKind}, {K_H}")
    p("s_cbranch_scc1 W_EP_H")
    p.label("W_EP_ST")
    store_epilogue(p, False)
    p(f"s_cmp_eq_u32 s{sKind}, {K_Y}")
    p("s_cbranch_scc1 W_SIG_Y")
    p(f"s_lshl_b32 s{sT1}, s{sKind}, 2")
    p(f"s_add_u32 s{sT1}, s{sT1}, {FL2 + 40:#x}")
    signal_flag(p, f"s{sT1}", "kvsig")
    p("s_branch W_NEXT")
    p.label("W_SIG_Y")
    p(f"s_lshl_b32 s{sT0}, s{sSeg}, 8")
    p(f"s_lshr_b32 s{sT1}, s{sCol}, 1")
    p(f"s_lshl_b32 s{sT1}, s{sT1}, 6")
    p(f"s_add_u32 s{sT0}, s{sT0}, s{sT1}")
    p(f"s_and_b32 s{sT1}, s{sCol}, 1")
    p(f"s_lshl_b32 s{sT1}, s{sT1}, 2")
    p(f"s_add_u32 s{sT0}, s{sT0}, s{sT1}")
    p(f"s_add_u32 s{sT0}, s{sT0}, {FL2 + 32:#x}")
    p(f"v_mov_b32 v{vt0}, 1")
    p("s_waitcnt vmcnt(0)")
    p("s_mov_b64 exec, 1")
    p(f"buffer_store_dword v{vt0}, off, {WS}, s{sT0} sc1")
    p(f"buffer_store_dword v{vt0}, off, {WS}, s{sT0} offset:256 sc1")
    p("s_mov_b64 exec, -1")
    p("s_branch W_NEXT")
    p.label("W_EP_H")
    store_epilogue(p, True)
    signal_flag(p, f"{FL2 + 48:#x}", "hsig")
    p("s_branch W_NEXT")
    p.label("W_EP_Q")
    attn_epilogue(p)
    p("s_branch W_NEXT")
    p.label("W_WO")
    p(f"s_sub_u32 s{sBlk}, s{sX}, 2")
    p(f"s_mov_b32 s{sCol}, s{sR}")
    wo_stream(p, done)
```

```python
import sys
from worker import *

def prologue(p):
    p("s_cmp_ge_u32 s2, 256")
    p("s_cbranch_scc1 EXIT")
    p("s_load_dwordx16 s[16:31], s[0:1], 0")
    p("s_load_dwordx8 s[32:39], s[0:1], 64")
    p("s_load_dwordx2 s[40:41], s[0:1], 96")
    p(f"s_getreg_b32 s{sX}, hwreg(HW_REG_XCC_ID, 0, 4)")
    p("v_lshrrev_b32 v1, 6, v0")
    p(f"v_readfirstlane_b32 s{sWV}, v1")
    p("s_waitcnt lgkmcnt(0)")
    srd(p, sWS, pWSP, 0x10000000)
    srd(p, sDBG, pDBG, 256)
    srd(p, sW, pX, 0x400000)
    p(f"s_cmp_lg_u32 s{sWV}, 0")
    p("s_cbranch_scc1 RANK_SKIP")
    p(f"s_min_u32 s{sT0}, s{sX}, 8")
    p(f"s_lshl_b32 s{sT0}, s{sT0}, 2")
    p("s_mov_b64 exec, 1")
    p("v_mov_b32 v1, 1")
    p(f"buffer_atomic_add v1, off, {DBG}, s{sT0} sc0 sc1")
    p("s_mov_b64 exec, -1")
    p.label("RANK_SKIP")
    ln_issue(p)
    p(f"s_cmp_lg_u32 s{sWV}, 0")
    p("s_cbranch_scc1 RANK_WAIT")
    p("v_mov_b32 v2, 0")
    p("s_waitcnt vmcnt(8)")
    p("s_mov_b64 exec, 1")
    p("ds_write_b32 v2, v1")
    p("s_mov_b64 exec, -1")
    p.label("RANK_WAIT")
    ln_finish(p, 0)
    p("v_mov_b32 v2, 0")
    p("ds_read_b32 v1, v2")
    p("s_waitcnt lgkmcnt(0)")
    p(f"v_readfirstlane_b32 s{sR}, v1")
    p("s_barrier")


def task_stat(p):
    p("s_memrealtime s[96:97]")
    p(f"s_lshl_b32 s98, s{sX}, 5")
    p(f"s_add_u32 s98, s98, s{sR}")
    p("s_lshl_b32 s98, s98, 6")
    p(f"s_lshl_b32 s99, s{sRnd}, 2")
    p("s_add_u32 s98, s98, s99")
    p(f"s_add_u32 s98, s98, {STAT + 0x300000:#x}")
    p("s_waitcnt lgkmcnt(0)")
    p(f"v_mov_b32 v{vt0}, s96")
    p("s_mov_b64 exec, 1")
    p(f"buffer_store_dword v{vt0}, off, {WS}, s98")
    p("s_mov_b64 exec, -1")


def task_mark(p, k):
    p("s_memtime s[96:97]")
    p(f"s_lshl_b32 s98, s{sX}, 5")
    p(f"s_add_u32 s98, s98, s{sR}")
    p("s_lshl_b32 s98, s98, 8")
    p(f"s_lshl_b32 s99, s{sRnd}, 4")
    p("s_add_u32 s98, s98, s99")
    p(f"s_add_u32 s98, s98, {STAT + 0x310000 + k * 4 + (16 if k == 0 else 0):#x}")
    p("s_waitcnt lgkmcnt(0)")
    p(f"v_mov_b32 v{vt0}, s96")
    p("s_mov_b64 exec, 1")
    p(f"buffer_store_dword v{vt0}, off, {WS}, s98")
    p("s_mov_b64 exec, -1")


def gen(mark=False, chain=True, stop_after=None, stat=False, copt=None):
    p = Prog()
    if stat:
        p("s_memrealtime s[94:95]")
    prologue(p)
    p(f"s_cmp_ge_u32 s{sR}, 32")
    p("s_cbranch_scc1 EXIT")
    p(f"s_cmp_ge_u32 s{sX}, 2")
    p("s_cbranch_scc1 WORKER")
    if chain:
        chain_init(p)
        if stat:
            p("s_memrealtime s[30:31]")
        for w in range(3):
            p(f"s_cmp_eq_u32 s{sWV}, {w}")
            p(f"s_cbranch_scc1 c{w}_entry")
        p("s_branch c3_entry")
        for w in range(4):
            chain_loop(p, w, f"c{w}", done="CDONE", opt=copt)
        p.label("CDONE")
        if stat:
            p("s_memrealtime s[28:29]")
            p("s_waitcnt lgkmcnt(0)")
            p("v_mov_b32 v1, 0")
            for k, sr in enumerate([60, 61, 62, 63, 94, 30, 28, sBUD, 93]):
                p(f"v_writelane_b32 v1, s{sr}, {k}")
            p(f"s_lshl_b32 s{sT0}, s{sX}, 5")
            p(f"s_add_u32 s{sT0}, s{sT0}, s{sR}")
            p(f"s_lshl_b32 s{sT0}, s{sT0}, 2")
            p(f"s_add_u32 s{sT0}, s{sT0}, s{sWV}")
            p(f"s_lshl_b32 s{sT0}, s{sT0}, 6")
            p(f"s_add_u32 s{sT0}, s{sT0}, {STAT + 0x200000:#x}")
            p("v_mbcnt_lo_u32_b32 v2, -1, 0")
            p("v_lshlrev_b32 v2, 2, v2")
            p("s_mov_b64 exec, 0xffff")
            p(f"buffer_store_dword v1, v2, {WS}, s{sT0} offen")
    p("s_endpgm")
    p.label("WORKER")
    p(f"s_sub_u32 s{sX}, s{sX}, 2")
    worker(p, "WDONE", sentinels=chain, stop_after=stop_after, stat=task_stat if stat else None, mark=task_mark if mark else None)
    p.label("WDONE")
    if stat:
        p(f"s_mov_b32 s{sRnd}, 12")
        task_stat(p)
        p("s_mov_b32 s96, s94")
        p(f"s_add_u32 s98, s98, 4")
        p(f"v_mov_b32 v{vt0}, s96")
        p("s_mov_b64 exec, 1")
        p(f"buffer_store_dword v{vt0}, off, {WS}, s98")
    p.label("EXIT")
    p("s_endpgm")
    return wrap([(NAME + "_kernel", p, 512, 256)], [(NAME + "_kernel", 256, 256, 163840)]), p


if __name__ == "__main__":
    t, p = gen(chain=False, stat=True)
    open("k_w.s", "w").write(t)
    t, p = gen(chain=False, stat=True, mark=True)
    open("k_wm.s", "w").write(t)
    t, p = gen(chain=True, stat=True)
    open("k_f.s", "w").write(t)
    t, p = gen(chain=True, stat=False)
    open("k_full.s", "w").write(t)
    print(p.count(), len(t))
```

```python
from common import *

XN = 0x0000000
KF = 0x0400000
VF = 0x1400000
KM = 0x2400000
VM = 0x2800000
OF = 0x2C00000
HF = 0x3C00000
YF = 0x4A00000
RING = 0x5000000
STAT = 0x5400000
XS = 0x80000
SLOT = 0x20000
R_MO, R_MX, R_O, R_S = 0, 0x4000, 0x8000, 0x10000
FLG = 0x5100000
FL2 = 0x5200000
OOB = 0x80000000

D_RANK = 0
D_CBAR = 9
D_XN = 16
D_KV = 24
D_HF = 32
D_Y = 40
D_OF = 48

sWS, sDBG, sW = 4, 8, 12
pX, pMEM, pWQ, pWK, pWV, pWO, pW1, pW2, pOUT, pDBG, pWSP = 16, 18, 20, 22, 24, 26, 32, 34, 36, 38, 40
sX, sR, sWV = 42, 43, 44
sS, sCUR, sNXT, sPRV, sCUR4 = 45, 46, 50, 48, 49
sKV0, sKV1, sKM, sKXM0, sBUD = 51, 52, 53, 54, 55
sT0, sT1, sT2, sT3 = 56, 57, 58, 59
sCNT = 60
sTS = 64
sKMP, sFO, sFM, sFOr, sFMr, sS1 = 3, 88, 89, 90, 91, 92
sKVC, sKVB = 47, 24
sMK = 16

L_ST, L_KX, L_X, L_R, L_WO = 0, 16384, 24576, 27648, 32768

(vMOr, vMXr, vOr, vOw, vSw, vSr, vMw, vKM, vVM, vVx, vKxg, vRst, vSt, vXw, vXq, vKxl, vRw, vRr, vWo,
 vIdx) = range(1, 21)
vFr = 0
vT0, vT1 = 22, 23
vID = 24
vONE = 26
vONEM = 30
vSENT = 32
vVX = 36
vDq, vDk, vDv = 40, 44, 48
vF = 52
vMO, vMX, vACC = 52, 68, 84
vFREE = 116
vWV = 128

CEXP = 0.08838834764831845 * 1.4426950408889634


def fhex(x):
    import struct
    return "0x%08x" % struct.unpack("<I", struct.pack("<f", x))[0]


def chain_init(p, kvwait=True):
    L, G, C, t0, t1, t2, t3 = 52, 53, 54, 55, 56, 57, 58
    p(f"v_and_b32 v{L}, 63, v0")
    p(f"v_lshrrev_b32 v{G}, 4, v{L}")
    p(f"v_and_b32 v{C}, 15, v{L}")
    sH, sJ, sB = sT0, sT1, sT2
    p(f"s_lshr_b32 s{sH}, s{sR}, 1")
    p(f"s_lshl_b32 s{sT3}, s{sX}, 4")
    p(f"s_add_u32 s{sH}, s{sH}, s{sT3}")
    p(f"s_and_b32 s{sJ}, s{sR}, 1")
    vWg, vWog, vTr0, vTr1 = 60, 61, 62, 63
    vWoT0, vWoT1 = 64, 65
    p(f"v_lshrrev_b32 v{t0}, 5, v{L}")
    p(f"s_and_b32 s{sB}, s{sWV}, 1")
    p(f"s_lshl_b32 s{sB}, s{sB}, 1")
    p(f"v_add_u32 v{t0}, s{sB}, v{t0}")
    p(f"v_lshlrev_b32 v{t0}, 1, v{t0}")
    p(f"v_and_b32 v{t1}, 7, v{L}")
    p(f"v_xor_b32 v{t0}, v{t0}, v{t1}")
    p(f"v_lshlrev_b32 v{t0}, 4, v{t0}")
    p(f"v_lshrrev_b32 v{t1}, 3, v{L}")
    p(f"v_lshl_add_u32 v{vWg}, v{t1}, 13, v{t0}")
    p(f"s_lshl_b32 s{sB}, s{sWV}, 16")
    p(f"s_lshl_b32 s{sT3}, s{sH}, 8")
    p(f"s_add_u32 s{sB}, s{sB}, s{sT3}")
    p(f"s_lshl_b32 s{sT3}, s{sJ}, 7")
    p(f"s_add_u32 s{sB}, s{sB}, s{sT3}")
    p(f"v_add_u32 v{vWg}, s{sB}, v{vWg}")
    sM0, sSO = 64, 65
    p(f"s_lshl_b32 s{sM0}, s{sWV}, 10")
    p(f"s_add_u32 s{sM0}, s{sM0}, {L_WO}")

    def dma_chunk(half, src_off, vaddr, step):
        for n in range(16):
            p(f"s_add_u32 m0, s{sM0}, {half * 65536 + n * 4096}")
            p(f"s_mov_b32 s{sSO}, {src_off + n * step:#x}")
            p(f"buffer_load_dwordx4 v{vaddr}, s[{sW}:{sW + 3}], s{sSO} offen lds")

    srd(p, sW, pWQ, 0x800000)
    dma_chunk(0, 0, vWg, 262144)
    dma_chunk(1, 512 * 8192, vWg, 262144)

    sRB = 66
    p(f"s_mul_i32 s{sRB}, s{sX}, {XS:#x}")
    p(f"s_add_u32 s{sRB}, s{sRB}, {RING:#x}")
    p(f"v_lshlrev_b32 v{t0}, 4, v{L}")
    p(f"s_lshl_b32 s{sB}, s{sWV}, 12")
    p(f"s_add_u32 s{sT3}, s{sB}, s{sRB}")
    p(f"v_add_u32 v{vMOr}, s{sT3}, v{t0}")
    p(f"s_xor_b32 s{sT3}, s{sT3}, {XS:#x}")
    p(f"s_add_u32 s{sT3}, s{sT3}, {R_MX:#x}")
    p(f"v_add_u32 v{vMXr}, s{sT3}, v{t0}")
    p(f"s_lshl_b32 s{sT3}, s{sWV}, 13")
    p(f"s_add_u32 s{sT3}, s{sT3}, s{sRB}")
    p(f"s_add_u32 s{sT3}, s{sT3}, {R_O:#x}")
    p(f"v_add_u32 v{vOr}, s{sT3}, v{t0}")
    p(f"v_mov_b32 v{vSt}, v{t0}")
    p(f"v_add_u32 v{vKxl}, {L_KX}, v{t0}")
    p(f"s_lshl_b32 s{sT3}, s{sWV}, 15")
    p(f"s_add_u32 s{sT3}, s{sT3}, {L_WO}")
    p(f"v_add_u32 v{vWo}, s{sT3}, v{t0}")
    p(f"v_cmp_gt_u32 s[70:71], 8, v{C}")
    p(f"v_cmp_gt_u32 s[72:73], 32, v{L}")
    p(f"v_mov_b32 v{t3}, {OOB:#x}")
    p(f"v_lshrrev_b32 v{t1}, 1, v{G}")
    p(f"v_lshl_add_u32 v{t1}, v{t1}, 3, v{C}")
    p(f"v_and_b32 v{t2}, 1, v{G}")
    p(f"v_lshlrev_b32 v{t2}, 3, v{t2}")
    p(f"v_lshl_add_u32 v{t1}, v{t1}, 4, v{t2}")
    p(f"s_lshl_b32 s{sB}, s{sR}, 10")
    p(f"s_lshl_b32 s{sT3}, s{sWV}, 8")
    p(f"s_add_u32 s{sB}, s{sB}, s{sT3}")
    p(f"s_add_u32 s{sB}, s{sB}, s{sRB}")
    p(f"s_add_u32 s{sB}, s{sB}, {R_O:#x}")
    p(f"v_add_u32 v{t1}, s{sB}, v{t1}")
    p(f"v_cndmask_b32 v{vOw}, v{t3}, v{t1}, s[70:71]")
    p(f"v_and_b32 v{t1}, 7, v{C}")
    p(f"v_lshl_add_u32 v{t1}, v{G}, 3, v{t1}")
    p(f"v_lshlrev_b32 v{t1}, 4, v{t1}")
    p(f"s_lshl_b32 s{sB}, s{sR}, 11")
    p(f"s_add_u32 s{sB}, s{sB}, s{sRB}")
    p(f"s_add_u32 s{sB}, s{sB}, {R_S:#x}")
    p(f"s_xor_b32 s{sT3}, s{sB}, 2048")
    p(f"v_add_u32 v{vSr}, s{sT3}, v{t1}")
    p(f"s_lshl_b32 s{sT3}, s{sWV}, 9")
    p(f"s_add_u32 s{sB}, s{sB}, s{sT3}")
    p(f"v_add_u32 v{t1}, s{sB}, v{t1}")
    p(f"v_cndmask_b32 v{vSw}, v{t3}, v{t1}, s[70:71]")
    p(f"s_lshl_b32 s{sB}, s{sR}, 9")
    p(f"s_lshr_b32 s{sT3}, s{sWV}, 1")
    p(f"s_lshl_b32 s68, s{sT3}, 8")
    p(f"s_add_u32 s{sB}, s{sB}, s68")
    p(f"s_xor_b32 s{sT3}, s{sT3}, s{sWV}")
    p(f"s_and_b32 s{sT3}, s{sT3}, 1")
    p(f"s_mul_i32 s{sT3}, s{sT3}, {R_MX:#x}")
    p(f"s_add_u32 s{sB}, s{sB}, s{sT3}")
    p(f"s_add_u32 s{sB}, s{sB}, s{sRB}")
    p(f"v_lshlrev_b32 v{t1}, 2, v{L}")
    p(f"v_add_u32 v{vMw}, s{sB}, v{t1}")
    p(f"v_and_b32 v{vFr}, 124, v{t1}")
    p(f"s_lshl_b32 s{sB}, s{sX}, 12")
    p(f"s_add_u32 s{sB}, s{sB}, {FLG:#x}")
    p(f"s_mul_i32 s{sT3}, s{sWV}, 0x180")
    p(f"s_add_u32 s{sFOr}, s{sB}, s{sT3}")
    p(f"s_add_u32 s{sFMr}, s{sB}, 0x800")
    p(f"s_lshl_b32 s{sT3}, s{sR}, 2")
    p(f"s_add_u32 s{sFM}, s{sFMr}, s{sT3}")
    p(f"s_lshr_b32 s{sT3}, s{sR}, 3")
    p(f"s_mul_i32 s{sT3}, s{sT3}, 0x180")
    p(f"s_add_u32 s{sB}, s{sB}, s{sT3}")
    p(f"s_and_b32 s{sT3}, s{sR}, 7")
    p(f"s_lshl_b32 s{sT3}, s{sT3}, 2")
    p(f"s_add_u32 s{sT3}, s{sT3}, s{sWV}")
    p(f"s_lshl_b32 s{sT3}, s{sT3}, 2")
    p(f"s_add_u32 s{sFO}, s{sB}, s{sT3}")
    p(f"v_lshlrev_b32 v{t1}, 7, v{G}")
    p(f"v_lshl_add_u32 v{t1}, v{C}, 4, v{t1}")
    p(f"s_lshl_b32 s{sB}, s{sH}, 11")
    p(f"s_lshl_b32 s{sT3}, s{sJ}, 10")
    p(f"s_add_u32 s{sB}, s{sB}, s{sT3}")
    p(f"s_mov_b32 s67, s{sB}")
    p(f"s_and_b32 s{sT3}, s{sWV}, 1")
    p(f"s_lshl_b32 s{sT3}, s{sT3}, 9")
    p(f"s_add_u32 s{sB}, s{sB}, s{sT3}")
    p(f"s_add_u32 s{sB}, s{sB}, {KM:#x}")
    p(f"v_add_u32 v{t1}, s{sB}, v{t1}")
    p(f"v_cndmask_b32 v{vKM}, v{t3}, v{t1}, s[70:71]")
    p(f"v_and_b32 v{t1}, 1, v{G}")
    p(f"v_lshlrev_b32 v{t1}, 3, v{t1}")
    p(f"v_lshrrev_b32 v{t2}, 1, v{G}")
    p(f"v_lshl_add_u32 v{t1}, v{t2}, 2, v{t1}")
    p(f"v_lshl_add_u32 v{t1}, v{C}, 4, v{t1}")
    p(f"s_lshl_b32 s{sT3}, s{sWV}, 8")
    p(f"s_add_u32 s{sB}, s67, s{sT3}")
    p(f"s_add_u32 s{sB}, s{sB}, {VM:#x}")
    p(f"v_add_u32 v{vVM}, s{sB}, v{t1}")
    p(f"v_lshlrev_b32 v{t1}, 9, v{G}")
    p(f"v_lshl_add_u32 v{t1}, v{C}, 4, v{t1}")
    p(f"s_lshl_b32 s67, s{sH}, 13")
    p(f"s_lshl_b32 s{sT3}, s{sJ}, 12")
    p(f"s_add_u32 s67, s67, s{sT3}")
    p(f"s_lshr_b32 s{sT3}, s{sWV}, 1")
    p(f"s_lshl_b32 s{sT3}, s{sT3}, 11")
    p(f"s_add_u32 s{sB}, s67, s{sT3}")
    p(f"s_and_b32 s{sT3}, s{sWV}, 1")
    p(f"s_lshl_b32 s{sT3}, s{sT3}, 8")
    p(f"s_add_u32 s{sB}, s{sB}, s{sT3}")
    p(f"s_add_u32 s{sB}, s{sB}, {VF:#x}")
    p(f"v_add_u32 v{vVx}, s{sB}, v{t1}")
    p(f"v_lshrrev_b32 v{t1}, 3, v{C}")
    p(f"v_lshlrev_b32 v{t1}, 4, v{t1}")
    p(f"v_and_b32 v{t2}, 7, v{C}")
    p(f"v_add_u32 v{t1}, v{t1}, v{t2}")
    p(f"v_lshlrev_b32 v{t2}, 9, v{G}")
    p(f"v_lshl_add_u32 v{t1}, v{t1}, 4, v{t2}")
    p(f"s_and_b32 s{sT3}, s{sWV}, 1")
    p(f"s_lshl_b32 s{sT3}, s{sT3}, 11")
    p(f"s_add_u32 s{sB}, s67, s{sT3}")
    p(f"s_lshr_b32 s{sT3}, s{sWV}, 1")
    p(f"s_lshl_b32 s{sT3}, s{sT3}, 7")
    p(f"s_add_u32 s{sB}, s{sB}, s{sT3}")
    p(f"s_add_u32 s{sB}, s{sB}, {KF:#x}")
    p(f"v_add_u32 v{vKxg}, s{sB}, v{t1}")
    p(f"v_mul_u32_u24 v{t1}, 40, v{C}")
    p(f"v_lshl_add_u32 v{t1}, v{G}, 3, v{t1}")
    p(f"s_mul_i32 s{sB}, s{sWV}, 640")
    p(f"s_add_u32 s{sB}, s{sB}, {L_X}")
    p(f"v_add_u32 v{vXw}, s{sB}, v{t1}")
    p(f"v_lshrrev_b32 v{t1}, 1, v{G}")
    p(f"v_lshlrev_b32 v{t1}, 4, v{t1}")
    p(f"v_and_b32 v{t2}, 1, v{G}")
    p(f"v_lshl_add_u32 v{t1}, v{t2}, 2, v{t1}")
    p(f"v_mov_b32 v59, v{t1}")
    p(f"v_lshrrev_b32 v{t2}, 2, v{C}")
    p(f"v_add_u32 v{t1}, v{t1}, v{t2}")
    p(f"v_mul_u32_u24 v{t1}, 40, v{t1}")
    p(f"v_and_b32 v{t2}, 1, v{C}")
    p(f"v_lshl_add_u32 v{t1}, v{t2}, 3, v{t1}")
    p(f"v_add_u32 v{vXq}, {L_X}, v{t1}")
    p(f"v_lshrrev_b32 v{t1}, 1, v{G}")
    p(f"v_lshl_add_u32 v{t1}, v{t1}, 4, v{C}")
    p(f"v_mul_u32_u24 v{t1}, 144, v{t1}")
    p(f"v_and_b32 v{t2}, 1, v{G}")
    p(f"v_lshl_add_u32 v{t1}, v{t2}, 4, v{t1}")
    p(f"s_lshl_b32 s{sB}, s{sWV}, 5")
    p(f"s_add_u32 s{sB}, s{sB}, {L_R}")
    p(f"v_add_u32 v{vRw}, s{sB}, v{t1}")
    p(f"v_and_b32 v{t1}, 3, v{L}")
    p(f"v_mul_u32_u24 v{t1}, 288, v{t1}")
    p(f"v_and_b32 v{t2}, 28, v{L}")
    p(f"v_add_u32 v{t1}, v{t1}, v{t2}")
    p(f"v_lshrrev_b32 v{t2}, 5, v{L}")
    p(f"v_mul_u32_u24 v{t2}, 1152, v{t2}")
    p(f"v_add_u32 v{t1}, v{t1}, v{t2}")
    p(f"s_lshr_b32 s{sB}, s{sWV}, 1")
    p(f"s_mul_i32 s{sB}, s{sB}, 2304")
    p(f"s_add_u32 s{sB}, s{sB}, {L_R}")
    p(f"v_add_u32 v{vRr}, s{sB}, v{t1}")
    p(f"v_mov_b32 v{t1}, 0x4444")
    p(f"v_mov_b32 v{t2}, 0xeeee")
    p(f"v_cndmask_b32 v{vIdx}, v{t2}, v{t1}, s[70:71]")
    for k in range(4):
        p(f"v_mov_b32 v{vONE + k}, 0x3f803f80")
        p(f"v_mov_b32 v{vSENT + k}, -1")
    p(f"v_cndmask_b32 v{vONEM}, 0, v{vONE}, s[72:73]")
    p(f"v_cndmask_b32 v{vONEM + 1}, 0, v{vONE}, s[72:73]")
    p(f"v_mov_b32 v{t1}, 0x3f80")
    p(f"v_mov_b32 v{t2}, 0x3f800000")
    p(f"v_and_b32 v{t0}, 1, v{L}")
    p(f"v_cmp_eq_u32 vcc, 1, v{t0}")
    p(f"v_cndmask_b32 v{t1}, v{t1}, v{t2}, vcc")
    p(f"v_and_b32 v{t0}, 2, v{L}")
    p(f"v_cmp_eq_u32 vcc, 0, v{t0}")
    p(f"v_cndmask_b32 v{vID}, 0, v{t1}, vcc")
    p(f"v_cndmask_b32 v{vID + 1}, v{t1}, 0, vcc")
    p(f"v_lshlrev_b32 v{t0}, 4, v{L}")
    p(f"s_mul_i32 s{sB}, s{sWV}, {SLOT:#x}")
    p(f"s_add_u32 s{sB}, s{sB}, s{sRB}")
    p(f"s_lshl_b32 s{sT3}, s{sR}, 11")
    p(f"s_add_u32 s67, s{sB}, s{sT3}")
    p(f"s_add_u32 s67, s67, {R_S:#x}")
    p(f"buffer_store_dwordx4 v[{vSENT}:{vSENT + 3}], v{t0}, s[{sWS}:{sWS + 3}], s67 offen sc1")
    p(f"buffer_store_dwordx4 v[{vSENT}:{vSENT + 3}], v{t0}, s[{sWS}:{sWS + 3}], s67 offen offset:1024 sc1")
    p(f"s_lshl_b32 s{sT3}, s{sR}, 10")
    p(f"s_add_u32 s68, s{sB}, s{sT3}")
    p(f"s_add_u32 s68, s68, {R_O:#x}")
    p(f"buffer_store_dwordx4 v[{vSENT}:{vSENT + 3}], v{t0}, s[{sWS}:{sWS + 3}], s68 offen sc1")
    p(f"v_cndmask_b32 v{t1}, v{t3}, v{t0}, s[72:73]")
    p(f"s_lshl_b32 s{sT3}, s{sR}, 9")
    p(f"s_add_u32 s69, s{sB}, s{sT3}")
    p(f"buffer_store_dwordx4 v[{vSENT}:{vSENT + 3}], v{t1}, s[{sWS}:{sWS + 3}], s69 offen sc1")
    p(f"s_add_u32 s67, s69, {R_MX:#x}")
    p(f"buffer_store_dwordx4 v[{vSENT}:{vSENT + 3}], v{t1}, s[{sWS}:{sWS + 3}], s67 offen sc1")
    p(f"v_mov_b32 v{t1}, 0")
    p("s_mov_b64 exec, 1")
    p(f"buffer_store_dword v{t1}, off, s[{sWS}:{sWS + 3}], s{sFO} sc1")
    p(f"buffer_store_dword v{t1}, off, s[{sWS}:{sWS + 3}], s{sFM} sc1")
    p("s_mov_b64 exec, -1")
    p(f"s_lshl_b32 s67, s{sR}, 11")
    p(f"s_add_u32 s67, s67, {R_S:#x}")
    p(f"s_lshl_b32 s68, s{sR}, 10")
    p(f"s_add_u32 s68, s68, {R_O:#x}")
    p(f"s_cmp_eq_u32 s{sWV}, 1")
    p(f"s_cselect_b32 s67, s68, s67")
    p(f"s_lshl_b32 s68, s{sR}, 9")
    p(f"s_cmp_eq_u32 s{sWV}, 2")
    p(f"s_cselect_b32 s67, s68, s67")
    p(f"s_add_u32 s68, s68, {R_MX:#x}")
    p(f"s_cmp_eq_u32 s{sWV}, 3")
    p(f"s_cselect_b32 s67, s68, s67")
    p(f"s_add_u32 s67, s67, s{sRB}")
    p(f"s_cmp_ge_u32 s{sWV}, 2")
    p(f"s_cselect_b64 s[74:75], s[72:73], -1")
    p(f"v_add_u32 v{t1}, s67, v{t0}")
    p(f"v_cndmask_b32 v{vRst}, v{t3}, v{t1}, s[74:75]")
    p(f"v_lshrrev_b32 v{t0}, 3, v{C}")
    p(f"v_lshl_add_u32 v{t1}, v{t0}, 3, v59")
    p(f"v_bfe_u32 v{t2}, v{C}, 2, 1")
    p(f"v_add_u32 v{t1}, v{t1}, v{t2}")
    p(f"v_and_b32 v{t2}, 1, v{G}")
    p(f"v_lshl_add_u32 v{t2}, v{t0}, 1, v{t2}")
    p(f"v_lshlrev_b32 v{t2}, 1, v{t2}")
    p(f"v_bfe_u32 v{t0}, v{C}, 1, 1")
    p(f"s_lshl_b32 s{sB}, s{sWV}, 1")
    p(f"v_add_u32 v{t0}, s{sB}, v{t0}")
    p(f"v_xor_b32 v{t0}, v{t0}, v{t2}")
    p(f"v_lshlrev_b32 v{t0}, 4, v{t0}")
    p(f"v_lshl_add_u32 v{t1}, v{t1}, 7, v{t0}")
    p(f"v_and_b32 v{t0}, 1, v{C}")
    p(f"v_lshl_add_u32 v{t1}, v{t0}, 3, v{t1}")
    p(f"v_add_u32 v{vTr0}, {L_WO}, v{t1}")
    p(f"v_add_u32 v{vTr1}, {L_WO + 65536}, v{t1}")
    p(f"v_lshrrev_b32 v{t0}, 2, v{L}")
    p(f"v_and_b32 v{t1}, 9, v{t0}")
    p(f"v_bfe_u32 v{t2}, v{t0}, 1, 1")
    p(f"v_lshl_add_u32 v{t1}, v{t2}, 2, v{t1}")
    p(f"v_bfe_u32 v{t2}, v{t0}, 2, 1")
    p(f"v_lshl_add_u32 v{t1}, v{t2}, 1, v{t1}")
    p(f"v_lshrrev_b32 v{t0}, 5, v{L}")
    p(f"v_lshlrev_b32 v{t0}, 1, v{t0}")
    p(f"v_and_b32 v{t2}, 3, v{L}")
    p(f"v_xor_b32 v{t0}, v{t0}, v{t2}")
    p(f"v_lshlrev_b32 v{t0}, 4, v{t0}")
    p(f"v_lshl_add_u32 v{t1}, v{t1}, 11, v{t0}")
    p(f"s_lshl_b32 s{sB}, s{sX}, 22")
    p(f"s_lshl_b32 s{sT3}, s{sWV}, 15")
    p(f"s_add_u32 s{sB}, s{sB}, s{sT3}")
    p(f"s_lshl_b32 s{sT3}, s{sR}, 6")
    p(f"s_add_u32 s{sB}, s{sB}, s{sT3}")
    p(f"v_add_u32 v{vWog}, s{sB}, v{t1}")
    p(f"v_lshrrev_b32 v{t0}, 3, v{C}")
    p(f"v_and_b32 v{t1}, 1, v{G}")
    p(f"v_lshlrev_b32 v{t1}, 1, v{t1}")
    p(f"v_lshl_add_u32 v{t1}, v{t0}, 3, v{t1}")
    p(f"v_bfe_u32 v{t2}, v{C}, 2, 1")
    p(f"v_add_u32 v{t1}, v{t1}, v{t2}")
    p(f"v_lshlrev_b32 v{t1}, 6, v{t1}")
    p(f"v_lshl_add_u32 v{t1}, v{t0}, 5, v{t1}")
    p(f"v_and_b32 v{t2}, 3, v{C}")
    p(f"v_lshl_add_u32 v{t1}, v{t2}, 3, v{t1}")
    p(f"v_lshrrev_b32 v{t0}, 1, v{G}")
    p(f"v_lshl_add_u32 v{t1}, v{t0}, 10, v{t1}")
    p(f"s_lshl_b32 s{sT3}, s{sWV}, 15")
    p(f"s_add_u32 s{sT3}, s{sT3}, {L_WO}")
    p(f"v_add_u32 v{vWoT0}, s{sT3}, v{t1}")
    p(f"v_xor_b32 v{vWoT1}, 32, v{vWoT0}")
    vM0a = 66
    p(f"v_and_b32 v{t0}, 7, v{C}")
    p(f"v_lshlrev_b32 v{t0}, 11, v{t0}")
    p(f"v_lshl_add_u32 v{t0}, v{G}, 5, v{t0}")
    p(f"v_lshrrev_b32 v{t1}, 3, v{C}")
    p(f"v_lshl_add_u32 v{t0}, v{t1}, 4, v{t0}")
    p(f"s_lshl_b32 s{sT3}, s{sWV}, 9")
    p(f"v_add_u32 v{vM0a}, s{sT3}, v{t0}")

    def read_chunk(half, dst, isa):
        va = vTr0 if half == 0 else vTr1
        for kk in range(8):
            ks = half * 8 + kk
            for q, off in enumerate((0, 256, 4096, 4352)):
                r = dst + 8 * ks + 2 * q
                reg = a(r, 2) if isa else v(r, 2)
                p(f"ds_read_b64_tr_b16 {reg}, v{va} offset:{kk * 8192 + off}")
        p("s_waitcnt lgkmcnt(0)")
        p("s_barrier")

    p("s_waitcnt vmcnt(23)")
    p("s_barrier")
    read_chunk(0, 0, True)
    srd(p, sW, pWK, 0x800000)
    dma_chunk(0, 0, vWg, 262144)
    p("s_waitcnt vmcnt(16)")
    p("s_barrier")
    lab = p.uid("nobar")
    p(f"s_cmp_lg_u32 s{sWV}, 0")
    p(f"s_cbranch_scc1 {lab}")
    p("s_mov_b64 exec, 1")
    p(f"v_mov_b32 v{t0}, 1")
    p(f"buffer_atomic_add v{t0}, off, s[{sDBG}:{sDBG + 3}], 0 offset:{D_CBAR * 4} sc1")
    p("s_mov_b64 exec, -1")
    p("s_waitcnt vmcnt(0)")
    p.label(lab)
    read_chunk(1, 0, True)
    dma_chunk(1, 512 * 8192, vWg, 262144)
    p("s_waitcnt vmcnt(16)")
    p("s_barrier")
    read_chunk(0, 128, True)
    srd(p, sW, pWV, 0x800000)
    dma_chunk(0, 0, vWg, 262144)
    p("s_waitcnt vmcnt(16)")
    p("s_barrier")
    read_chunk(1, 128, True)
    dma_chunk(1, 512 * 8192, vWg, 262144)
    p("s_waitcnt vmcnt(16)")
    p("s_barrier")
    read_chunk(0, vWV, False)
    srd(p, sW, pWO, 0x800000)
    dma_chunk(0, 0, vWog, 64 * 2048)
    p("s_waitcnt vmcnt(16)")
    p("s_barrier")
    read_chunk(1, vWV, False)
    dma_chunk(1, 1024 * 2048, vWog, 64 * 2048)
    p("s_waitcnt vmcnt(0)")
    p("s_barrier")
    for kk in range(8):
        b = 68 + 16 * (kk % 2)
        for t in range(2):
            va = vWoT0 if t == 0 else vWoT1
            for q, off in enumerate((0, 256, 2048, 2304)):
                p(f"ds_read_b64_tr_b16 {v(b + 8 * t + 2 * q, 2)}, v{va} offset:{kk * 4096 + off}")
        p("s_waitcnt lgkmcnt(0)")
        for q in range(4):
            p(f"ds_write_b128 v{vWo}, {v(b + 4 * q, 4)} offset:{kk * 4096 + q * 1024}")
    srd(p, sW, pMEM, 16384)
    p(f"v_mov_b32 v{vT0}, v{vM0a}")
    for kk in range(4):
        p(f"buffer_load_dwordx4 {v(vF + 4 * kk, 4)}, v{vT0}, s[{sW}:{sW + 3}], 0 offen offset:{kk * 128}")
    lab = p.uid("cbar")
    p(f"s_mov_b32 s{sBUD}, 0x40000")
    p.label(lab)
    p(f"buffer_load_dword v{vT1}, off, s[{sDBG}:{sDBG + 3}], 0 offset:{D_CBAR * 4} sc1")
    p("s_waitcnt vmcnt(0)")
    p(f"v_readfirstlane_b32 s{sT0}, v{vT1}")
    p(f"s_cmp_ge_u32 s{sT0}, 64")
    p(f"s_cbranch_scc1 {lab}_ok")
    p(f"s_sub_u32 s{sBUD}, s{sBUD}, 1")
    p(f"s_cmp_lg_u32 s{sBUD}, 0")
    p(f"s_cbranch_scc1 {lab}")
    p.label(lab + "_ok")
    p(f"s_lshr_b32 s{sKVB}, s{sR}, 1")
    p(f"s_lshl_b32 s{sT3}, s{sX}, 4")
    p(f"s_add_u32 s{sKVB}, s{sKVB}, s{sT3}")
    p(f"s_lshl_b32 s{sKVB}, s{sKVB}, 6")
    p(f"s_add_u32 s{sKVB}, s{sKVB}, {FL2 + 40:#x}")
    p(f"s_mov_b32 s{sKVC}, s{sKVB}")
    if kvwait:
        for nm, tgt, msk, ld in (
                ("xn0", 32, 28, f"buffer_load_dword v{vT1}, v{vT0}, s[{sDBG}:{sDBG + 3}], 0 offen offset:{D_XN * 4} sc1"),
                ("kv0", 1, 4, f"buffer_load_dword v{vT1}, v{vT0}, s[{sWS}:{sWS + 3}], s{sKVC} offen sc1")):
            lab = p.uid(nm)
            p(f"v_and_b32 v{vT0}, {msk}, v{vFr}")
            p(f"s_mov_b32 s{sBUD}, 0x40000")
            p.label(lab)
            p(ld)
            p("s_waitcnt vmcnt(0)")
            p(f"v_cmp_gt_u32 vcc, {tgt}, v{vT1}")
            p(f"s_cbranch_vccz {lab}_ok")
            p(f"s_sub_u32 s{sBUD}, s{sBUD}, 1")
            p(f"s_cmp_lg_u32 s{sBUD}, 0")
            p(f"s_cbranch_scc1 {lab}")
            p.label(lab + "_ok")
    p(f"s_mov_b32 s{sBUD}, 0x40000")
    p(f"s_mov_b32 s{sS}, 0")
    p(f"s_mov_b32 s{sS1}, 1")
    p(f"s_mov_b32 s{sCUR}, 0")
    p(f"s_mov_b32 s{sCUR4}, 4096")
    p(f"s_mov_b32 s{sNXT}, {SLOT:#x}")
    p("s_mov_b32 s93, 0")
    p(f"s_mov_b32 s{sPRV}, {3 * SLOT:#x}")
    p(f"s_mov_b32 s{sKV0}, 0")
    p(f"s_mov_b32 s{sKV1}, 0x40000")
    p(f"s_mov_b32 s{sKM}, 0")
    p(f"s_mov_b32 s{sKMP}, 0x4000000")
    for k in range(4):
        p(f"s_mov_b32 s{sCNT + k}, 0")
    p(f"s_lshl_b32 s{sKXM0}, s{sWV}, 10")
    p(f"s_add_u32 s{sKXM0}, s{sKXM0}, {L_KX}")
    p(f"s_mov_b32 m0, s{sKXM0}")
    p(f"s_xor_b32 s{sKXM0}, s{sKXM0}, 4096")
    p(f"buffer_load_dwordx4 v{vKxg}, s[{sWS}:{sWS + 3}], s{sKV0} offen sc1 lds")
    for k in range(12):
        p(f"v_mov_b32 v{vDq + k}, 0")
    p("s_waitcnt vmcnt(0)")


def retry_head(p, site, cont):
    p(f"s_add_u32 s{sCNT + site}, s{sCNT + site}, 1")
    p(f"s_cmp_eq_u32 s{sBUD}, 0")
    p(f"s_cbranch_scc1 {cont}")
    p(f"s_sub_u32 s{sBUD}, s{sBUD}, 1")


def check_sent(p, regs, tmp, target):
    regs = list(regs)
    first = regs[:3]
    rest = regs[3:]
    if len(first) == 3:
        p(f"v_max3_u32 v{tmp}, v{first[0]}, v{first[1]}, v{first[2]}")
    else:
        p(f"v_max_u32 v{tmp}, v{first[0]}, v{first[1]}")
    while rest:
        if len(rest) >= 2:
            p(f"v_max3_u32 v{tmp}, v{tmp}, v{rest[0]}, v{rest[1]}")
            rest = rest[2:]
        else:
            p(f"v_max_u32 v{tmp}, v{tmp}, v{rest[0]}")
            rest = []
    p(f"v_cmp_eq_u32 vcc, -1, v{tmp}")
    p(f"s_cbranch_vccnz {target}")


def masked_reload(q, items):
    for k, (regs, _) in enumerate(items):
        if len(regs) == 1:
            q(f"v_cmp_eq_u32 s[{sMK + 2 * k}:{sMK + 2 * k + 1}], -1, v{regs[0]}")
        else:
            q(f"v_max_u32 v{vT0}, v{regs[0]}, v{regs[1]}")
            q(f"v_cmp_eq_u32 s[{sMK + 2 * k}:{sMK + 2 * k + 1}], -1, v{vT0}")
    for k, (_, ld) in enumerate(items):
        q(f"s_mov_b64 exec, s[{sMK + 2 * k}:{sMK + 2 * k + 1}]")
        q(ld)
    q("s_mov_b64 exec, -1")


def chain_loop(p, w, tag, sc_all=False, stamp=None, done="DONE", opt=None):
    opt = opt or {}
    WS = f"s[{sWS}:{sWS + 3}]"
    loc = " sc1" if sc_all else ""
    tail = Prog()

    def st(k):
        if stamp is not None and (k in stamp):
            p(f"s_memtime s[{sTS + 2 * k}:{sTS + 2 * k + 1}]")

    def F(u):
        return v(vF + 4 * u, 4)

    def ks_of(u):
        return (4 * w + u) % 16

    def smq(u):
        p(f"v_smfmac_f32_16x16x64_bf16 {v(vDq, 4)}, {F(u)}, {a(8 * ks_of(u), 8)}, v{vIdx}")

    def smk(u):
        p(f"v_smfmac_f32_16x16x64_bf16 {v(vDk, 4)}, {F(u)}, {a(128 + 8 * ks_of(u), 8)}, v{vIdx}")

    def smv(u, reg=None):
        r = F(u) if reg is None else v(reg, 4)
        p(f"v_smfmac_f32_16x16x64_bf16 {v(vDv, 4)}, {r}, {v(vWV + 8 * ks_of(u), 8)}, v{vIdx}")

    def stw(kk):
        p(f"ds_write_b128 v{vSt}, {F(kk)} offset:{L_ST + (4 * w + kk) * 1024}")

    def mo_ld(kk):
        return f"buffer_load_dwordx4 {v(vMO + 4 * kk, 4)}, v{vMOr}, {WS}, s{sCUR} offen offset:{kk * 1024} sc1"

    def mx_ld(kk):
        return f"buffer_load_dwordx4 {v(vMX + 4 * kk, 4)}, v{vMXr}, {WS}, s{sCUR} offen offset:{kk * 1024} sc1"

    def flag_store(sa, val):
        p(f"v_mov_b32 v{vT0}, {val}")
        p("s_mov_b64 exec, 1")
        p(f"buffer_store_dword v{vT0}, off, {WS}, s{sa}{loc}")
        p("s_mov_b64 exec, -1")

    def probe(sa, val, site, nm):
        p.label(f"{tag}_{nm}_probe")
        p(f"buffer_load_dword v{vT1}, v{vFr}, {WS}, s{sa} offen sc1")
        p("s_waitcnt vmcnt(0)")
        p(f"v_cmp_gt_u32 vcc, {val}, v{vT1}")
        p(f"s_cbranch_vccnz {tag}_{nm}_again")
        p.label(f"{tag}_{nm}_go")
        tail.label(f"{tag}_{nm}_again")
        tail(f"s_add_u32 s93, s93, 1")
        tail(f"s_cmp_eq_u32 s{sBUD}, 0")
        tail(f"s_cbranch_scc1 {tag}_{nm}_go")
        tail(f"s_sub_u32 s{sBUD}, s{sBUD}, 1")
        tail(f"s_branch {tag}_{nm}_probe")

    def probe_pipe(sa, val, nm, regs):
        K = len(regs)
        for k in range(K - 1):
            p(f"buffer_load_dword v{regs[k]}, v{vFr}, {WS}, s{sa} offen sc1")
        p.label(f"{tag}_{nm}_probe")
        for k in range(K):
            p(f"buffer_load_dword v{regs[(k + K - 1) % K]}, v{vFr}, {WS}, s{sa} offen sc1")
            p(f"s_waitcnt vmcnt({K - 1})")
            p(f"v_cmp_gt_u32 vcc, {val}, v{regs[k]}")
            p(f"s_cbranch_vccz {tag}_{nm}_go")
        p(f"s_add_u32 s93, s93, {K}")
        p(f"s_sub_u32 s{sBUD}, s{sBUD}, 1")
        p(f"s_cmp_gt_i32 s{sBUD}, 0")
        p(f"s_cbranch_scc1 {tag}_{nm}_probe")
        p(f"s_mov_b32 s{sBUD}, 0")
        p.label(f"{tag}_{nm}_go")

    KMr = vFREE
    VMo = 21

    def slow_ops():
        p(f"s_mov_b32 m0, s{sKXM0}")
        p(f"s_xor_b32 s{sKXM0}, s{sKXM0}, 4096")
        p(f"buffer_load_dwordx4 v{vKxg}, {WS}, s{sKV1} offen sc1 lds")
        p(f"buffer_load_dwordx4 {v(vVX, 4)}, v{vVx}, {WS}, s{sKV0} offen sc1")

    p.label(f"{tag}_entry")
    if w == 3:
        p(f"v_mov_b32 v{vKM}, 1")
    for kk in range(4):
        stw(kk)
    slow_ops()
    p(f"s_branch {tag}_apost")

    p.label(f"{tag}_top")
    st(0)
    if w < 2:
        for hh in range(2):
            p(f"ds_read_b64_tr_b16 {v(KMr + 2 * hh, 2)}, v{vXq} offset:{w * 1280 + hh * 320 + 16}")
    for k in range(12):
        p(f"v_mov_b32 v{vDq + k}, 0")
    mmode = opt.get("m", "flag")
    if mmode == "flag":
        if w == 0:
            probe(sFMr, f"s{sS}", 0, "m")
        p("s_barrier")
        for kk in range(4):
            p(mo_ld(kk))
        for kk in range(4):
            p(mx_ld(kk))
    elif mmode == "flag2":
        if w == 0:
            p("s_waitcnt vmcnt(0)")
            for kk in range(4):
                p(mo_ld(kk))
            probe(sFMr, f"s{sS}", 0, "m")
        else:
            if w == 3:
                p("s_waitcnt vmcnt(0)")
            for kk in range(4):
                p(mo_ld(kk))
        p("s_barrier")
        for kk in range(4):
            p(mx_ld(kk))
    elif mmode in ("flagp", "flagpx", "flagpa", "flagpe"):
        if mmode == "flagpe":
            if w in (0, 3):
                p("s_waitcnt vmcnt(0)")
            for kk in range(4):
                p(mo_ld(kk))
        if w == 0:
            probe_pipe(sFMr, f"s{sS}", "m", [120 + k for k in range(opt.get("pk", 3))])
        elif mmode == "flagpa":
            p("s_waitcnt vmcnt(0)")
        p("s_barrier")
        lds_ = [mo_ld(kk) for kk in range(4)] * (mmode != "flagpe") + [mx_ld(kk) for kk in range(4)]
        if mmode == "flagpx":
            lds_ = lds_[4:] + lds_[:4]
        for x in lds_:
            p(x)
    elif mmode == "ackx":
        p("s_waitcnt vmcnt(0)")
        p("s_barrier")
        for kk in range(4):
            p(mx_ld(kk))
        for kk in range(4):
            p(mo_ld(kk))
    elif mmode == "ack":
        p("s_waitcnt vmcnt(0)")
        p("s_barrier")
        for kk in range(4):
            p(mo_ld(kk))
        for kk in range(4):
            p(mx_ld(kk))
    elif mmode == "ack2":
        p("s_waitcnt vmcnt(0)")
        if w in (0, 3):
            for kk in range(4):
                p(mo_ld(kk))
        p("s_barrier")
        if w in (1, 2):
            for kk in range(4):
                p(mo_ld(kk))
        for kk in range(4):
            p(mx_ld(kk))
    st(1)
    p("s_waitcnt vmcnt(0)" if mmode.endswith("x") else "s_waitcnt vmcnt(4)")
    p.label(f"{tag}_mo_chk")
    check_sent(p, [vMO + 4 * k for k in range(4)], vT0, f"{tag}_mo_retry")
    p.label(f"{tag}_mo_ok")
    tail.label(f"{tag}_mo_retry")
    retry_head(tail, 0, f"{tag}_mo_ok")
    masked_reload(tail, [([vMO + 4 * k], mo_ld(k)) for k in range(4)])
    tail("s_waitcnt vmcnt(0)")
    tail(f"s_branch {tag}_mo_chk")
    for i in range(8):
        p(f"v_mfma_f32_4x4x4_16b_bf16 {v(vACC + 4 * i, 4)}, {v(vID, 2)}, {v(vMO + 2 * i, 2)}, 0")
    st(2)
    p("s_waitcnt vmcnt(0) lgkmcnt(0)")
    p.label(f"{tag}_mx_chk")
    check_sent(p, [vMX + 4 * k for k in range(4)], vT0, f"{tag}_mx_retry")
    p.label(f"{tag}_mx_ok")
    tail.label(f"{tag}_mx_retry")
    retry_head(tail, 1, f"{tag}_mx_ok")
    masked_reload(tail, [([vMX + 4 * k], mx_ld(k)) for k in range(4)])
    tail("s_waitcnt vmcnt(0)")
    tail(f"s_branch {tag}_mx_chk")
    st(3)

    def acc(i):
        p(f"v_mfma_f32_4x4x4_16b_bf16 {v(vACC + 4 * i, 4)}, {v(vID, 2)}, {v(vMX + 2 * i, 2)}, {v(vACC + 4 * i, 4)}")

    def cv(i):
        p(f"v_cvt_pk_bf16_f32 v{vF + 2 * i}, v{vACC + 4 * i}, v{vACC + 4 * i + 1}")
        p(f"v_cvt_pk_bf16_f32 v{vF + 2 * i + 1}, v{vACC + 4 * i + 2}, v{vACC + 4 * i + 3}")

    acc(0); acc(1); acc(2)
    slow_ops()
    acc(3); acc(4); acc(5)
    cv(0)
    acc(6)
    cv(1)
    stw(0)
    acc(7)
    cv(2); cv(3); stw(1)
    cv(4); cv(5); stw(2)
    cv(6); cv(7); stw(3)
    p.label(f"{tag}_apost")
    smq(0); smk(0); smq(1); smk(1)
    p("s_waitcnt lgkmcnt(0)")
    p("s_barrier")
    st(4)
    for u in range(4, 16):
        p(f"ds_read_b128 {F(u)}, v{vSt} offset:{L_ST + ks_of(u) * 1024}")
        if u == 7:
            smq(2)
        if u == 10:
            smk(2)
        if u == 13:
            smq(3)
    smk(3)
    extra = []
    rsc = " sc1" if (w == 3 or sc_all) else ""
    if w < 2:
        extra.append(f"buffer_store_dwordx4 {v(KMr, 4)}, v{vKM}, {WS}, s{sKMP} offen sc1")
    extra.append(f"buffer_store_dword v{VMo}, v{vVM}, {WS}, s{sKMP} offen sc1")
    extra.append(f"buffer_store_dwordx4 {v(vSENT, 4)}, v{vRst}, {WS}, s{sPRV} offen{rsc}")
    if w == 0:
        extra.append(f"buffer_store_dwordx4 {v(vSENT, 4)}, v{vRst}, {WS}, s{sPRV} offen offset:1024{rsc}")
    kvchk = w == 3 and opt.get("kv", True)
    vKVF = vKM
    kv_ld = ["s_mov_b64 exec, 3", f"buffer_load_dword v{vKVF}, v{vFr}, {WS}, s{sKVC} offen sc1", "s_mov_b64 exec, -1"]
    if kvchk:
        extra.append(kv_ld)
    for u in range(4, 16):
        p(f"s_waitcnt lgkmcnt({15 - u})")
        smq(u)
        if extra:
            x = extra.pop(0)
            for y in (x if isinstance(x, list) else [x]):
                p(y)
        smk(u)
    assert not extra
    st(5)
    KX, Q2, K2, SO, SP = vF, vFREE, vF + 16, vF + 24, vF

    def qk_to_lds():
        for r in range(4):
            p(f"v_permlane32_swap_b32 v{vDq + r}, v{vDk + r}")
        for r in range(4):
            p(f"v_add_f32 v{vDq + r}, v{vDq + r}, v{vDk + r}")
        p(f"v_cvt_pk_bf16_f32 v{vDq}, v{vDq}, v{vDq + 1}")
        p(f"v_cvt_pk_bf16_f32 v{vDq + 1}, v{vDq + 2}, v{vDq + 3}")
        p(f"ds_write_b64 v{vXw}, {v(vDq, 2)}")

    p(f"s_cmp_eq_u32 s{sS}, 63")
    p(f"s_cbranch_scc1 {tag}_last")
    for b in range(4):
        p(f"ds_read_b128 {v(KX + 4 * b, 4)}, v{vKxl} offset:{b * 1024}")
    qk_to_lds()
    p(f"v_xor_b32 v{vKxl}, 4096, v{vKxl}")
    p("s_waitcnt lgkmcnt(0)")
    p("s_barrier")
    for ks in range(2):
        for hh in range(2):
            p(f"ds_read_b64_tr_b16 {v(Q2 + 4 * ks + 2 * hh, 2)}, v{vXq} offset:{ks * 1280 + hh * 320}")
    for ks in range(2):
        for hh in range(2):
            p(f"ds_read_b64_tr_b16 {v(K2 + 4 * ks + 2 * hh, 2)}, v{vXq} offset:{ks * 1280 + hh * 320 + 16}")
    smv(9); smv(10); smv(11)

    def tile(t):
        for ks in range(2):
            A = v(K2 + 4 * ks, 4) if t == 2 else v(KX + 8 * t + 4 * ks, 4)
            C = "0" if ks == 0 else v(SO + 4 * t, 4)
            p(f"v_mfma_f32_16x16x32_bf16 {v(SO + 4 * t, 4)}, {A}, {v(Q2 + 4 * ks, 4)}, {C}")

    first = w % 3
    order = [first] + [t for t in (0, 1, 2) if t != first]
    if first == 2:
        p("s_waitcnt lgkmcnt(0)")
        tile(2); tile(0)
        p(f"buffer_store_dwordx4 {v(SO + 4 * first, 4)}, v{vSw}, {WS}, s{sCUR} offen{loc}")
        tile(1)
    else:
        p("s_waitcnt lgkmcnt(4)")
        tile(order[0]); tile(order[1])
        p(f"buffer_store_dwordx4 {v(SO + 4 * first, 4)}, v{vSw}, {WS}, s{sCUR} offen{loc}")
        p("s_waitcnt lgkmcnt(0)")
        tile(2)
    st(6)
    RE = {u: (vF + 4 * u if u < 6 else vFREE + 4 * (u - 6)) for u in range(9)}
    for u in range(9):
        p(f"ds_read_b128 {v(RE[u], 4)}, v{vSt} offset:{L_ST + ks_of(u) * 1024}")
        if u % 2 == 1:
            smv(12 + u // 2)
    for u in range(3):
        p(f"s_waitcnt lgkmcnt({8 - u})")
        smv(u, RE[u])
    WB = [vF + 36 + 8 * i for i in range(3)] + [vFREE]
    WB.append(vF + 24)
    NB = len(WB)

    def wo_read(n, q=p):
        b = WB[n % NB]
        for hh in range(2):
            q(f"ds_read_b128 {v(b + 4 * hh, 4)}, v{vWo} offset:{n * 2048 + hh * 1024}")

    def s_ld(t):
        return f"buffer_load_dwordx4 {v(SP + 4 * t, 4)}, v{vSr}, {WS}, s{sCUR} offen offset:{t * 512} sc1"

    spos = opt.get("s_pos", 9)
    sack = opt.get("s_ack", True)

    def s_issue():
        if stamp is not None:
            stamp_flush(p, w, stamp)
            if sack:
                p("s_waitcnt vmcnt(1)")
        elif sack:
            p("s_waitcnt vmcnt(0)")
        for t in range(3):
            p(s_ld(t))
        if kvchk:
            assert sack
            p.label(f"{tag}_kv_chk")
            p(f"v_cmp_eq_u32 vcc, 0, v{vKVF}")
            p(f"s_cbranch_vccnz {tag}_kv_retry")
            p.label(f"{tag}_kv_ok")
            tail.label(f"{tag}_kv_retry")
            tail(f"s_cmp_eq_u32 s{sBUD}, 0")
            tail(f"s_cbranch_scc1 {tag}_kv_ok")
            tail(f"s_sub_u32 s{sBUD}, s{sBUD}, 1")
            for y in kv_ld:
                tail(y)
            tail("s_waitcnt vmcnt(0)")
            tail(f"s_branch {tag}_kv_chk")

    p("s_waitcnt lgkmcnt(0)")
    for u in range(3, 10):
        if u == spos:
            s_issue()
        if u < 9:
            smv(u, RE[u])
        if u < 6:
            wo_read(u - 3)
    wo_read(3)
    VMc = 64
    p(f"v_cvt_pk_bf16_f32 v{VMc}, v{vDv}, v{vDv + 1}")
    p(f"v_cvt_pk_bf16_f32 v{VMc + 1}, v{vDv + 2}, v{vDv + 3}")

    def vm_pack():
        p(f"v_permlane32_swap_b32 v{vDv}, v{vDv + 2}")
        p(f"v_permlane32_swap_b32 v{vDv + 1}, v{vDv + 3}")
        p(f"v_add_f32 v{vDv}, v{vDv}, v{vDv + 2}")
        p(f"v_add_f32 v{vDv + 1}, v{vDv + 1}, v{vDv + 3}")
        p(f"v_cvt_pk_bf16_f32 v{VMo}, v{vDv}, v{vDv + 1}")

    vm_pack()
    p(f"s_mov_b32 s{sT0}, {fhex(CEXP)}")
    st(7)
    p("s_waitcnt vmcnt(0)")
    p.label(f"{tag}_s_chk")
    for k in range(12):
        p(f"v_add_f32 v{SP + k}, v{SP + k}, v{SO + k}")
    p(f"v_maximum3_f32 v{vT0}, v{SP}, v{SP + 1}, v{SP + 2}")
    p(f"v_maximum3_f32 v{vT1}, v{SP + 3}, v{SP + 4}, v{SP + 5}")
    p(f"v_maximum3_f32 v{vT0}, v{vT0}, v{SP + 6}, v{SP + 7}")
    p(f"v_maximum3_f32 v{vT1}, v{vT1}, v{SP + 8}, v{SP + 9}")
    p(f"v_maximum3_f32 v{vT0}, v{vT0}, v{SP + 10}, v{SP + 11}")
    p(f"v_maximum3_f32 v{vT0}, v{vT0}, v{vT1}, v{vT1}")
    p(f"v_mov_b32 v{vT1}, v{vT0}")
    p(f"v_cmp_u_f32 vcc, v{vT0}, v{vT0}")
    p(f"s_cbranch_vccnz {tag}_s_retry")
    p.label(f"{tag}_s_ok")
    tail.label(f"{tag}_s_retry")
    retry_head(tail, 2, f"{tag}_s_ok")
    for t in range(3):
        tail(s_ld(t))
    tail("s_waitcnt vmcnt(0)")
    tail(f"s_branch {tag}_s_chk")
    st(8)
    p(f"v_permlane32_swap_b32 v{vT0}, v{vT1}")
    p(f"v_max_f32 v{vT0}, v{vT0}, v{vT1}")
    p(f"v_mov_b32 v{vT1}, v{vT0}")
    p(f"v_permlane16_swap_b32 v{vT0}, v{vT1}")
    p(f"v_max_f32 v{vT0}, v{vT0}, v{vT1}")
    p(f"v_mul_f32 v{vT0}, {fhex(-CEXP)}, v{vT0}")
    P2, P01 = 66, 68
    O, LL = vDq, vDk
    for k in range(8, 12):
        p(f"v_fma_f32 v{SP + k}, v{SP + k}, s{sT0}, v{vT0}")
    for k in range(8, 12):
        p(f"v_exp_f32 v{SP + k}, v{SP + k}")
    for k in range(0, 4):
        p(f"v_fma_f32 v{SP + k}, v{SP + k}, s{sT0}, v{vT0}")
    p(f"v_cvt_pk_bf16_f32 v{P2}, v{SP + 8}, v{SP + 9}")
    p(f"v_cvt_pk_bf16_f32 v{P2 + 1}, v{SP + 10}, v{SP + 11}")
    for k in range(4, 8):
        p(f"v_fma_f32 v{SP + k}, v{SP + k}, s{sT0}, v{vT0}")
    p(f"v_mfma_f32_16x16x16_bf16 {v(LL, 4)}, {v(vONEM, 2)}, {v(P2, 2)}, 0")
    for k in range(0, 4):
        p(f"v_exp_f32 v{SP + k}, v{SP + k}")
    p(f"v_mfma_f32_16x16x16_bf16 {v(O, 4)}, {v(VMc, 2)}, {v(P2, 2)}, 0")
    for k in range(4, 8):
        p(f"v_exp_f32 v{SP + k}, v{SP + k}")
    for k in range(4):
        p(f"v_cvt_pk_bf16_f32 v{P01 + k}, v{SP + 2 * k}, v{SP + 2 * k + 1}")
    p(f"v_mfma_f32_16x16x32_bf16 {v(LL, 4)}, {v(vONE, 4)}, {v(P01, 4)}, {v(LL, 4)}")
    p(f"v_mfma_f32_16x16x32_bf16 {v(O, 4)}, {v(vVX, 4)}, {v(P01, 4)}, {v(O, 4)}")
    wo_read(4)
    p(f"v_rcp_f32 v{vT0}, v{LL}")
    for r in range(4):
        p(f"v_mul_f32 v{O + r}, v{O + r}, v{vT0}")
    OP = 114
    p(f"v_cvt_pk_bf16_f32 v{OP}, v{O}, v{O + 1}")
    p(f"v_cvt_pk_bf16_f32 v{OP + 1}, v{O + 2}, v{O + 3}")
    p(f"buffer_store_dwordx2 {v(OP, 2)}, v{vOw}, {WS}, s{sCUR} offen{loc}")
    omode = opt.get("o", "flag")
    if omode.startswith("flag"):
        flag_store(sFO, f"s{sS1}")
    st(9)
    E0, E1 = vDq, vDk
    for k in range(8):
        p(f"v_mov_b32 v{E0 + k}, 0")
    OL = [52, 56, 60, 64, 68, 72, 84, 124]

    def o_ld(kk):
        so = sCUR if kk < 4 else sCUR4
        return f"buffer_load_dwordx4 {v(OL[kk], 4)}, v{vOr}, {WS}, s{so} offen offset:{(kk % 4) * 1024} sc1"

    if omode == "flag":
        probe(sFOr, f"s{sS1}", 3, "o")
    elif omode == "ack":
        p("s_waitcnt vmcnt(0)")
    elif omode == "flagp":
        probe_pipe(sFOr, f"s{sS1}", "o", [vT0, vT1])
    elif omode == "now":
        pass
    elif omode == "ackbar":
        p("s_waitcnt vmcnt(0)")
        p("s_barrier")
    for kk in range(8):
        p(o_ld(kk))
    st(10)
    groups = [(0, 1), (2, 3), (4, 5), (6,), (7,)]

    class WoRing:
        def __init__(s, pend, free, done):
            s.pend, s.free, s.done = list(pend), list(free), done

        def fill(s, q, need):
            have = {n for n, _ in s.pend}
            for n in need:
                if not s.free:
                    break
                if n not in have:
                    b = s.free.pop(0)
                    for hh in range(2):
                        q(f"ds_read_b128 {v(b + 4 * hh, 4)}, v{vWo} offset:{n * 2048 + hh * 1024}")
                    s.pend.append((n, b))

        def use(s, q, n, need):
            pos = [k for k, (m, _) in enumerate(s.pend) if m == n][0]
            b = s.pend[pos][1]
            if pos >= s.done:
                q(f"s_waitcnt lgkmcnt({2 * (len(s.pend) - pos - 1)})")
                s.done = pos + 1
            E = E0 if n % 2 == 0 else E1
            q(f"v_smfmac_f32_16x16x64_bf16 {v(E, 4)}, {v(OL[n // 2], 4)}, {v(b, 8)}, v{vIdx}")
            s.pend.pop(pos)
            s.done -= 1
            s.free.append(b)
            s.fill(q, need)

        def drop(s, ns):
            for k in reversed(range(len(s.pend))):
                if s.pend[k][0] in ns and k < s.done:
                    s.free.append(s.pend.pop(k)[1])
                    s.done -= 1

        def copy(s):
            return WoRing(s.pend, s.free, s.done)

    def frags(gs):
        return [2 * kk + t for g in gs for kk in g for t in range(2)]

    def o_check(q, grp, target):
        check_sent(q, [OL[kk] + i for kk in grp for i in (0, 2)], vT0, target)

    def compute(q, ring, gs):
        need = frags(gs)
        for n in frags(gs[:1]):
            need.remove(n)
            ring.use(q, n, need)

    def blocking(q, nm, grp):
        q.label(f"{nm}_chk")
        o_check(q, grp, f"{nm}_retry")
        q.label(f"{nm}_ok")
        tail2.label(f"{nm}_retry")
        retry_head(tail2, 3, f"{nm}_ok")
        for kk in grp:
            tail2(o_ld(kk))
        tail2("s_waitcnt vmcnt(0)")
        tail2(f"s_branch {nm}_chk")

    tail2 = Prog()
    ring = WoRing([(n, WB[n]) for n in range(NB)], [], 0)
    defer = opt.get("defer", True)
    sDEF = sT1

    class Only:
        def __init__(s, q):
            s.q = q

        def __call__(s, x):
            if x.startswith("ds_read"):
                s.q(x)

    def again(q, gi):
        for kk in groups[gi]:
            q(o_ld(kk))
        q(f"s_add_u32 s{sCNT + 3}, s{sCNT + 3}, 1")

    for gi, grp in enumerate(groups):
        p(f"s_waitcnt vmcnt({7 - grp[-1]})")
        if not defer:
            p.label(f"{tag}_o_chk{gi}")
            o_check(p, grp, f"{tag}_o_retry{gi}")
            p.label(f"{tag}_o_ok{gi}")
            tail.label(f"{tag}_o_retry{gi}")
            retry_head(tail, 3, f"{tag}_o_ok{gi}")
            tail("s_waitcnt vmcnt(0)")
            rest = list(range(grp[0], 8))
            for part in (rest[:4], rest[4:]):
                if part:
                    masked_reload(tail, [([OL[kk], OL[kk] + 2], o_ld(kk)) for kk in part])
            tail("s_waitcnt vmcnt(0)")
            tail(f"s_branch {tag}_o_chk{gi}")
        else:
            o_check(p, grp, f"{tag}_o_late{gi}")
            q = tail
            q.label(f"{tag}_o_late{gi}")
            again(q, gi)
            if defer == 1:
                q(f"s_mov_b32 s{sDEF}, 0")
            r2 = ring.copy()
            r2.done = len(r2.pend)
            q("s_waitcnt lgkmcnt(0)")
            order = list(range(gi + 1, len(groups))) + [gi]
            og = [groups[k] for k in order]
            if len(frags(og)) > NB:
                r2.drop(frags([grp]))
            r2.fill(q, frags(og))
            for j, g2 in enumerate(order):
                nm = f"{tag}_o{gi}_{j}"
                q(f"s_waitcnt vmcnt({7 - groups[g2][-1] + len(grp) if j < len(order) - 1 else 0})")
                if defer == 2:
                    q.label(nm + "_chk")
                    o_check(q, groups[g2], nm + "_late")
                    q.label(nm + "_ok")
                    tail2.label(nm + "_late")
                    retry_head(tail2, 3, nm + "_ok")
                    tail2("s_waitcnt vmcnt(0)")
                    rest = [kk for g in og[j:] for kk in g]
                    if len(rest) <= 2:
                        for kk in rest:
                            tail2(o_ld(kk))
                    else:
                        for part in (rest[:4], rest[4:]):
                            if part:
                                masked_reload(tail2, [([OL[kk], OL[kk] + 2], o_ld(kk)) for kk in part])
                    tail2("s_waitcnt vmcnt(0)")
                    tail2(f"s_branch {nm}_chk")
                    compute(q, r2, og[j:])
                    continue
                o_check(q, groups[g2], nm + "_late")
                tail2.label(nm + "_late")
                again(tail2, g2)
                tail2(f"s_bitset1_b32 s{sDEF}, {g2}")
                compute(Only(tail2), r2.copy(), og[j:])
                tail2(f"s_branch {nm}_done")
                compute(q, r2, og[j:])
                q.label(nm + "_done")
            if defer == 2:
                q(f"s_branch {tag}_o_end")
            else:
                q(f"s_cmp_eq_u32 s{sDEF}, 0")
                q(f"s_cbranch_scc1 {tag}_o_end")
                q(f"s_branch {tag}_o_rest")
        compute(p, ring, groups[gi:])
    p.label(f"{tag}_o_end")
    if defer == 1:
        q = tail2
        q.label(f"{tag}_o_rest")
        q(f"s_cmp_eq_u32 s{sBUD}, 0")
        q(f"s_cbranch_scc1 {tag}_o_end")
        q(f"s_sub_u32 s{sBUD}, s{sBUD}, 1")
        q("s_waitcnt vmcnt(0) lgkmcnt(0)")
        for gi, grp in enumerate(groups):
            nm = f"{tag}_or{gi}"
            q(f"s_bitcmp1_b32 s{sDEF}, {gi}")
            q(f"s_cbranch_scc0 {nm}_done")
            r2 = WoRing([], WB, 0)
            r2.fill(q, frags([grp]))
            q.label(nm)
            check_sent(q, [OL[kk] + i for kk in grp for i in (0, 2)], vT0, nm + "_late")
            compute(q, r2, [grp])
            q(f"s_bitset0_b32 s{sDEF}, {gi}")
            q(f"s_branch {nm}_done")
            q.label(nm + "_late")
            again(q, gi)
            q.label(nm + "_done")
        q(f"s_cmp_eq_u32 s{sDEF}, 0")
        q(f"s_cbranch_scc1 {tag}_o_end")
        q(f"s_branch {tag}_o_rest")
    tail.items += tail2.items
    st(11)
    p(f"s_mov_b32 s{sS}, s{sS1}")
    p(f"s_add_u32 s{sS1}, s{sS1}, 1")
    p(f"s_mov_b32 s{sPRV}, s{sCUR}")
    p(f"s_mov_b32 s{sCUR}, s{sNXT}")
    p(f"s_add_u32 s{sCUR4}, s{sCUR}, 4096")
    p(f"s_add_u32 s{sNXT}, s{sNXT}, {SLOT:#x}")
    p(f"s_and_b32 s{sNXT}, s{sNXT}, {3 * SLOT:#x}")
    p(f"s_mov_b32 s{sKV0}, s{sKV1}")
    p(f"s_add_u32 s{sKV1}, s{sKV1}, 0x40000")
    for r in range(4):
        p(f"v_permlane32_swap_b32 v{E0 + r}, v{E1 + r}")
    for r in range(4):
        p(f"v_add_f32 v{E0 + r}, v{E0 + r}, v{E1 + r}")
    p(f"ds_write_b128 v{vRw}, {v(E0, 4)}")
    p(f"s_mov_b32 s{sKMP}, s{sKM}")
    p(f"s_add_u32 s{sKM}, s{sKM}, 0x10000")
    if kvchk:
        p(f"s_add_u32 s{sKVC}, s{sS}, 2")
        p(f"s_lshr_b32 s{sKVC}, s{sKVC}, 3")
        p(f"s_min_u32 s{sKVC}, s{sKVC}, 7")
        p(f"s_lshl_b32 s{sKVC}, s{sKVC}, 11")
        p(f"s_add_u32 s{sKVC}, s{sKVC}, s{sKVB}")
    p("s_waitcnt lgkmcnt(0)")
    p("s_barrier")
    RD = 52
    for q in range(4):
        p(f"ds_read2_b32 {v(RD + 2 * q, 2)}, v{vRr} offset0:{8 * q} offset1:{36 + 8 * q}")
    p("s_waitcnt lgkmcnt(2)")
    p(f"v_add_f32 v{RD}, v{RD}, v{RD + 2}")
    p(f"v_add_f32 v{RD + 1}, v{RD + 1}, v{RD + 3}")
    p("s_waitcnt lgkmcnt(0)")
    p(f"v_add_f32 v{RD + 4}, v{RD + 4}, v{RD + 6}")
    p(f"v_add_f32 v{RD + 5}, v{RD + 5}, v{RD + 7}")
    p(f"v_add_f32 v{RD}, v{RD}, v{RD + 4}")
    p(f"v_add_f32 v{RD + 1}, v{RD + 1}, v{RD + 5}")
    p(f"v_cvt_pk_bf16_f32 v{vT1}, v{RD}, v{RD + 1}")
    p(f"buffer_store_dword v{vT1}, v{vMw}, {WS}, s{sCUR} offen{' sc1' if w in (1, 2) else loc}")
    if w == 0 and mmode.startswith("flag"):
        flag_store(sFM, f"s{sS}")
    p(f"s_branch {tag}_top")

    p.label(f"{tag}_last")
    smv(0); smv(1)
    qk_to_lds()
    for u in range(2, 6):
        smv(u)
    p("s_waitcnt lgkmcnt(0)")
    p("s_barrier")
    if w < 2:
        for hh in range(2):
            p(f"ds_read_b64_tr_b16 {v(KMr + 2 * hh, 2)}, v{vXq} offset:{w * 1280 + hh * 320 + 16}")
    for u in range(6, 10):
        smv(u)
    if w < 2:
        p("s_waitcnt lgkmcnt(0)")
        p(f"buffer_store_dwordx4 {v(KMr, 4)}, v{vKM}, {WS}, s{sKM} offen sc1")
    for u in range(10, 16):
        smv(u)
    vm_pack()
    p(f"buffer_store_dword v{VMo}, v{vVM}, {WS}, s{sKM} offen sc1")
    p(f"s_branch {done}")
    p.items += tail.items


def stamp_flush(p, w, stamp):
    p("s_waitcnt lgkmcnt(0)")
    p(f"s_lshl_b32 s{sT0}, s{sX}, 5")
    p(f"s_add_u32 s{sT0}, s{sT0}, s{sR}")
    p(f"s_lshl_b32 s{sT0}, s{sT0}, 14")
    p(f"s_lshl_b32 s{sT1}, s{sS}, 6")
    p(f"s_add_u32 s{sT0}, s{sT0}, s{sT1}")
    p(f"s_add_u32 s{sT0}, s{sT0}, {STAT + w * 4096:#x}")
    p(f"v_mov_b32 v{vT0}, 0")
    for k in sorted(stamp):
        p(f"v_writelane_b32 v{vT0}, s{sTS + 2 * k}, {k}")
    for k in range(4):
        p(f"v_writelane_b32 v{vT0}, s{sCNT + k}, {12 + k}")
    p(f"v_mbcnt_lo_u32_b32 v{vT1}, -1, 0")
    p(f"v_lshlrev_b32 v{vT1}, 2, v{vT1}")
    p("s_mov_b64 exec, 0xffff")
    p(f"buffer_store_dword v{vT0}, v{vT1}, s[{sWS}:{sWS + 3}], s{sT0} offen")
    p("s_mov_b64 exec, -1")
```

```python
import sys
from worker import *

def prologue(p):
    p("s_cmp_ge_u32 s2, 256")
    p("s_cbranch_scc1 EXIT")
    p("s_load_dwordx16 s[16:31], s[0:1], 0")
    p("s_load_dwordx8 s[32:39], s[0:1], 64")
    p("s_load_dwordx2 s[40:41], s[0:1], 96")
    p(f"s_getreg_b32 s{sX}, hwreg(HW_REG_XCC_ID, 0, 4)")
    p("v_lshrrev_b32 v1, 6, v0")
    p(f"v_readfirstlane_b32 s{sWV}, v1")
    p("s_waitcnt lgkmcnt(0)")
    srd(p, sWS, pWSP, 0x10000000)
    srd(p, sDBG, pDBG, 256)
    srd(p, sW, pX, 0x400000)
    p(f"s_cmp_lg_u32 s{sWV}, 0")
    p("s_cbranch_scc1 RANK_SKIP")
    p(f"s_min_u32 s{sT0}, s{sX}, 8")
    p(f"s_lshl_b32 s{sT0}, s{sT0}, 2")
    p("s_mov_b64 exec, 1")
    p("v_mov_b32 v1, 1")
    p(f"buffer_atomic_add v1, off, {DBG}, s{sT0} sc0 sc1")
    p("s_mov_b64 exec, -1")
    p.label("RANK_SKIP")
    ln_issue(p)
    p(f"s_cmp_lg_u32 s{sWV}, 0")
    p("s_cbranch_scc1 RANK_WAIT")
    p("v_mov_b32 v2, 0")
    p("s_waitcnt vmcnt(8)")
    p("s_mov_b64 exec, 1")
    p("ds_write_b32 v2, v1")
    p("s_mov_b64 exec, -1")
    p.label("RANK_WAIT")
    ln_finish(p, 0)
    p("v_mov_b32 v2, 0")
    p("ds_read_b32 v1, v2")
    p("s_waitcnt lgkmcnt(0)")
    p(f"v_readfirstlane_b32 s{sR}, v1")
    p("s_barrier")


def task_stat(p):
    p("s_memrealtime s[96:97]")
    p(f"s_lshl_b32 s98, s{sX}, 5")
    p(f"s_add_u32 s98, s98, s{sR}")
    p("s_lshl_b32 s98, s98, 6")
    p(f"s_lshl_b32 s99, s{sRnd}, 2")
    p("s_add_u32 s98, s98, s99")
    p(f"s_add_u32 s98, s98, {STAT + 0x300000:#x}")
    p("s_waitcnt lgkmcnt(0)")
    p(f"v_mov_b32 v{vt0}, s96")
    p("s_mov_b64 exec, 1")
    p(f"buffer_store_dword v{vt0}, off, {WS}, s98")
    p("s_mov_b64 exec, -1")


def task_mark(p, k):
    p("s_memtime s[96:97]")
    p(f"s_lshl_b32 s98, s{sX}, 5")
    p(f"s_add_u32 s98, s98, s{sR}")
    p("s_lshl_b32 s98, s98, 8")
    p(f"s_lshl_b32 s99, s{sRnd}, 4")
    p("s_add_u32 s98, s98, s99")
    p(f"s_add_u32 s98, s98, {STAT + 0x310000 + k * 4 + (16 if k == 0 else 0):#x}")
    p("s_waitcnt lgkmcnt(0)")
    p(f"v_mov_b32 v{vt0}, s96")
    p("s_mov_b64 exec, 1")
    p(f"buffer_store_dword v{vt0}, off, {WS}, s98")
    p("s_mov_b64 exec, -1")


def gen(mark=False, chain=True, stop_after=None, stat=False, copt=None):
    p = Prog()
    if stat:
        p("s_memrealtime s[94:95]")
    prologue(p)
    p(f"s_cmp_ge_u32 s{sR}, 32")
    p("s_cbranch_scc1 EXIT")
    p(f"s_cmp_ge_u32 s{sX}, 2")
    p("s_cbranch_scc1 WORKER")
    if chain:
        chain_init(p)
        if stat:
            p("s_memrealtime s[30:31]")
        for w in range(3):
            p(f"s_cmp_eq_u32 s{sWV}, {w}")
            p(f"s_cbranch_scc1 c{w}_entry")
        p("s_branch c3_entry")
        for w in range(4):
            chain_loop(p, w, f"c{w}", done="CDONE", opt=copt)
        p.label("CDONE")
        if stat:
            p("s_memrealtime s[28:29]")
            p("s_waitcnt lgkmcnt(0)")
            p("v_mov_b32 v1, 0")
            for k, sr in enumerate([60, 61, 62, 63, 94, 30, 28, sBUD, 93]):
                p(f"v_writelane_b32 v1, s{sr}, {k}")
            p(f"s_lshl_b32 s{sT0}, s{sX}, 5")
            p(f"s_add_u32 s{sT0}, s{sT0}, s{sR}")
            p(f"s_lshl_b32 s{sT0}, s{sT0}, 2")
            p(f"s_add_u32 s{sT0}, s{sT0}, s{sWV}")
            p(f"s_lshl_b32 s{sT0}, s{sT0}, 6")
            p(f"s_add_u32 s{sT0}, s{sT0}, {STAT + 0x200000:#x}")
            p("v_mbcnt_lo_u32_b32 v2, -1, 0")
            p("v_lshlrev_b32 v2, 2, v2")
            p("s_mov_b64 exec, 0xffff")
            p(f"buffer_store_dword v1, v2, {WS}, s{sT0} offen")
    p("s_endpgm")
    p.label("WORKER")
    p(f"s_sub_u32 s{sX}, s{sX}, 2")
    worker(p, "WDONE", sentinels=chain, stop_after=stop_after, stat=task_stat if stat else None, mark=task_mark if mark else None)
    p.label("WDONE")
    if stat:
        p(f"s_mov_b32 s{sRnd}, 12")
        task_stat(p)
        p("s_mov_b32 s96, s94")
        p(f"s_add_u32 s98, s98, 4")
        p(f"v_mov_b32 v{vt0}, s96")
        p("s_mov_b64 exec, 1")
        p(f"buffer_store_dword v{vt0}, off, {WS}, s98")
    p.label("EXIT")
    p("s_endpgm")
    return wrap([(NAME + "_kernel", p, 512, 256)], [(NAME + "_kernel", 256, 256, 163840)]), p


if __name__ == "__main__":
    t, p = gen(chain=False, stat=True)
    open("k_w.s", "w").write(t)
    t, p = gen(chain=False, stat=True, mark=True)
    open("k_wm.s", "w").write(t)
    CO = dict(m="ack", o="flagp", defer=0, s_pos=5)
    t, p = gen(chain=True, stat=True, copt=CO)
    open("k_f.s", "w").write(t)
    t, p = gen(chain=True, stat=False, copt=CO)
    open("k_full.s", "w").write(t)
    print(p.count(), len(t))
```

```python
import sys
from worker import *

def prologue(p):
    p("s_cmp_ge_u32 s2, 256")
    p("s_cbranch_scc1 EXIT")
    p("s_load_dwordx16 s[16:31], s[0:1], 0")
    p("s_load_dwordx8 s[32:39], s[0:1], 64")
    p("s_load_dwordx2 s[40:41], s[0:1], 96")
    p(f"s_getreg_b32 s{sX}, hwreg(HW_REG_XCC_ID, 0, 4)")
    p("v_lshrrev_b32 v1, 6, v0")
    p(f"v_readfirstlane_b32 s{sWV}, v1")
    p("s_waitcnt lgkmcnt(0)")
    srd(p, sWS, pWSP, 0x10000000)
    srd(p, sDBG, pDBG, 256)
    srd(p, sW, pX, 0x400000)
    p(f"s_cmp_lg_u32 s{sWV}, 0")
    p("s_cbranch_scc1 RANK_SKIP")
    p(f"s_min_u32 s{sT0}, s{sX}, 8")
    p(f"s_lshl_b32 s{sT0}, s{sT0}, 2")
    p("s_mov_b64 exec, 1")
    p("v_mov_b32 v1, 1")
    p(f"buffer_atomic_add v1, off, {DBG}, s{sT0} sc0 sc1")
    p("s_mov_b64 exec, -1")
    p.label("RANK_SKIP")
    ln_issue(p)
    p(f"s_cmp_lg_u32 s{sWV}, 0")
    p("s_cbranch_scc1 RANK_WAIT")
    p("v_mov_b32 v2, 0")
    p("s_waitcnt vmcnt(8)")
    p("s_mov_b64 exec, 1")
    p("ds_write_b32 v2, v1")
    p("s_mov_b64 exec, -1")
    p.label("RANK_WAIT")
    ln_finish(p, 0)
    p("v_mov_b32 v2, 0")
    p("ds_read_b32 v1, v2")
    p("s_waitcnt lgkmcnt(0)")
    p(f"v_readfirstlane_b32 s{sR}, v1")
    p("s_barrier")


def task_stat(p):
    p("s_memrealtime s[96:97]")
    p(f"s_lshl_b32 s98, s{sX}, 5")
    p(f"s_add_u32 s98, s98, s{sR}")
    p("s_lshl_b32 s98, s98, 6")
    p(f"s_lshl_b32 s99, s{sRnd}, 2")
    p("s_add_u32 s98, s98, s99")
    p(f"s_add_u32 s98, s98, {STAT + 0x300000:#x}")
    p("s_waitcnt lgkmcnt(0)")
    p(f"v_mov_b32 v{vt0}, s96")
    p("s_mov_b64 exec, 1")
    p(f"buffer_store_dword v{vt0}, off, {WS}, s98")
    p("s_mov_b64 exec, -1")


def task_mark(p, k):
    p("s_memtime s[96:97]")
    p(f"s_lshl_b32 s98, s{sX}, 5")
    p(f"s_add_u32 s98, s98, s{sR}")
    p("s_lshl_b32 s98, s98, 8")
    p(f"s_lshl_b32 s99, s{sRnd}, 4")
    p("s_add_u32 s98, s98, s99")
    p(f"s_add_u32 s98, s98, {STAT + 0x310000 + k * 4 + (16 if k == 0 else 0):#x}")
    p("s_waitcnt lgkmcnt(0)")
    p(f"v_mov_b32 v{vt0}, s96")
    p("s_mov_b64 exec, 1")
    p(f"buffer_store_dword v{vt0}, off, {WS}, s98")
    p("s_mov_b64 exec, -1")


def tl(p, word, inv=False, src=None):
    if src is None:
        p("s_memrealtime s[96:97]")
        p("s_waitcnt lgkmcnt(0)")
        src = 96
    p(f"v_mov_b32 v{vt0}, s{src}")
    if inv:
        p(f"v_not_b32 v{vt0}, v{vt0}")
    p("s_mov_b64 exec, 1")
    p(f"buffer_atomic_umax v{vt0}, off, {DBG}, 0 offset:{word * 4} sc1")
    p("s_mov_b64 exec, -1")


def gen(mark=False, chain=True, stop_after=None, stat=False, copt=None, line=False):
    p = Prog()
    if line:
        p("s_memrealtime s[94:95]")
    if stat:
        p("s_memrealtime s[94:95]")
    prologue(p)
    if line:
        tl(p, 10, True, 94)
        tl(p, 11)
    p(f"s_cmp_ge_u32 s{sR}, 32")
    p("s_cbranch_scc1 EXIT")
    p(f"s_cmp_ge_u32 s{sX}, 2")
    p("s_cbranch_scc1 WORKER")
    if chain:
        chain_init(p)
        if stat or line:
            p("s_memrealtime s[30:31]")
        for w in range(3):
            p(f"s_cmp_eq_u32 s{sWV}, {w}")
            p(f"s_cbranch_scc1 c{w}_entry")
        p("s_branch c3_entry")
        for w in range(4):
            chain_loop(p, w, f"c{w}", done="CDONE", opt=copt)
        p.label("CDONE")
        if line:
            tl(p, 12, False, 30)
            tl(p, 13)
        if stat:
            p("s_memrealtime s[28:29]")
            p("s_waitcnt lgkmcnt(0)")
            p("v_mov_b32 v1, 0")
            for k, sr in enumerate([60, 61, 62, 63, 94, 30, 28, sBUD, 93]):
                p(f"v_writelane_b32 v1, s{sr}, {k}")
            p(f"s_lshl_b32 s{sT0}, s{sX}, 5")
            p(f"s_add_u32 s{sT0}, s{sT0}, s{sR}")
            p(f"s_lshl_b32 s{sT0}, s{sT0}, 2")
            p(f"s_add_u32 s{sT0}, s{sT0}, s{sWV}")
            p(f"s_lshl_b32 s{sT0}, s{sT0}, 6")
            p(f"s_add_u32 s{sT0}, s{sT0}, {STAT + 0x200000:#x}")
            p("v_mbcnt_lo_u32_b32 v2, -1, 0")
            p("v_lshlrev_b32 v2, 2, v2")
            p("s_mov_b64 exec, 0xffff")
            p(f"buffer_store_dword v1, v2, {WS}, s{sT0} offen")
    p("s_endpgm")
    p.label("WORKER")
    p(f"s_sub_u32 s{sX}, s{sX}, 2")
    worker(p, "WDONE", sentinels=chain, stop_after=stop_after, stat=task_stat if stat else None, mark=task_mark if mark else None)
    p.label("WDONE")
    if line:
        tl(p, 14)
        tl(p, 15, False, 94)
    if stat:
        p(f"s_mov_b32 s{sRnd}, 12")
        task_stat(p)
        p("s_mov_b32 s96, s94")
        p(f"s_add_u32 s98, s98, 4")
        p(f"v_mov_b32 v{vt0}, s96")
        p("s_mov_b64 exec, 1")
        p(f"buffer_store_dword v{vt0}, off, {WS}, s98")
    p.label("EXIT")
    p("s_endpgm")
    return wrap([(NAME + "_kernel", p, 512, 256)], [(NAME + "_kernel", 256, 256, 163840)]), p


if __name__ == "__main__":
    t, p = gen(chain=False, stat=True)
    open("k_w.s", "w").write(t)
    t, p = gen(chain=False, stat=True, mark=True)
    open("k_wm.s", "w").write(t)
    CO = dict(m="ack", o="flagp", defer=0, s_pos=5)
    t, p = gen(chain=True, stat=True, copt=CO)
    open("k_f.s", "w").write(t)
    t, p = gen(chain=True, stat=False, copt=CO, line=True)
    open("k_line.s", "w").write(t)
    t, p = gen(chain=True, stat=False, copt=CO)
    open("k_full.s", "w").write(t)
    print(p.count(), len(t))
```

```python
import sys
from worker import *

def prologue(p):
    p("s_cmp_ge_u32 s2, 256")
    p("s_cbranch_scc1 EXIT")
    p("s_load_dwordx16 s[16:31], s[0:1], 0")
    p("s_load_dwordx8 s[32:39], s[0:1], 64")
    p("s_load_dwordx2 s[40:41], s[0:1], 96")
    p(f"s_getreg_b32 s{sX}, hwreg(HW_REG_XCC_ID, 0, 4)")
    p("v_lshrrev_b32 v1, 6, v0")
    p(f"v_readfirstlane_b32 s{sWV}, v1")
    p("s_waitcnt lgkmcnt(0)")
    srd(p, sWS, pWSP, 0x10000000)
    srd(p, sDBG, pDBG, 256)
    srd(p, sW, pX, 0x400000)
    p(f"s_cmp_lg_u32 s{sWV}, 0")
    p("s_cbranch_scc1 RANK_SKIP")
    p(f"s_min_u32 s{sT0}, s{sX}, 8")
    p(f"s_lshl_b32 s{sT0}, s{sT0}, 2")
    p("s_mov_b64 exec, 1")
    p("v_mov_b32 v1, 1")
    p(f"buffer_atomic_add v1, off, {DBG}, s{sT0} sc0 sc1")
    p("s_mov_b64 exec, -1")
    p.label("RANK_SKIP")
    ln_issue(p)
    p(f"s_cmp_lg_u32 s{sWV}, 0")
    p("s_cbranch_scc1 RANK_WAIT")
    p("v_mov_b32 v2, 0")
    p("s_waitcnt vmcnt(8)")
    p("s_mov_b64 exec, 1")
    p("ds_write_b32 v2, v1")
    p("s_mov_b64 exec, -1")
    p.label("RANK_WAIT")
    ln_finish(p, 0)
    p("v_mov_b32 v2, 0")
    p("ds_read_b32 v1, v2")
    p("s_waitcnt lgkmcnt(0)")
    p(f"v_readfirstlane_b32 s{sR}, v1")
    p("s_barrier")


def task_stat(p):
    p("s_memrealtime s[96:97]")
    p(f"s_lshl_b32 s98, s{sX}, 5")
    p(f"s_add_u32 s98, s98, s{sR}")
    p("s_lshl_b32 s98, s98, 6")
    p(f"s_lshl_b32 s99, s{sRnd}, 2")
    p("s_add_u32 s98, s98, s99")
    p(f"s_add_u32 s98, s98, {STAT + 0x300000:#x}")
    p("s_waitcnt lgkmcnt(0)")
    p(f"v_mov_b32 v{vt0}, s96")
    p("s_mov_b64 exec, 1")
    p(f"buffer_store_dword v{vt0}, off, {WS}, s98")
    p("s_mov_b64 exec, -1")


def task_mark(p, k):
    p("s_memtime s[96:97]")
    p(f"s_lshl_b32 s98, s{sX}, 5")
    p(f"s_add_u32 s98, s98, s{sR}")
    p("s_lshl_b32 s98, s98, 8")
    p(f"s_lshl_b32 s99, s{sRnd}, 4")
    p("s_add_u32 s98, s98, s99")
    p(f"s_add_u32 s98, s98, {STAT + 0x310000 + k * 4 + (16 if k == 0 else 0):#x}")
    p("s_waitcnt lgkmcnt(0)")
    p(f"v_mov_b32 v{vt0}, s96")
    p("s_mov_b64 exec, 1")
    p(f"buffer_store_dword v{vt0}, off, {WS}, s98")
    p("s_mov_b64 exec, -1")


def tl(p, word, inv=False, src=None):
    if src is None:
        p("s_memrealtime s[96:97]")
        p("s_waitcnt lgkmcnt(0)")
        src = 96
    p(f"v_mov_b32 v{vt0}, s{src}")
    if inv:
        p(f"v_not_b32 v{vt0}, v{vt0}")
    p("s_mov_b64 exec, 1")
    p(f"buffer_atomic_umax v{vt0}, off, {DBG}, 0 offset:{word * 4} sc1")
    p("s_mov_b64 exec, -1")


def gen(mark=False, chain=True, stop_after=None, stat=False, copt=None, line=False):
    p = Prog()
    if line:
        p("s_memrealtime s[94:95]")
    if stat:
        p("s_memrealtime s[94:95]")
    prologue(p)
    if line:
        p("s_memrealtime s[98:99]")
    p(f"s_cmp_ge_u32 s{sR}, 32")
    p("s_cbranch_scc1 EXIT")
    p(f"s_cmp_ge_u32 s{sX}, 2")
    p("s_cbranch_scc1 WORKER")
    if chain:
        chain_init(p)
        if stat or line:
            p("s_memrealtime s[30:31]")
        for w in range(3):
            p(f"s_cmp_eq_u32 s{sWV}, {w}")
            p(f"s_cbranch_scc1 c{w}_entry")
        p("s_branch c3_entry")
        for w in range(4):
            chain_loop(p, w, f"c{w}", done="CDONE", opt=copt)
        p.label("CDONE")
        if line:
            p(f"s_cmp_lg_u32 s{sWV}, 0")
            p("s_cbranch_scc1 EXIT")
            tl(p, 13)
            tl(p, 12, False, 30)
            tl(p, 10, True, 94)
        if stat:
            p("s_memrealtime s[28:29]")
            p("s_waitcnt lgkmcnt(0)")
            p("v_mov_b32 v1, 0")
            for k, sr in enumerate([60, 61, 62, 63, 94, 30, 28, sBUD, 93]):
                p(f"v_writelane_b32 v1, s{sr}, {k}")
            p(f"s_lshl_b32 s{sT0}, s{sX}, 5")
            p(f"s_add_u32 s{sT0}, s{sT0}, s{sR}")
            p(f"s_lshl_b32 s{sT0}, s{sT0}, 2")
            p(f"s_add_u32 s{sT0}, s{sT0}, s{sWV}")
            p(f"s_lshl_b32 s{sT0}, s{sT0}, 6")
            p(f"s_add_u32 s{sT0}, s{sT0}, {STAT + 0x200000:#x}")
            p("v_mbcnt_lo_u32_b32 v2, -1, 0")
            p("v_lshlrev_b32 v2, 2, v2")
            p("s_mov_b64 exec, 0xffff")
            p(f"buffer_store_dword v1, v2, {WS}, s{sT0} offen")
    p("s_endpgm")
    p.label("WORKER")
    p(f"s_sub_u32 s{sX}, s{sX}, 2")
    worker(p, "WDONE", sentinels=chain, stop_after=stop_after, stat=task_stat if stat else None, mark=task_mark if mark else None)
    p.label("WDONE")
    if line:
        p(f"s_cmp_lg_u32 s{sWV}, 0")
        p("s_cbranch_scc1 EXIT")
        tl(p, 14)
        tl(p, 15, False, 94)
        tl(p, 10, True, 94)
        tl(p, 11, False, 98)
    if stat:
        p(f"s_mov_b32 s{sRnd}, 12")
        task_stat(p)
        p("s_mov_b32 s96, s94")
        p(f"s_add_u32 s98, s98, 4")
        p(f"v_mov_b32 v{vt0}, s96")
        p("s_mov_b64 exec, 1")
        p(f"buffer_store_dword v{vt0}, off, {WS}, s98")
    p.label("EXIT")
    p("s_endpgm")
    return wrap([(NAME + "_kernel", p, 512, 256)], [(NAME + "_kernel", 256, 256, 163840)]), p


if __name__ == "__main__":
    t, p = gen(chain=False, stat=True)
    open("k_w.s", "w").write(t)
    t, p = gen(chain=False, stat=True, mark=True)
    open("k_wm.s", "w").write(t)
    CO = dict(bsh=2)
    t, p = gen(chain=True, stat=True, copt=CO)
    open("k_f.s", "w").write(t)
    t, p = gen(chain=True, stat=False, copt=CO, line=True)
    open("k_line.s", "w").write(t)
    t, p = gen(chain=True, stat=False, copt=CO)
    open("k_full.s", "w").write(t)
    print(p.count(), len(t))
```

```python
import re


def v(i, n=1):
    return f"v{i}" if n == 1 else f"v[{i}:{i + n - 1}]"


def a(i, n=1):
    return f"a{i}" if n == 1 else f"a[{i}:{i + n - 1}]"


def s(i, n=1):
    return f"s{i}" if n == 1 else f"s[{i}:{i + n - 1}]"


_REG = re.compile(r"^([vas])(\d+)$|^([vas])\[(\d+):(\d+)\]$")


def regs_of(op):
    op = op.strip()
    op = op.lstrip("-")
    if op.startswith("abs(") and op.endswith(")"):
        op = op[4:-1]
    if op.startswith("|") and op.endswith("|"):
        op = op[1:-1]
    if op == "vcc":
        return {("s", "vcc_lo"), ("s", "vcc_hi")}
    if op in ("vcc_lo", "vcc_hi", "m0"):
        return {("s", op)}
    if op == "exec":
        return {("s", "exec_lo"), ("s", "exec_hi")}
    if op in ("exec_lo", "exec_hi"):
        return {("s", op)}
    m = _REG.match(op)
    if not m:
        return set()
    if m.group(1):
        return {(m.group(1), int(m.group(2)))}
    return {(m.group(3), k) for k in range(int(m.group(4)), int(m.group(5)) + 1)}


TRANS = ("v_exp_f32", "v_log_f32", "v_rcp_f32", "v_rsq_f32", "v_sqrt_f32", "v_sin_f32", "v_cos_f32",
         "v_rcp_iflag_f32")
NO_DST_S = ("s_cmp", "s_cbranch", "s_waitcnt", "s_nop", "s_barrier", "s_endpgm", "s_branch", "s_setprio",
            "s_sleep", "s_bitcmp", "s_setreg")


def mfma_passes(op):
    if "32x32x16" in op or "32x32x8" in op or "32x32x32" in op:
        return 8
    if "4x4x4" in op:
        return 2
    if "16x16x" in op:
        return 4
    raise ValueError(op)


class Ins:
    __slots__ = ("text", "op", "kind", "dst", "src", "passes", "srcC", "srcAB", "states", "target",
                 "uncond", "trans", "dpp", "perm", "rdlane", "lanesel", "widestore", "ldsdma", "dot",
                 "sdwa_dst", "sconst")

    def __init__(self, text):
        self.text = text
        t = text.split(";")[0].strip()
        parts = t.split(None, 1)
        op = parts[0]
        self.op = op
        rest = parts[1] if len(parts) > 1 else ""
        ops = [x.strip() for x in rest.split(",")] if rest else []
        mods = ""
        if ops:
            last = ops[-1].split()
            if last:
                ops[-1] = last[0]
                mods = " ".join(last[1:])
        self.dst, self.src = set(), set()
        self.passes = 0
        self.srcC, self.srcAB = set(), set()
        self.states = 1
        self.target = None
        self.uncond = False
        self.trans = self.dpp = self.perm = self.rdlane = self.widestore = self.ldsdma = self.dot = False
        self.sdwa_dst = False
        self.lanesel = set()
        self.sconst = set()
        R = regs_of
        if op.startswith("v_mfma"):
            self.kind = "mfma"
            self.passes = mfma_passes(op)
            self.dst = R(ops[0])
            self.srcAB = R(ops[1]) | R(ops[2])
            self.srcC = R(ops[3])
            self.src = self.srcAB | self.srcC
        elif op.startswith("v_smfmac"):
            self.kind = "mfma"
            self.passes = mfma_passes(op)
            self.dst = R(ops[0])
            self.srcAB = R(ops[1]) | R(ops[2]) | R(ops[3])
            self.srcC = R(ops[0])
            self.src = self.srcAB | self.srcC
        elif op.startswith("v_"):
            self.kind = "valu"
            base = re.sub(r"_(e32|e64|dpp|sdwa)$", "", op)
            self.trans = base in TRANS
            self.dpp = op.endswith("_dpp") or "row_" in mods or "quad_perm" in mods or "wave_" in mods
            if op.endswith("_sdwa") and "dst_sel:" in mods and "dst_sel:DWORD" not in mods:
                self.sdwa_dst = True
            if "op_sel" in mods and not base.startswith("v_pk_"):
                self.sdwa_dst = True
            if base.startswith("v_cmp"):
                assert not base.startswith("v_cmpx"), "v_cmpx not supported"
                self.dst = R(ops[0])
                for o in ops[1:]:
                    self.src |= R(o)
            elif base in ("v_readfirstlane_b32", "v_readlane_b32"):
                self.dst = R(ops[0])
                self.src = R(ops[1])
                self.rdlane = True
                if len(ops) > 2:
                    self.lanesel = R(ops[2])
                    self.src |= self.lanesel
            elif base == "v_writelane_b32":
                self.dst = R(ops[0])
                self.src = R(ops[0]) | R(ops[1])
                self.lanesel = R(ops[2])
                self.src |= self.lanesel
            elif base.startswith("v_permlane"):
                self.perm = True
                self.dst = R(ops[0]) | R(ops[1])
                self.src = set(self.dst)
            elif "_co_" in base or base.startswith("v_div_scale") or base.startswith("v_mad_u64"):
                self.dst = R(ops[0]) | R(ops[1])
                for o in ops[2:]:
                    self.src |= R(o)
            else:
                self.dst = R(ops[0])
                for o in ops[1:]:
                    self.src |= R(o)
                if base.startswith(("v_fmac", "v_dot2c", "v_pk_fmac")) or self.dpp or op.endswith("_sdwa"):
                    self.src |= self.dst
                if base.startswith("v_dot"):
                    self.dot = True
                if base == "v_cndmask_b32" and len(ops) == 3:
                    self.src |= R("vcc")
                if base.startswith("v_div_fmas"):
                    self.src |= R("vcc")
            self.sconst = {r for r in self.src if r[0] == "s"}
        elif op.startswith(("buffer_", "global_", "flat_")):
            self.kind = "vmem"
            lds = (" lds" in " " + mods) or "_lds_" in op
            self.ldsdma = lds
            if op.startswith("buffer_"):
                if lds:
                    for o in ops:
                        self.src |= R(o)
                    self.src |= R("m0")
                elif "load" in op:
                    self.dst = R(ops[0])
                    for o in ops[1:]:
                        self.src |= R(o)
                else:
                    for o in ops:
                        self.src |= R(o)
                    if "atomic" in op and "sc0" in mods:
                        self.dst = R(ops[0])
                    if op.endswith(("x3", "x4")):
                        self.widestore = R(ops[0])
            else:
                if lds:
                    for o in ops:
                        self.src |= R(o)
                    self.src |= R("m0")
                elif "load" in op or ("atomic" in op and "sc0" in mods):
                    self.dst = R(ops[0])
                    for o in ops[1:]:
                        self.src |= R(o)
                else:
                    for o in ops:
                        self.src |= R(o)
                    if op.endswith(("x3", "x4")):
                        self.widestore = R(ops[1])
        elif op.startswith("ds_"):
            self.kind = "ds"
            if op.startswith(("ds_read", "ds_bpermute", "ds_permute", "ds_swizzle")) or "_rtn" in op:
                self.dst = R(ops[0])
                for o in ops[1:]:
                    self.src |= R(o)
            else:
                for o in ops:
                    self.src |= R(o)
        elif op.startswith("s_"):
            self.kind = "salu"
            if op == "s_nop":
                self.states = int(ops[0], 0) + 1
            if op.startswith(("s_cbranch", "s_branch")):
                self.target = ops[0]
                self.uncond = op == "s_branch"
            elif op == "s_endpgm":
                self.uncond = True
            elif op.startswith(NO_DST_S):
                for o in ops:
                    self.src |= R(o)
            else:
                self.dst = R(ops[0])
                for o in ops[1:]:
                    self.src |= R(o)
                if "saveexec" in op:
                    self.dst |= R("exec")
        else:
            raise ValueError("unknown instruction: " + text)


_T = {2: 0, 4: 1, 8: 2, 16: 3}
PIPE_TIME = True


def vreg(x):
    return {r for r in x if r[0] in "va"}


def sreg(x):
    return {r for r in x if r[0] == "s"}


def required(p, c):
    n = 0
    if p.kind == "valu":
        pv = vreg(p.dst)
        ps = sreg(p.dst)
        if pv:
            if c.kind == "mfma" and pv & c.src:
                n = max(n, 2)
            if c.kind == "valu":
                if (c.dpp or c.perm) and pv & c.src:
                    n = max(n, 2)
                if c.rdlane and pv & c.src:
                    n = max(n, 1)
                if p.trans and not c.trans and pv & c.src:
                    n = max(n, 1)
                if p.sdwa_dst and pv & (c.src | c.dst):
                    n = max(n, 1)
            if p.dot:
                if c.kind in ("valu", "mfma", "vmem", "ds") and pv & (c.src | c.dst):
                    same = c.kind == "valu" and c.op == p.op
                    n = max(n, 0 if (same and pv == vreg(c.dst)) else 3)
            if p.trans and c.kind in ("vmem", "ds") and pv & c.src:
                n = max(n, 1)
        if ps:
            if c.kind == "vmem" and ps & c.src:
                n = max(n, 5)
            if c.kind == "valu":
                if ps & c.lanesel:
                    n = max(n, 4)
                if ps & c.sconst:
                    n = max(n, 4 if c.op.startswith("v_div_fmas") else 2)
    elif p.kind == "mfma":
        t = _T[p.passes]
        if c.kind == "mfma":
            if p.dst & c.srcC:
                if p.dst == c.srcC and p.passes == c.passes:
                    n = max(n, (2, 0, 0, 0)[t])
                else:
                    n = max(n, (4, 6, 10, 18)[t])
            elif p.dst & c.dst:
                n = max(n, (4, 6, 10, 18)[t])
            if p.dst & c.srcAB:
                n = max(n, (5, 8, 12, 20)[t])
        elif c.kind in ("valu", "vmem", "ds"):
            if p.dst & (c.src | c.dst):
                n = max(n, (5, 8, 12, 20)[t])
            if c.kind == "valu" and p.srcC & c.dst:
                n = max(n, (1, 3, 7, 15)[t])
    elif p.kind == "vmem":
        if p.widestore and p.widestore & c.dst:
            n = max(n, 2 if c.kind in ("valu", "mfma") else 1)
    elif p.kind == "salu":
        if ("s", "m0") in p.dst and c.ldsdma:
            n = max(n, 1)
    return n


class Prog:
    def __init__(self):
        self.items = []
        self._uid = 0

    def __call__(self, text):
        for line in text.split("\n"):
            line = line.strip()
            if not line:
                continue
            if line.startswith(";"):
                self.items.append(("x", line))
            elif line.endswith(":"):
                self.items.append(("l", line[:-1]))
            elif line.startswith("."):
                self.items.append(("x", line))
            else:
                self.items.append(("i", Ins(line)))

    def raw(self, text):
        self.items.append(("x", text))

    def label(self, name):
        self.items.append(("l", name))

    def uid(self, base):
        self._uid += 1
        return f"{base}_{self._uid}"

    def fix_hazards(self, verbose=False):
        items = self.items
        changed = True
        total = 0
        while changed:
            changed = False
            branches = {}
            for k, (t, x) in enumerate(items):
                if t == "i" and x.target:
                    branches.setdefault(x.target, []).append(k)
            out = []
            inserted = {}
            for k, (t, x) in enumerate(items):
                if t != "i" or x.kind == "salu":
                    continue
                need = 0
                stack = [(k - 1, 0, False, ())]
                seen = {}
                while stack:
                    j, d, via_branch, path = stack.pop()
                    while j >= 0 and d < 20:
                        tj, xj = items[j]
                        if tj == "l":
                            for b in branches.get(xj, ()):
                                if seen.get(b, 99) > d:
                                    seen[b] = d
                                    stack.append((b, d, True, path))
                        elif tj == "i":
                            if xj.uncond and not via_branch:
                                break
                            via_branch = False
                            r = required(xj, x)
                            if r > d and xj.kind == "mfma" and PIPE_TIME:
                                tt, free = 1, xj.passes
                                for stt, ps in reversed(path):
                                    if ps:
                                        tt = max(tt, free)
                                        free = tt + ps
                                    tt += stt
                                if not (x.kind == "mfma" and free >= r + 1):
                                    need = max(need, r + 1 - tt)
                            elif r - d > need:
                                need = r - d
                            d += xj.states
                            path = path + ((xj.states, xj.passes if xj.kind == "mfma" else 0),)
                            if inserted.get(j, 0):
                                d += inserted[j]
                                path = path + ((inserted[j], 0),)
                        j -= 1
                if need > 0:
                    inserted[k] = need
            if inserted:
                for k, it in enumerate(items):
                    if k in inserted:
                        n = inserted[k]
                        total += n
                        if verbose:
                            print("nop", n, "before", it[1].text)
                        while n > 0:
                            m = min(n, 16)
                            out.append(("i", Ins(f"s_nop {m - 1}")))
                            n -= m
                    out.append(it)
                items = out
                changed = True
        self.items = items
        return total

    def text(self):
        o = []
        for t, x in self.items:
            if t == "i":
                o.append("    " + x.text)
            elif t == "l":
                o.append(x + ":")
            else:
                o.append(x)
        return "\n".join(o) + "\n"

    def count(self):
        return sum(1 for t, _ in self.items if t == "i")
```

```python
from common import *

XN = 0x0000000
KF = 0x0400000
VF = 0x1400000
KM = 0x2400000
VM = 0x2800000
OF = 0x2C00000
HF = 0x3C00000
YF = 0x4A00000
RING = 0x5000000
STAT = 0x5400000
XS = 0x80000
SLOT = 0x20000
R_MO, R_MX, R_O, R_S = 0, 0x4000, 0x8000, 0x10000
FLG = 0x5100000
FL2 = 0x5200000
OOB = 0x80000000

D_RANK = 0
D_CBAR = 9
D_XN = 16
D_KV = 24
D_HF = 32
D_Y = 40
D_OF = 48

sWS, sDBG, sW = 4, 8, 12
pX, pMEM, pWQ, pWK, pWV, pWO, pW1, pW2, pOUT, pDBG, pWSP = 16, 18, 20, 22, 24, 26, 32, 34, 36, 38, 40
sX, sR, sWV = 42, 43, 44
sS, sCUR, sNXT, sPRV, sCUR4 = 45, 46, 50, 48, 49
sKV0, sKV1, sKM, sKXM0, sBUD = 51, 52, 53, 54, 55
sT0, sT1, sT2, sT3 = 56, 57, 58, 59
sCNT = 60
sTS = 64
sKMP, sFO, sFM, sFOr, sFMr, sS1 = 3, 88, 89, 90, 91, 92
sKVC, sKVB = 47, 24
sB1 = 32
sMK = 16

L_ST, L_KX, L_X, L_R, L_WO = 0, 16384, 24576, 28672, 32768

(vMOr, vMXr, vOr, vOw, vSw, vSr, vMw, vKM, vVM, vVx, vKxg, vRst, vSt, vXw, vXq, vKxl, vRw, vRr, vWo,
 vIdx) = range(1, 21)
vFr = 0
vT0, vT1, vT2 = 22, 23, 21
vID = 24
vONE = 26
vVMo = 30
vSENT = 32
vVX = 36
vDq, vDk, vDv = 40, 44, 48
vF = 52
vMO, vMX, vACC = 52, 68, 84
vFREE = 116
vWV = 128

CEXP = 0.08838834764831845 * 1.4426950408889634


def fhex(x):
    import struct
    return "0x%08x" % struct.unpack("<I", struct.pack("<f", x))[0]


def chain_init(p, kvwait=True):
    L, G, C, t0, t1, t2, t3 = 52, 53, 54, 55, 56, 57, 58
    p(f"v_and_b32 v{L}, 63, v0")
    p(f"v_lshrrev_b32 v{G}, 4, v{L}")
    p(f"v_and_b32 v{C}, 15, v{L}")
    sH, sJ, sB = sT0, sT1, sT2
    p(f"s_lshr_b32 s{sH}, s{sR}, 1")
    p(f"s_lshl_b32 s{sT3}, s{sX}, 4")
    p(f"s_add_u32 s{sH}, s{sH}, s{sT3}")
    p(f"s_and_b32 s{sJ}, s{sR}, 1")
    vWg, vWog, vTr0, vTr1 = 60, 61, 62, 63
    vWoT0, vWoT1 = 64, 65
    p(f"v_lshrrev_b32 v{t0}, 5, v{L}")
    p(f"s_and_b32 s{sB}, s{sWV}, 1")
    p(f"s_lshl_b32 s{sB}, s{sB}, 1")
    p(f"v_add_u32 v{t0}, s{sB}, v{t0}")
    p(f"v_lshlrev_b32 v{t0}, 1, v{t0}")
    p(f"v_and_b32 v{t1}, 7, v{L}")
    p(f"v_xor_b32 v{t0}, v{t0}, v{t1}")
    p(f"v_lshlrev_b32 v{t0}, 4, v{t0}")
    p(f"v_lshrrev_b32 v{t1}, 3, v{L}")
    p(f"v_lshl_add_u32 v{vWg}, v{t1}, 13, v{t0}")
    p(f"s_lshl_b32 s{sB}, s{sWV}, 16")
    p(f"s_lshl_b32 s{sT3}, s{sH}, 8")
    p(f"s_add_u32 s{sB}, s{sB}, s{sT3}")
    p(f"s_lshl_b32 s{sT3}, s{sJ}, 7")
    p(f"s_add_u32 s{sB}, s{sB}, s{sT3}")
    p(f"v_add_u32 v{vWg}, s{sB}, v{vWg}")
    sM0, sSO = 64, 65
    p(f"s_lshl_b32 s{sM0}, s{sWV}, 10")
    p(f"s_add_u32 s{sM0}, s{sM0}, {L_WO}")

    def dma_chunk(half, src_off, vaddr, step):
        for n in range(16):
            p(f"s_add_u32 m0, s{sM0}, {half * 65536 + n * 4096}")
            p(f"s_mov_b32 s{sSO}, {src_off + n * step:#x}")
            p(f"buffer_load_dwordx4 v{vaddr}, s[{sW}:{sW + 3}], s{sSO} offen lds")

    srd(p, sW, pWQ, 0x800000)
    dma_chunk(0, 0, vWg, 262144)
    dma_chunk(1, 512 * 8192, vWg, 262144)

    sRB = 66
    p(f"s_mul_i32 s{sRB}, s{sX}, {XS:#x}")
    p(f"s_add_u32 s{sRB}, s{sRB}, {RING:#x}")
    p(f"v_lshlrev_b32 v{t0}, 4, v{L}")
    p(f"s_lshl_b32 s{sB}, s{sWV}, 12")
    p(f"s_add_u32 s{sT3}, s{sB}, s{sRB}")
    p(f"v_add_u32 v{vMOr}, s{sT3}, v{t0}")
    p(f"s_xor_b32 s{sT3}, s{sT3}, {XS:#x}")
    p(f"s_add_u32 s{sT3}, s{sT3}, {R_MX:#x}")
    p(f"v_add_u32 v{vMXr}, s{sT3}, v{t0}")
    p(f"s_lshl_b32 s{sT3}, s{sWV}, 13")
    p(f"s_add_u32 s{sT3}, s{sT3}, s{sRB}")
    p(f"s_add_u32 s{sT3}, s{sT3}, {R_O:#x}")
    p(f"v_add_u32 v{vOr}, s{sT3}, v{t0}")
    p(f"v_mov_b32 v{vSt}, v{t0}")
    p(f"v_add_u32 v{vKxl}, {L_KX}, v{t0}")
    p(f"s_lshl_b32 s{sT3}, s{sWV}, 15")
    p(f"s_add_u32 s{sT3}, s{sT3}, {L_WO}")
    p(f"v_add_u32 v{vWo}, s{sT3}, v{t0}")
    MU, BE = 67, 68
    p(f"v_lshrrev_b32 v{t1}, 2, v{C}")
    p(f"v_and_b32 v{t2}, 1, v{C}")
    p(f"v_lshl_add_u32 v{MU}, v{t1}, 1, v{t2}")
    p(f"v_bfe_u32 v{BE}, v{C}, 1, 1")
    p(f"v_cmp_eq_u32 s[70:71], 0, v{BE}")
    p(f"v_cmp_gt_u32 s[72:73], 32, v{L}")
    p(f"v_mov_b32 v{t3}, {OOB:#x}")
    p(f"v_lshrrev_b32 v{t1}, 1, v{G}")
    p(f"v_lshl_add_u32 v{t1}, v{t1}, 1, v{C}")
    p(f"v_and_b32 v{t2}, 1, v{G}")
    p(f"v_lshlrev_b32 v{t2}, 3, v{t2}")
    p(f"v_lshl_add_u32 v{t1}, v{t1}, 4, v{t2}")
    p(f"s_lshl_b32 s{sB}, s{sR}, 10")
    p(f"s_lshl_b32 s{sT3}, s{sWV}, 8")
    p(f"s_add_u32 s{sB}, s{sB}, s{sT3}")
    p(f"s_add_u32 s{sB}, s{sB}, s{sRB}")
    p(f"s_add_u32 s{sB}, s{sB}, {R_O:#x}")
    p(f"v_add_u32 v{t1}, s{sB}, v{t1}")
    p(f"v_cndmask_b32 v{vOw}, v{t3}, v{t1}, s[70:71]")
    p(f"v_lshlrev_b32 v{t1}, 4, v{L}")
    p(f"s_lshl_b32 s{sB}, s{sR}, 11")
    p(f"s_add_u32 s{sB}, s{sB}, s{sRB}")
    p(f"s_add_u32 s{sB}, s{sB}, {R_S:#x}")
    p(f"s_xor_b32 s{sT3}, s{sB}, 2048")
    p(f"v_add_u32 v{vSr}, s{sT3}, v{t1}")
    p(f"s_and_b32 s{sT3}, s{sWV}, 1")
    p(f"s_lshl_b32 s{sT3}, s{sT3}, 10")
    p(f"s_add_u32 s{sB}, s{sB}, s{sT3}")
    p(f"v_add_u32 v{t1}, s{sB}, v{t1}")
    p(f"s_lshr_b32 s{sT3}, s{sWV}, 1")
    p(f"v_cmp_eq_u32 vcc, s{sT3}, v{BE}")
    p(f"v_cndmask_b32 v{vSw}, v{t3}, v{t1}, vcc")
    p(f"s_lshl_b32 s{sB}, s{sR}, 9")
    p(f"s_lshr_b32 s{sT3}, s{sWV}, 1")
    p(f"s_lshl_b32 s68, s{sT3}, 8")
    p(f"s_add_u32 s{sB}, s{sB}, s68")
    p(f"s_xor_b32 s{sT3}, s{sT3}, s{sWV}")
    p(f"s_and_b32 s{sT3}, s{sT3}, 1")
    p(f"s_mul_i32 s{sT3}, s{sT3}, {R_MX:#x}")
    p(f"s_add_u32 s{sB}, s{sB}, s{sT3}")
    p(f"s_add_u32 s{sB}, s{sB}, s{sRB}")
    p(f"v_lshlrev_b32 v{t1}, 2, v{L}")
    p(f"v_add_u32 v{vMw}, s{sB}, v{t1}")
    p(f"v_and_b32 v{vFr}, 124, v{t1}")
    p(f"s_lshl_b32 s{sB}, s{sX}, 12")
    p(f"s_add_u32 s{sB}, s{sB}, {FLG:#x}")
    p(f"s_mul_i32 s{sT3}, s{sWV}, 0x180")
    p(f"s_add_u32 s{sFOr}, s{sB}, s{sT3}")
    p(f"s_add_u32 s{sFMr}, s{sB}, 0x800")
    p(f"s_lshl_b32 s{sT3}, s{sR}, 2")
    p(f"s_add_u32 s{sFM}, s{sFMr}, s{sT3}")
    p(f"s_lshr_b32 s{sT3}, s{sR}, 3")
    p(f"s_mul_i32 s{sT3}, s{sT3}, 0x180")
    p(f"s_add_u32 s{sB}, s{sB}, s{sT3}")
    p(f"s_and_b32 s{sT3}, s{sR}, 7")
    p(f"s_lshl_b32 s{sT3}, s{sT3}, 2")
    p(f"s_add_u32 s{sT3}, s{sT3}, s{sWV}")
    p(f"s_lshl_b32 s{sT3}, s{sT3}, 2")
    p(f"s_add_u32 s{sFO}, s{sB}, s{sT3}")
    p(f"v_lshlrev_b32 v{t1}, 7, v{G}")
    p(f"v_lshl_add_u32 v{t1}, v{MU}, 4, v{t1}")
    p(f"s_lshl_b32 s{sB}, s{sH}, 11")
    p(f"s_lshl_b32 s{sT3}, s{sJ}, 10")
    p(f"s_add_u32 s{sB}, s{sB}, s{sT3}")
    p(f"s_mov_b32 s67, s{sB}")
    p(f"s_and_b32 s{sT3}, s{sWV}, 1")
    p(f"s_lshl_b32 s{sT3}, s{sT3}, 9")
    p(f"s_add_u32 s{sB}, s{sB}, s{sT3}")
    p(f"s_add_u32 s{sB}, s{sB}, {KM:#x}")
    p(f"v_add_u32 v{t1}, s{sB}, v{t1}")
    p(f"v_cndmask_b32 v{vKM}, v{t3}, v{t1}, s[70:71]")
    p(f"v_lshlrev_b32 v{t1}, 2, v{G}")
    p(f"v_lshl_add_u32 v{t1}, v{C}, 4, v{t1}")
    p(f"s_lshl_b32 s{sT3}, s{sWV}, 8")
    p(f"s_add_u32 s{sB}, s67, s{sT3}")
    p(f"s_add_u32 s{sB}, s{sB}, {VM:#x}")
    p(f"v_add_u32 v{vVM}, s{sB}, v{t1}")
    p(f"v_lshlrev_b32 v{t1}, 9, v{G}")
    p(f"v_lshl_add_u32 v{t1}, v{C}, 4, v{t1}")
    p(f"s_lshl_b32 s67, s{sH}, 13")
    p(f"s_lshl_b32 s{sT3}, s{sJ}, 12")
    p(f"s_add_u32 s67, s67, s{sT3}")
    p(f"s_lshr_b32 s{sT3}, s{sWV}, 1")
    p(f"s_lshl_b32 s{sT3}, s{sT3}, 11")
    p(f"s_add_u32 s{sB}, s67, s{sT3}")
    p(f"s_and_b32 s{sT3}, s{sWV}, 1")
    p(f"s_lshl_b32 s{sT3}, s{sT3}, 8")
    p(f"s_add_u32 s{sB}, s{sB}, s{sT3}")
    p(f"s_add_u32 s{sB}, s{sB}, {VF:#x}")
    p(f"v_add_u32 v{vVx}, s{sB}, v{t1}")
    p(f"v_lshrrev_b32 v{t1}, 3, v{C}")
    p(f"v_lshlrev_b32 v{t1}, 4, v{t1}")
    p(f"v_and_b32 v{t2}, 7, v{C}")
    p(f"v_add_u32 v{t1}, v{t1}, v{t2}")
    p(f"v_lshlrev_b32 v{t2}, 9, v{G}")
    p(f"v_lshl_add_u32 v{t1}, v{t1}, 4, v{t2}")
    p(f"s_and_b32 s{sT3}, s{sWV}, 1")
    p(f"s_lshl_b32 s{sT3}, s{sT3}, 11")
    p(f"s_add_u32 s{sB}, s67, s{sT3}")
    p(f"s_lshr_b32 s{sT3}, s{sWV}, 1")
    p(f"s_lshl_b32 s{sT3}, s{sT3}, 7")
    p(f"s_add_u32 s{sB}, s{sB}, s{sT3}")
    p(f"s_add_u32 s{sB}, s{sB}, {KF:#x}")
    p(f"v_add_u32 v{vKxg}, s{sB}, v{t1}")
    p(f"v_bfe_u32 v{t1}, v{C}, 2, 1")
    p(f"v_lshlrev_b32 v{t1}, 1, v{t1}")
    p(f"v_xor_b32 v{t1}, v{t1}, v{G}")
    p(f"v_lshlrev_b32 v{t1}, 3, v{t1}")
    p(f"v_lshl_add_u32 v{t1}, v{C}, 5, v{t1}")
    p(f"s_lshl_b32 s{sB}, s{sWV}, 10")
    p(f"s_add_u32 s{sB}, s{sB}, {L_X}")
    p(f"v_add_u32 v{vXw}, s{sB}, v{t1}")
    p(f"v_lshrrev_b32 v{t1}, 1, v{G}")
    p(f"v_lshlrev_b32 v{t1}, 4, v{t1}")
    p(f"v_and_b32 v{t2}, 1, v{G}")
    p(f"v_lshl_add_u32 v59, v{t2}, 2, v{t1}")
    p(f"v_lshlrev_b32 v{t1}, 1, v{t2}")
    p(f"v_xor_b32 v{t1}, v{t1}, v{C}")
    p(f"v_and_b32 v{t1}, 3, v{t1}")
    p(f"v_lshlrev_b32 v{t1}, 3, v{t1}")
    p(f"v_lshl_add_u32 v{t1}, v{t2}, 7, v{t1}")
    p(f"v_lshrrev_b32 v{t2}, 2, v{C}")
    p(f"v_lshl_add_u32 v{t1}, v{t2}, 5, v{t1}")
    p(f"v_lshrrev_b32 v{t2}, 1, v{G}")
    p(f"v_lshl_add_u32 v{t1}, v{t2}, 10, v{t1}")
    p(f"v_add_u32 v{vXq}, {L_X}, v{t1}")
    p(f"v_lshrrev_b32 v{t1}, 3, v{C}")
    p(f"v_lshl_add_u32 v{t1}, v{G}, 1, v{t1}")
    p(f"v_add_u32 v{t1}, s{sWV}, v{t1}")
    p(f"v_and_b32 v{t1}, 3, v{t1}")
    p(f"v_lshlrev_b32 v{t1}, 3, v{t1}")
    p(f"v_lshl_add_u32 v{t1}, v{G}, 9, v{t1}")
    p(f"v_lshrrev_b32 v{t2}, 1, v{C}")
    p(f"v_lshl_add_u32 v{t1}, v{t2}, 5, v{t1}")
    p(f"v_and_b32 v{t2}, 1, v{C}")
    p(f"v_lshl_add_u32 v{t1}, v{t2}, 2, v{t1}")
    p(f"v_add_u32 v{vRw}, {L_R}, v{t1}")
    p(f"v_bfe_u32 v{t1}, v{L}, 2, 1")
    p(f"v_lshl_add_u32 v{t1}, v{G}, 1, v{t1}")
    p(f"v_lshlrev_b32 v{t1}, 8, v{t1}")
    p(f"v_bfe_u32 v{t2}, v{L}, 3, 1")
    p(f"v_lshl_add_u32 v{t1}, v{t2}, 7, v{t1}")
    p(f"v_and_b32 v{t2}, 3, v{L}")
    p(f"v_lshl_add_u32 v{t1}, v{t2}, 5, v{t1}")
    p(f"s_lshr_b32 s{sB}, s{sWV}, 1")
    p(f"s_lshl_b32 s{sB}, s{sB}, 11")
    p(f"s_add_u32 s{sB}, s{sB}, {L_R}")
    p(f"v_add_u32 v{vRr}, s{sB}, v{t1}")
    p(f"v_mov_b32 v{t1}, 0x4444")
    p(f"v_mov_b32 v{t2}, 0xeeee")
    p(f"v_cndmask_b32 v{vIdx}, v{t2}, v{t1}, s[70:71]")
    for k in range(4):
        p(f"v_mov_b32 v{vONE + k}, 0x3f803f80")
        p(f"v_mov_b32 v{vSENT + k}, -1")
    p(f"v_mov_b32 v{vVMo}, 0")
    p(f"v_mov_b32 v{vVMo + 1}, 0")
    p(f"v_mov_b32 v{t1}, 0x3f80")
    p(f"v_mov_b32 v{t2}, 0x3f800000")
    p(f"v_and_b32 v{t0}, 1, v{L}")
    p(f"v_cmp_eq_u32 vcc, 1, v{t0}")
    p(f"v_cndmask_b32 v{t1}, v{t1}, v{t2}, vcc")
    p(f"v_and_b32 v{t0}, 2, v{L}")
    p(f"v_cmp_eq_u32 vcc, 0, v{t0}")
    p(f"v_cndmask_b32 v{vID}, 0, v{t1}, vcc")
    p(f"v_cndmask_b32 v{vID + 1}, v{t1}, 0, vcc")
    p(f"v_lshlrev_b32 v{t0}, 4, v{L}")
    p(f"s_mul_i32 s{sB}, s{sWV}, {SLOT:#x}")
    p(f"s_add_u32 s{sB}, s{sB}, s{sRB}")
    p(f"s_lshl_b32 s{sT3}, s{sR}, 11")
    p(f"s_add_u32 s67, s{sB}, s{sT3}")
    p(f"s_add_u32 s67, s67, {R_S:#x}")
    p(f"buffer_store_dwordx4 v[{vSENT}:{vSENT + 3}], v{t0}, s[{sWS}:{sWS + 3}], s67 offen sc1")
    p(f"buffer_store_dwordx4 v[{vSENT}:{vSENT + 3}], v{t0}, s[{sWS}:{sWS + 3}], s67 offen offset:1024 sc1")
    p(f"s_lshl_b32 s{sT3}, s{sR}, 10")
    p(f"s_add_u32 s68, s{sB}, s{sT3}")
    p(f"s_add_u32 s68, s68, {R_O:#x}")
    p(f"buffer_store_dwordx4 v[{vSENT}:{vSENT + 3}], v{t0}, s[{sWS}:{sWS + 3}], s68 offen sc1")
    p(f"v_cndmask_b32 v{t1}, v{t3}, v{t0}, s[72:73]")
    p(f"s_lshl_b32 s{sT3}, s{sR}, 9")
    p(f"s_add_u32 s69, s{sB}, s{sT3}")
    p(f"buffer_store_dwordx4 v[{vSENT}:{vSENT + 3}], v{t1}, s[{sWS}:{sWS + 3}], s69 offen sc1")
    p(f"s_add_u32 s67, s69, {R_MX:#x}")
    p(f"buffer_store_dwordx4 v[{vSENT}:{vSENT + 3}], v{t1}, s[{sWS}:{sWS + 3}], s67 offen sc1")
    p(f"v_mov_b32 v{t1}, 0")
    p("s_mov_b64 exec, 1")
    p(f"buffer_store_dword v{t1}, off, s[{sWS}:{sWS + 3}], s{sFO} sc1")
    p(f"buffer_store_dword v{t1}, off, s[{sWS}:{sWS + 3}], s{sFM} sc1")
    p("s_mov_b64 exec, -1")
    p(f"s_lshl_b32 s67, s{sR}, 11")
    p(f"s_add_u32 s67, s67, {R_S:#x}")
    p(f"s_lshl_b32 s68, s{sR}, 10")
    p(f"s_add_u32 s68, s68, {R_O:#x}")
    p(f"s_cmp_eq_u32 s{sWV}, 1")
    p(f"s_cselect_b32 s67, s68, s67")
    p(f"s_lshl_b32 s68, s{sR}, 9")
    p(f"s_cmp_eq_u32 s{sWV}, 2")
    p(f"s_cselect_b32 s67, s68, s67")
    p(f"s_add_u32 s68, s68, {R_MX:#x}")
    p(f"s_cmp_eq_u32 s{sWV}, 3")
    p(f"s_cselect_b32 s67, s68, s67")
    p(f"s_add_u32 s67, s67, s{sRB}")
    p(f"s_cmp_ge_u32 s{sWV}, 2")
    p(f"s_cselect_b64 s[74:75], s[72:73], -1")
    p(f"v_add_u32 v{t1}, s67, v{t0}")
    p(f"v_cndmask_b32 v{vRst}, v{t3}, v{t1}, s[74:75]")
    p(f"v_lshrrev_b32 v{t0}, 3, v{C}")
    p(f"v_lshl_add_u32 v{t1}, v{t0}, 3, v59")
    p(f"v_bfe_u32 v{t2}, v{C}, 2, 1")
    p(f"v_add_u32 v{t1}, v{t1}, v{t2}")
    p(f"v_and_b32 v{t2}, 1, v{G}")
    p(f"v_lshl_add_u32 v{t2}, v{t0}, 1, v{t2}")
    p(f"v_lshlrev_b32 v{t2}, 1, v{t2}")
    p(f"v_bfe_u32 v{t0}, v{C}, 1, 1")
    p(f"s_lshl_b32 s{sB}, s{sWV}, 1")
    p(f"v_add_u32 v{t0}, s{sB}, v{t0}")
    p(f"v_xor_b32 v{t0}, v{t0}, v{t2}")
    p(f"v_lshlrev_b32 v{t0}, 4, v{t0}")
    p(f"v_lshl_add_u32 v{t1}, v{t1}, 7, v{t0}")
    p(f"v_and_b32 v{t0}, 1, v{C}")
    p(f"v_lshl_add_u32 v{t1}, v{t0}, 3, v{t1}")
    p(f"v_add_u32 v{vTr0}, {L_WO}, v{t1}")
    p(f"v_add_u32 v{vTr1}, {L_WO + 65536}, v{t1}")
    p(f"v_lshrrev_b32 v{t0}, 2, v{L}")
    p(f"v_and_b32 v{t1}, 9, v{t0}")
    p(f"v_bfe_u32 v{t2}, v{t0}, 1, 1")
    p(f"v_lshl_add_u32 v{t1}, v{t2}, 2, v{t1}")
    p(f"v_bfe_u32 v{t2}, v{t0}, 2, 1")
    p(f"v_lshl_add_u32 v{t1}, v{t2}, 1, v{t1}")
    p(f"v_lshrrev_b32 v{t0}, 5, v{L}")
    p(f"v_lshlrev_b32 v{t0}, 1, v{t0}")
    p(f"v_and_b32 v{t2}, 3, v{L}")
    p(f"v_xor_b32 v{t0}, v{t0}, v{t2}")
    p(f"v_lshlrev_b32 v{t0}, 4, v{t0}")
    p(f"v_lshl_add_u32 v{t1}, v{t1}, 11, v{t0}")
    p(f"s_lshl_b32 s{sB}, s{sX}, 22")
    p(f"s_lshl_b32 s{sT3}, s{sWV}, 15")
    p(f"s_add_u32 s{sB}, s{sB}, s{sT3}")
    p(f"s_lshl_b32 s{sT3}, s{sR}, 6")
    p(f"s_add_u32 s{sB}, s{sB}, s{sT3}")
    p(f"v_add_u32 v{vWog}, s{sB}, v{t1}")
    p(f"v_lshrrev_b32 v{t0}, 3, v{C}")
    p(f"v_and_b32 v{t1}, 1, v{G}")
    p(f"v_lshlrev_b32 v{t1}, 1, v{t1}")
    p(f"v_lshl_add_u32 v{t1}, v{t0}, 3, v{t1}")
    p(f"v_bfe_u32 v{t2}, v{C}, 2, 1")
    p(f"v_add_u32 v{t1}, v{t1}, v{t2}")
    p(f"v_lshlrev_b32 v{t1}, 6, v{t1}")
    p(f"v_lshl_add_u32 v{t1}, v{t0}, 5, v{t1}")
    p(f"v_and_b32 v{t2}, 3, v{C}")
    p(f"v_lshl_add_u32 v{t1}, v{t2}, 3, v{t1}")
    p(f"v_lshrrev_b32 v{t0}, 1, v{G}")
    p(f"v_lshl_add_u32 v{t1}, v{t0}, 10, v{t1}")
    p(f"s_lshl_b32 s{sT3}, s{sWV}, 15")
    p(f"s_add_u32 s{sT3}, s{sT3}, {L_WO}")
    p(f"v_add_u32 v{vWoT0}, s{sT3}, v{t1}")
    p(f"v_xor_b32 v{vWoT1}, 32, v{vWoT0}")
    vM0a = 66
    p(f"v_lshlrev_b32 v{t0}, 11, v{MU}")
    p(f"v_lshl_add_u32 v{t0}, v{G}, 5, v{t0}")
    p(f"v_lshl_add_u32 v{t0}, v{BE}, 4, v{t0}")
    p(f"s_lshl_b32 s{sT3}, s{sWV}, 9")
    p(f"v_add_u32 v{vM0a}, s{sT3}, v{t0}")

    def read_chunk(half, dst, isa):
        va = vTr0 if half == 0 else vTr1
        for kk in range(8):
            ks = half * 8 + kk
            for q, off in enumerate((0, 256, 4096, 4352)):
                r = dst + 8 * ks + 2 * q
                reg = a(r, 2) if isa else v(r, 2)
                p(f"ds_read_b64_tr_b16 {reg}, v{va} offset:{kk * 8192 + off}")
        p("s_waitcnt lgkmcnt(0)")
        p("s_barrier")

    p("s_waitcnt vmcnt(23)")
    p("s_barrier")
    read_chunk(0, 0, True)
    srd(p, sW, pWK, 0x800000)
    dma_chunk(0, 0, vWg, 262144)
    p("s_waitcnt vmcnt(16)")
    p("s_barrier")
    lab = p.uid("nobar")
    p(f"s_cmp_lg_u32 s{sWV}, 0")
    p(f"s_cbranch_scc1 {lab}")
    p("s_mov_b64 exec, 1")
    p(f"v_mov_b32 v{t0}, 1")
    p(f"buffer_atomic_add v{t0}, off, s[{sDBG}:{sDBG + 3}], 0 offset:{D_CBAR * 4} sc1")
    p("s_mov_b64 exec, -1")
    p("s_waitcnt vmcnt(0)")
    p.label(lab)
    read_chunk(1, 0, True)
    dma_chunk(1, 512 * 8192, vWg, 262144)
    p("s_waitcnt vmcnt(16)")
    p("s_barrier")
    read_chunk(0, 128, True)
    srd(p, sW, pWV, 0x800000)
    dma_chunk(0, 0, vWg, 262144)
    p("s_waitcnt vmcnt(16)")
    p("s_barrier")
    read_chunk(1, 128, True)
    dma_chunk(1, 512 * 8192, vWg, 262144)
    p("s_waitcnt vmcnt(16)")
    p("s_barrier")
    read_chunk(0, vWV, False)
    srd(p, sW, pWO, 0x800000)
    dma_chunk(0, 0, vWog, 64 * 2048)
    p("s_waitcnt vmcnt(16)")
    p("s_barrier")
    read_chunk(1, vWV, False)
    dma_chunk(1, 1024 * 2048, vWog, 64 * 2048)
    p("s_waitcnt vmcnt(0)")
    p("s_barrier")
    for kk in range(8):
        b = 68 + 16 * (kk % 2)
        for t in range(2):
            va = vWoT0 if t == 0 else vWoT1
            for q, off in enumerate((0, 256, 2048, 2304)):
                p(f"ds_read_b64_tr_b16 {v(b + 8 * t + 2 * q, 2)}, v{va} offset:{kk * 4096 + off}")
        p("s_waitcnt lgkmcnt(0)")
        for q in range(4):
            p(f"ds_write_b128 v{vWo}, {v(b + 4 * q, 4)} offset:{kk * 4096 + q * 1024}")
    srd(p, sW, pMEM, 16384)
    p(f"v_mov_b32 v{vT0}, v{vM0a}")
    for kk in range(4):
        p(f"buffer_load_dwordx4 {v(vF + 4 * kk, 4)}, v{vT0}, s[{sW}:{sW + 3}], 0 offen offset:{kk * 128}")
    lab = p.uid("cbar")
    p(f"s_mov_b32 s{sBUD}, 0x40000")
    p.label(lab)
    p(f"buffer_load_dword v{vT1}, off, s[{sDBG}:{sDBG + 3}], 0 offset:{D_CBAR * 4} sc1")
    p("s_waitcnt vmcnt(0)")
    p(f"v_readfirstlane_b32 s{sT0}, v{vT1}")
    p(f"s_cmp_ge_u32 s{sT0}, 64")
    p(f"s_cbranch_scc1 {lab}_ok")
    p(f"s_sub_u32 s{sBUD}, s{sBUD}, 1")
    p(f"s_cmp_lg_u32 s{sBUD}, 0")
    p(f"s_cbranch_scc1 {lab}")
    p.label(lab + "_ok")
    p(f"s_lshr_b32 s{sKVB}, s{sR}, 1")
    p(f"s_lshl_b32 s{sT3}, s{sX}, 4")
    p(f"s_add_u32 s{sKVB}, s{sKVB}, s{sT3}")
    p(f"s_lshl_b32 s{sKVB}, s{sKVB}, 6")
    p(f"s_add_u32 s{sKVB}, s{sKVB}, {FL2 + 40:#x}")
    p(f"s_mov_b32 s{sKVC}, s{sKVB}")
    if kvwait:
        for nm, tgt, msk, ld in (
                ("xn0", 32, 28, f"buffer_load_dword v{vT1}, v{vT0}, s[{sDBG}:{sDBG + 3}], 0 offen offset:{D_XN * 4} sc1"),
                ("kv0", 1, 4, f"buffer_load_dword v{vT1}, v{vT0}, s[{sWS}:{sWS + 3}], s{sKVC} offen sc1")):
            lab = p.uid(nm)
            p(f"v_and_b32 v{vT0}, {msk}, v{vFr}")
            p(f"s_mov_b32 s{sBUD}, 0x40000")
            p.label(lab)
            p(ld)
            p("s_waitcnt vmcnt(0)")
            p(f"v_cmp_gt_u32 vcc, {tgt}, v{vT1}")
            p(f"s_cbranch_vccz {lab}_ok")
            p(f"s_sub_u32 s{sBUD}, s{sBUD}, 1")
            p(f"s_cmp_lg_u32 s{sBUD}, 0")
            p(f"s_cbranch_scc1 {lab}")
            p.label(lab + "_ok")
    p(f"s_mov_b32 s{sBUD}, 0x40000")
    p(f"s_mov_b32 s{sS}, 0")
    p(f"s_mov_b32 s{sS1}, 1")
    p(f"s_mov_b32 s{sCUR}, 0")
    p(f"s_mov_b32 s{sCUR4}, 4096")
    p(f"s_mov_b32 s{sNXT}, {SLOT:#x}")
    p("s_mov_b32 s93, 0")
    p(f"s_mov_b32 s{sB1}, 0xcccccccc")
    p(f"s_mov_b32 s{sB1 + 1}, 0xcccccccc")
    p(f"s_mov_b32 s{sPRV}, {3 * SLOT:#x}")
    p(f"s_mov_b32 s{sKV0}, 0")
    p(f"s_mov_b32 s{sKV1}, 0x40000")
    p(f"s_mov_b32 s{sKM}, 0")
    p(f"s_mov_b32 s{sKMP}, 0x4000000")
    for k in range(4):
        p(f"s_mov_b32 s{sCNT + k}, 0")
    p(f"s_lshl_b32 s{sKXM0}, s{sWV}, 10")
    p(f"s_add_u32 s{sKXM0}, s{sKXM0}, {L_KX}")
    p(f"s_mov_b32 m0, s{sKXM0}")
    p(f"s_xor_b32 s{sKXM0}, s{sKXM0}, 4096")
    p(f"buffer_load_dwordx4 v{vKxg}, s[{sWS}:{sWS + 3}], s{sKV0} offen sc1 lds")
    for k in range(12):
        p(f"v_mov_b32 v{vDq + k}, 0")
    p("s_waitcnt vmcnt(0)")


def retry_head(p, site, cont):
    p(f"s_add_u32 s{sCNT + site}, s{sCNT + site}, 1")
    p(f"s_cmp_eq_u32 s{sBUD}, 0")
    p(f"s_cbranch_scc1 {cont}")
    p(f"s_sub_u32 s{sBUD}, s{sBUD}, 1")


def check_sent(p, regs, tmp, target):
    regs = list(regs)
    first = regs[:3]
    rest = regs[3:]
    if len(first) == 3:
        p(f"v_max3_u32 v{tmp}, v{first[0]}, v{first[1]}, v{first[2]}")
    else:
        p(f"v_max_u32 v{tmp}, v{first[0]}, v{first[1]}")
    while rest:
        if len(rest) >= 2:
            p(f"v_max3_u32 v{tmp}, v{tmp}, v{rest[0]}, v{rest[1]}")
            rest = rest[2:]
        else:
            p(f"v_max_u32 v{tmp}, v{tmp}, v{rest[0]}")
            rest = []
    p(f"v_cmp_eq_u32 vcc, -1, v{tmp}")
    p(f"s_cbranch_vccnz {target}")


def masked_reload(q, items):
    for k, (regs, _) in enumerate(items):
        if len(regs) == 1:
            q(f"v_cmp_eq_u32 s[{sMK + 2 * k}:{sMK + 2 * k + 1}], -1, v{regs[0]}")
        else:
            q(f"v_max_u32 v{vT0}, v{regs[0]}, v{regs[1]}")
            q(f"v_cmp_eq_u32 s[{sMK + 2 * k}:{sMK + 2 * k + 1}], -1, v{vT0}")
    for k, (_, ld) in enumerate(items):
        q(f"s_mov_b64 exec, s[{sMK + 2 * k}:{sMK + 2 * k + 1}]")
        q(ld)
    q("s_mov_b64 exec, -1")


def chain_loop(p, w, tag, sc_all=False, stamp=None, done="DONE", opt=None):
    opt = opt or {}
    WS = f"s[{sWS}:{sWS + 3}]"
    loc = " sc1" if sc_all else ""
    tail = Prog()
    B1 = f"s[{sB1}:{sB1 + 1}]"
    DPP = "row_mask:0xf bank_mask:0xf"

    def st(k):
        if stamp is not None and (k in stamp):
            p(f"s_memtime s[{sTS + 2 * k}:{sTS + 2 * k + 1}]")

    def F(u):
        return v(vF + 4 * u, 4)

    def ks_of(u):
        return (4 * w + u) % 16

    def smq(u):
        p(f"v_smfmac_f32_16x16x64_bf16 {v(vDq, 4)}, {F(u)}, {a(8 * ks_of(u), 8)}, v{vIdx}")

    def smk(u):
        p(f"v_smfmac_f32_16x16x64_bf16 {v(vDk, 4)}, {F(u)}, {a(128 + 8 * ks_of(u), 8)}, v{vIdx}")

    def smv(u):
        p(f"v_smfmac_f32_16x16x64_bf16 {v(vDv, 4)}, {F(u)}, {v(vWV + 8 * ks_of(u), 8)}, v{vIdx}")

    def stw(kk):
        p(f"ds_write_b128 v{vSt}, {F(kk)} offset:{L_ST + (4 * w + kk) * 1024}")

    def strd(u):
        p(f"ds_read_b128 {F(u)}, v{vSt} offset:{L_ST + ks_of(u) * 1024}")

    def merge(d, q=p):
        q(f"v_pk_add_f32 {v(d, 2)}, {v(d, 2)}, {v(d + 2, 2)}")

    def mo_ld(kk):
        return f"buffer_load_dwordx4 {v(vMO + 4 * kk, 4)}, v{vMOr}, {WS}, s{sCUR} offen offset:{kk * 1024} sc1"

    def mx_ld(kk):
        return f"buffer_load_dwordx4 {v(vMX + 4 * kk, 4)}, v{vMXr}, {WS}, s{sCUR} offen offset:{kk * 1024} sc1"

    def probe_pipe(sa, val, nm, regs):
        K = len(regs)
        for k in range(K - 1):
            p(f"buffer_load_dword v{regs[k]}, v{vFr}, {WS}, s{sa} offen sc1")
        p.label(f"{tag}_{nm}_probe")
        for k in range(K):
            p(f"buffer_load_dword v{regs[(k + K - 1) % K]}, v{vFr}, {WS}, s{sa} offen sc1")
            p(f"s_waitcnt vmcnt({K - 1})")
            p(f"v_cmp_gt_u32 vcc, {val}, v{regs[k]}")
            p(f"s_cbranch_vccz {tag}_{nm}_go")
        p(f"s_add_u32 s93, s93, {K}")
        p(f"s_sub_u32 s{sBUD}, s{sBUD}, 1")
        p(f"s_cmp_gt_i32 s{sBUD}, 0")
        p(f"s_cbranch_scc1 {tag}_{nm}_probe")
        p(f"s_mov_b32 s{sBUD}, 0")
        p.label(f"{tag}_{nm}_go")

    KMr = vFREE

    def km_read():
        for hh in range(2):
            p(f"ds_read_b64_tr_b16 {v(KMr + 2 * hh, 2)}, v{vXq} offset:{w * 2048 + hh * 256 + 512}")

    def slow_ops():
        p(f"s_mov_b32 m0, s{sKXM0}")
        p(f"s_xor_b32 s{sKXM0}, s{sKXM0}, 4096")
        p(f"buffer_load_dwordx4 v{vKxg}, {WS}, s{sKV1} offen sc1 lds")
        p(f"buffer_load_dwordx4 {v(vVX, 4)}, v{vVx}, {WS}, s{sKV0} offen sc1")

    slow = opt.get("slow", 1)
    p.label(f"{tag}_entry")
    if w == 3:
        p(f"v_mov_b32 v{vKM}, 1")
    for kk in range(4):
        stw(kk)
    if slow == 0:
        slow_ops()
    p(f"s_branch {tag}_apost")

    p.label(f"{tag}_top")
    st(0)
    if w < 2:
        km_read()
    for k in range(12):
        p(f"v_mov_b32 v{vDq + k}, 0")
    p("s_waitcnt vmcnt(0)")
    p("s_barrier")
    for kk in range(4):
        p(mo_ld(kk))
    for kk in range(4):
        p(mx_ld(kk))
    st(1)
    p("s_waitcnt vmcnt(4)")
    p.label(f"{tag}_mo_chk")
    check_sent(p, [vMO + 4 * k for k in range(4)], vT0, f"{tag}_mo_retry")
    p.label(f"{tag}_mo_ok")
    tail.label(f"{tag}_mo_retry")
    retry_head(tail, 0, f"{tag}_mo_ok")
    masked_reload(tail, [([vMO + 4 * k], mo_ld(k)) for k in range(4)])
    tail("s_waitcnt vmcnt(0)")
    tail(f"s_branch {tag}_mo_chk")
    for i in range(8):
        p(f"v_mfma_f32_4x4x4_16b_bf16 {v(vACC + 4 * i, 4)}, {v(vID, 2)}, {v(vMO + 2 * i, 2)}, 0")
    st(2)
    p("s_waitcnt vmcnt(0) lgkmcnt(0)")
    p.label(f"{tag}_mx_chk")
    check_sent(p, [vMX + 4 * k for k in range(4)], vT0, f"{tag}_mx_retry")
    p.label(f"{tag}_mx_ok")
    tail.label(f"{tag}_mx_retry")
    retry_head(tail, 1, f"{tag}_mx_ok")
    masked_reload(tail, [([vMX + 4 * k], mx_ld(k)) for k in range(4)])
    tail("s_waitcnt vmcnt(0)")
    tail(f"s_branch {tag}_mx_chk")
    st(3)

    def acc(i):
        p(f"v_mfma_f32_4x4x4_16b_bf16 {v(vACC + 4 * i, 4)}, {v(vID, 2)}, {v(vMX + 2 * i, 2)}, {v(vACC + 4 * i, 4)}")

    def cv(i):
        p(f"v_cvt_pk_bf16_f32 v{vF + 2 * i}, v{vACC + 4 * i}, v{vACC + 4 * i + 1}")
        p(f"v_cvt_pk_bf16_f32 v{vF + 2 * i + 1}, v{vACC + 4 * i + 2}, v{vACC + 4 * i + 3}")

    acc(0); acc(1); acc(2)
    if slow == 0:
        slow_ops()
    acc(3)
    cv(0)
    acc(4)
    cv(1)
    stw(0)
    acc(5); cv(2)
    acc(6); cv(3); stw(1)
    acc(7)
    cv(4); cv(5); stw(2)
    cv(6); cv(7); stw(3)
    p.label(f"{tag}_apost")
    smq(0); smk(0); smq(1); smk(1)
    if slow == 1:
        slow_ops()
    p("s_waitcnt lgkmcnt(0)")
    p("s_barrier")
    st(4)
    for u in range(4, 16):
        strd(u)
        if u == 7:
            smq(2)
        if u == 10:
            smk(2)
        if u == 13:
            smq(3)
    smk(3)
    extra = []
    rsc = " sc1" if (w == 3 or sc_all) else ""
    if w < 2:
        extra.append(f"buffer_store_dwordx4 {v(KMr, 4)}, v{vKM}, {WS}, s{sKMP} offen sc1")
    extra.append(f"buffer_store_dword v{vVMo}, v{vVM}, {WS}, s{sKMP} offen sc1")
    extra.append(f"buffer_store_dwordx4 {v(vSENT, 4)}, v{vRst}, {WS}, s{sPRV} offen{rsc}")
    if w == 0:
        extra.append(f"buffer_store_dwordx4 {v(vSENT, 4)}, v{vRst}, {WS}, s{sPRV} offen offset:1024{rsc}")
    kvchk = w == 3 and opt.get("kv", True)
    vKVF = vKM
    kv_ld = ["s_mov_b64 exec, 3", f"buffer_load_dword v{vKVF}, v{vFr}, {WS}, s{sKVC} offen sc1", "s_mov_b64 exec, -1"]
    if kvchk:
        extra.append(kv_ld)
    KX, Q2, K2 = vF, vFREE, vF + 16
    T = [vDq, vDk, vFREE + 8]
    for u in range(4, 16):
        p(f"s_waitcnt lgkmcnt({15 - u + max(0, u - 12)})")
        smq(u)
        if extra:
            x = extra.pop(0)
            for y in (x if isinstance(x, list) else [x]):
                p(y)
        if u >= 12:
            p(f"ds_read_b128 {v(KX + 4 * (u - 12), 4)}, v{vKxl} offset:{(u - 12) * 1024}")
        if u == 15:
            p(f"s_cmp_eq_u32 s{sS}, 63")
        smk(u)
    assert not extra
    st(5)

    def to_x(d, off):
        merge(d)
        p(f"v_cvt_pk_bf16_f32 v{d}, v{d}, v{d + 1}")
        p(f"ds_write2_b32 v{vXw}, v{d}, v{d} offset0:{off} offset1:{off + 1}")

    p(f"s_cbranch_scc1 {tag}_last")
    smv(6)
    to_x(vDq, 0)
    to_x(vDk, 128)
    smv(7)
    p(f"v_xor_b32 v{vKxl}, 4096, v{vKxl}")
    p("s_waitcnt lgkmcnt(0)")
    p("s_barrier")
    for ks in range(2):
        for hh in range(2):
            p(f"ds_read_b64_tr_b16 {v(Q2 + 4 * ks + 2 * hh, 2)}, v{vXq} offset:{ks * 2048 + hh * 256}")
    for ks in range(2):
        for hh in range(2):
            p(f"ds_read_b64_tr_b16 {v(K2 + 4 * ks + 2 * hh, 2)}, v{vXq} offset:{ks * 2048 + hh * 256 + 512}")
    nsh = opt.get("bsh", 3)
    for u in range(8, 8 + nsh):
        smv(u)

    def tile(t):
        for ks in range(2):
            A = v(K2 + 4 * ks, 4) if t == 2 else v(KX + 8 * t + 4 * ks, 4)
            C = "0" if ks == 0 else v(T[t], 4)
            p(f"v_mfma_f32_16x16x32_bf16 {v(T[t], 4)}, {A}, {v(Q2 + 4 * ks, 4)}, {C}")

    if w % 2:
        p("s_waitcnt lgkmcnt(0)")
        tile(2); tile(0)
        p(f"buffer_store_dword v{T[2] + w // 2}, v{vSw}, {WS}, s{sCUR} offen{loc}")
        tile(1)
    else:
        p("s_waitcnt lgkmcnt(4)")
        tile(w // 2); tile(1 - w // 2)
        p(f"buffer_store_dwordx4 {v(T[w // 2], 4)}, v{vSw}, {WS}, s{sCUR} offen{loc}")
        p("s_waitcnt lgkmcnt(0)")
        tile(2)
    st(6)
    rest = list(range(8 + nsh, 16))
    for u in range(6):
        strd(u)
        if rest:
            smv(rest.pop(0))
    while rest:
        smv(rest.pop(0))
    SO, SOm, SP, SPm, PM = vDq, T[2], vDk, T[2] + 1, T[2] + 2
    for k in range(4):
        p(f"v_cndmask_b32 v{SO + k}, v{T[0] + k}, v{T[1] + k}, {B1}")
    p(f"v_cndmask_b32 v{SOm}, v{T[2]}, v{T[2] + 1}, {B1}")
    p(f"v_mov_b32 v{PM + 1}, 0")
    WB = [vF + 24 + 8 * i for i in range(5)]
    NB = len(WB)

    def wo_read(n, q=p):
        b = WB[n % NB]
        for hh in range(2):
            q(f"ds_read_b128 {v(b + 4 * hh, 4)}, v{vWo} offset:{n * 2048 + hh * 1024}")

    s_lds = [f"buffer_load_dwordx4 {v(SP, 4)}, v{vSr}, {WS}, s{sCUR} offen sc1",
             f"buffer_load_dword v{SPm}, v{vSr}, {WS}, s{sCUR} offen offset:1024 sc1"]
    spos = opt.get("s_pos", 0)

    def s_issue():
        if stamp is not None:
            stamp_flush(p, w, stamp)
            p("s_waitcnt vmcnt(1)")
        else:
            p("s_waitcnt vmcnt(0)")
        for x in s_lds:
            p(x)
        if kvchk:
            p.label(f"{tag}_kv_chk")
            p(f"v_cmp_eq_u32 vcc, 0, v{vKVF}")
            p(f"s_cbranch_vccnz {tag}_kv_retry")
            p.label(f"{tag}_kv_ok")
            tail.label(f"{tag}_kv_retry")
            tail(f"s_cmp_eq_u32 s{sBUD}, 0")
            tail(f"s_cbranch_scc1 {tag}_kv_ok")
            tail(f"s_sub_u32 s{sBUD}, s{sBUD}, 1")
            for y in kv_ld:
                tail(y)
            tail("s_waitcnt vmcnt(0)")
            tail(f"s_branch {tag}_kv_chk")

    for u in range(6):
        if u == spos:
            s_issue()
        if u == 0:
            p("s_waitcnt lgkmcnt(0)")
        smv(u)
        if u >= 1:
            wo_read(u - 1)
    if spos >= 6:
        s_issue()
    p(f"s_mov_b32 s{sT0}, {fhex(CEXP)}")
    merge(vDv)
    p(f"v_cvt_pk_bf16_f32 v{vVMo}, v{vDv}, v{vDv + 1}")
    st(7)
    p("s_waitcnt vmcnt(0)")
    p.label(f"{tag}_s_chk")
    p(f"v_pk_add_f32 {v(SP, 2)}, {v(SP, 2)}, {v(SO, 2)}")
    p(f"v_pk_add_f32 {v(SP + 2, 2)}, {v(SP + 2, 2)}, {v(SO + 2, 2)}")
    p(f"v_add_f32 v{SPm}, v{SPm}, v{SOm}")
    p(f"v_maximum3_f32 v{vT0}, v{SP}, v{SP + 1}, v{SP + 2}")
    p(f"v_maximum3_f32 v{vT0}, v{vT0}, v{SP + 3}, v{SPm}")
    p(f"v_cmp_u_f32 vcc, v{vT0}, v{vT0}")
    p(f"s_cbranch_vccnz {tag}_s_retry")
    p.label(f"{tag}_s_ok")
    tail.label(f"{tag}_s_retry")
    retry_head(tail, 2, f"{tag}_s_ok")
    for x in s_lds:
        tail(x)
    tail("s_waitcnt vmcnt(0)")
    tail(f"s_branch {tag}_s_chk")
    st(8)
    E0, E1 = vDq, vDk
    zfill = [E0 + k for k in range(4)]

    def z(n):
        for _ in range(n):
            if zfill:
                p(f"v_mov_b32 v{zfill.pop(0)}, 0")

    p(f"v_max_f32_dpp v{vT1}, v{vT0}, v{vT0} quad_perm:[2,3,0,1] {DPP}")
    p(f"v_max_f32_dpp v{vT2}, v{vT0}, v{vT0} quad_perm:[2,3,0,1] {DPP}")
    z(2)
    p(f"v_permlane32_swap_b32 v{vT1}, v{vT2}")
    p(f"v_max_f32 v{vT0}, v{vT1}, v{vT2}")
    p(f"v_max_f32 v{vT1}, v{vT1}, v{vT2}")
    z(2)
    p(f"v_permlane16_swap_b32 v{vT0}, v{vT1}")
    p(f"v_max_f32 v{vT0}, v{vT0}, v{vT1}")
    p(f"v_mul_f32 v{vT0}, {fhex(-CEXP)}, v{vT0}")
    P, LL, O, OP = 52, 56, 60, vDv

    def pfma(r):
        p(f"v_pk_fma_f32 {v(r, 2)}, {v(r, 2)}, s[{sT0}:{sT0 + 1}], {v(vT0, 2)} op_sel_hi:[1,0,0]")

    p(f"v_fma_f32 v{SPm}, v{SPm}, s{sT0}, v{vT0}")
    pfma(SP)
    p(f"v_exp_f32 v{SPm}, v{SPm}")
    pfma(SP + 2)
    p(f"v_exp_f32 v{SP}, v{SP}")
    p(f"v_mov_b32_dpp v{vT1}, v{SPm} quad_perm:[2,3,2,3] {DPP}")
    p(f"v_exp_f32 v{SP + 1}, v{SP + 1}")
    p(f"v_cvt_pk_bf16_f32 v{PM}, v{SPm}, v{vT1}")
    p(f"v_exp_f32 v{SP + 2}, v{SP + 2}")
    p(f"v_cvt_pk_bf16_f32 v{P}, v{SP}, v{SP + 1}")
    p(f"v_exp_f32 v{SP + 3}, v{SP + 3}")
    p(f"v_mfma_f32_16x16x16_bf16 {v(LL, 4)}, {v(vONE, 2)}, {v(PM, 2)}, 0")
    p(f"v_cvt_pk_bf16_f32 v{P + 1}, v{SP + 2}, v{SP + 3}")
    p(f"v_mov_b32_dpp v{P + 2}, v{P} quad_perm:[2,3,2,3] {DPP}")
    p(f"v_mfma_f32_16x16x16_bf16 {v(O, 4)}, {v(vVMo, 2)}, {v(PM, 2)}, 0")
    p(f"v_mov_b32_dpp v{P + 3}, v{P + 1} quad_perm:[2,3,2,3] {DPP}")
    zfill = [E1 + k for k in range(4)]
    z(2)
    p(f"v_mfma_f32_16x16x32_bf16 {v(LL, 4)}, {v(vONE, 4)}, {v(P, 4)}, {v(LL, 4)}")
    p(f"v_mfma_f32_16x16x32_bf16 {v(O, 4)}, {v(vVX, 4)}, {v(P, 4)}, {v(O, 4)}")
    z(2)
    p(f"v_mov_b32 v{vT2}, s{sS1}")
    p(f"v_rcp_f32 v{vT0}, v{LL}")
    for r in (0, 2):
        p(f"v_pk_mul_f32 {v(O + r, 2)}, {v(O + r, 2)}, {v(vT0, 2)} op_sel_hi:[1,0]")
    p(f"v_cvt_pk_bf16_f32 v{OP}, v{O}, v{O + 1}")
    p(f"v_cvt_pk_bf16_f32 v{OP + 1}, v{O + 2}, v{O + 3}")
    p(f"buffer_store_dwordx2 {v(OP, 2)}, v{vOw}, {WS}, s{sCUR} offen{loc}")
    p("s_mov_b64 exec, 1")
    p(f"buffer_store_dword v{vT2}, off, {WS}, s{sFO}{loc}")
    p("s_mov_b64 exec, -1")
    st(9)
    OL = [52, 56, 60, 64, 68, 72, 116, 120]

    def o_ld(kk):
        so = sCUR if kk < 4 else sCUR4
        return f"buffer_load_dwordx4 {v(OL[kk], 4)}, v{vOr}, {WS}, s{so} offen offset:{(kk % 4) * 1024} sc1"

    oack = opt.get("oack", 1)
    if oack:
        p(f"s_waitcnt vmcnt({oack - 1})")
    probe_pipe(sFOr, f"s{sS1}", "o", [vT0, vT1])
    for kk in range(8):
        p(o_ld(kk))
    st(10)
    p.label(f"{tag}_o_run")
    for kk in range(8):
        for t_ in range(2):
            n = 2 * kk + t_
            lg = 2 * (min(NB, 16 - n) - 1)
            wt = f"vmcnt({7 - kk}) " if t_ == 0 else ""
            p(f"s_waitcnt {wt}lgkmcnt({lg})")
            p(f"v_smfmac_f32_16x16x64_bf16 {v(E0 if t_ == 0 else E1, 4)}, {v(OL[kk], 4)}, {v(WB[n % NB], 8)}, v{vIdx}")
            if n + NB < 16:
                wo_read(n + NB)
            if t_ == 0:
                if kk == 0:
                    p(f"v_max_u32 v{vT0}, v{OL[kk]}, v{OL[kk] + 2}")
                else:
                    p(f"v_max3_u32 v{vT0}, v{vT0}, v{OL[kk]}, v{OL[kk] + 2}")
                if kk == 7:
                    p(f"v_cmp_eq_u32 vcc, -1, v{vT0}")
    p(f"s_cbranch_vccnz {tag}_o_redo")
    p.label(f"{tag}_o_end")
    tail.label(f"{tag}_o_redo")
    retry_head(tail, 3, f"{tag}_o_end")
    for part in (range(4), range(4, 8)):
        masked_reload(tail, [([OL[kk], OL[kk] + 2], o_ld(kk)) for kk in part])
    for k in range(8):
        tail(f"v_mov_b32 v{E0 + k}, 0")
    for n in range(NB):
        wo_read(n, tail)
    tail(f"s_branch {tag}_o_run")
    st(11)
    p(f"s_mov_b32 s{sPRV}, s{sCUR}")
    p(f"s_mov_b32 s{sCUR}, s{sNXT}")
    merge(E0)
    p(f"ds_write2st64_b32 v{vRw}, v{E0}, v{E0 + 1} offset0:0 offset1:1")
    p(f"s_add_u32 s{sCUR4}, s{sCUR}, 4096")
    merge(E1)
    p(f"ds_write2st64_b32 v{vRw}, v{E1}, v{E1 + 1} offset0:8 offset1:9")
    p(f"s_mov_b32 s{sS}, s{sS1}")
    p(f"s_add_u32 s{sS1}, s{sS1}, 1")
    p(f"s_add_u32 s{sNXT}, s{sNXT}, {SLOT:#x}")
    p(f"s_and_b32 s{sNXT}, s{sNXT}, {3 * SLOT:#x}")
    p(f"s_mov_b32 s{sKV0}, s{sKV1}")
    p(f"s_add_u32 s{sKV1}, s{sKV1}, 0x40000")
    p(f"s_mov_b32 s{sKMP}, s{sKM}")
    p(f"s_add_u32 s{sKM}, s{sKM}, 0x10000")
    p("s_waitcnt lgkmcnt(0)")
    p("s_barrier")
    RD = 52
    for q in range(2):
        p(f"ds_read_b128 {v(RD + 4 * q, 4)}, v{vRr} offset:{16 * q}")
    if kvchk:
        p(f"s_add_u32 s{sKVC}, s{sS}, 2")
        p(f"s_lshr_b32 s{sKVC}, s{sKVC}, 3")
        p(f"s_min_u32 s{sKVC}, s{sKVC}, 7")
        p(f"s_lshl_b32 s{sKVC}, s{sKVC}, 11")
        p(f"s_add_u32 s{sKVC}, s{sKVC}, s{sKVB}")
    p("s_waitcnt lgkmcnt(1)")
    merge(RD)
    p("s_waitcnt lgkmcnt(0)")
    merge(RD + 4)
    p(f"v_pk_add_f32 {v(RD, 2)}, {v(RD, 2)}, {v(RD + 4, 2)}")
    p(f"v_cvt_pk_bf16_f32 v{vT1}, v{RD}, v{RD + 1}")
    p(f"buffer_store_dword v{vT1}, v{vMw}, {WS}, s{sCUR} offen{' sc1' if w in (1, 2) else loc}")
    p(f"s_branch {tag}_top")

    p.label(f"{tag}_last")
    p("s_waitcnt lgkmcnt(0)")
    for u in range(4):
        strd(u)
    smv(4); smv(5)
    to_x(vDk, 128)
    for u in range(6, 10):
        smv(u)
    p("s_waitcnt lgkmcnt(0)")
    p("s_barrier")
    if w < 2:
        km_read()
    for u in range(10, 14):
        smv(u)
    if w < 2:
        p("s_waitcnt lgkmcnt(0)")
        p(f"buffer_store_dwordx4 {v(KMr, 4)}, v{vKM}, {WS}, s{sKM} offen sc1")
    for u in (14, 15, 0, 1, 2, 3):
        smv(u)
    merge(vDv)
    p(f"v_cvt_pk_bf16_f32 v{vVMo}, v{vDv}, v{vDv + 1}")
    p(f"buffer_store_dword v{vVMo}, v{vVM}, {WS}, s{sKM} offen sc1")
    p(f"s_branch {done}")
    p.items += tail.items


def stamp_flush(p, w, stamp):
    p("s_waitcnt lgkmcnt(0)")
    p(f"s_lshl_b32 s{sT0}, s{sX}, 5")
    p(f"s_add_u32 s{sT0}, s{sT0}, s{sR}")
    p(f"s_lshl_b32 s{sT0}, s{sT0}, 14")
    p(f"s_lshl_b32 s{sT1}, s{sS}, 6")
    p(f"s_add_u32 s{sT0}, s{sT0}, s{sT1}")
    p(f"s_add_u32 s{sT0}, s{sT0}, {STAT + w * 4096:#x}")
    p(f"v_mov_b32 v{vT0}, 0")
    for k in sorted(stamp):
        p(f"v_writelane_b32 v{vT0}, s{sTS + 2 * k}, {k}")
    for k in range(4):
        p(f"v_writelane_b32 v{vT0}, s{sCNT + k}, {12 + k}")
    p(f"v_mbcnt_lo_u32_b32 v{vT1}, -1, 0")
    p(f"v_lshlrev_b32 v{vT1}, 2, v{vT1}")
    p("s_mov_b64 exec, 0xffff")
    p(f"buffer_store_dword v{vT0}, v{vT1}, s[{sWS}:{sWS + 3}], s{sT0} offen")
    p("s_mov_b64 exec, -1")
```

```python
from common import *

XN = 0x0000000
KF = 0x0400000
VF = 0x1400000
KM = 0x2400000
VM = 0x2800000
OF = 0x2C00000
HF = 0x3C00000
YF = 0x4A00000
RING = 0x5000000
STAT = 0x5400000
XS = 0x80000
SLOT = 0x20000
R_MO, R_MX, R_O, R_S = 0, 0x4000, 0x8000, 0x10000
FLG = 0x5100000
FL2 = 0x5200000
OOB = 0x80000000

D_RANK = 0
D_CBAR = 9
D_XN = 25
D_KV = 24
D_HF = 32
D_Y = 40
D_OF = 48

sWS, sDBG, sW = 4, 8, 12
pX, pMEM, pWQ, pWK, pWV, pWO, pW1, pW2, pOUT, pDBG, pWSP = 16, 18, 20, 22, 24, 26, 32, 34, 36, 38, 40
sX, sR, sWV = 42, 43, 44
sS, sCUR, sNXT, sPRV, sCUR4 = 45, 46, 50, 48, 49
sKV0, sKV1, sKM, sKXM0, sBUD = 51, 52, 53, 54, 55
sT0, sT1, sT2, sT3 = 56, 57, 58, 59
sCNT = 60
sTS = 64
sKMP, sFO, sFM, sFOr, sFMr, sS1 = 3, 88, 89, 90, 91, 92
sKVC, sKVB = 47, 24
sB1 = 32
sMK = 16

L_ST, L_KX, L_X, L_R, L_WO = 0, 16384, 24576, 28672, 32768

(vMOr, vMXr, vOr, vOw, vSw, vSr, vMw, vKM, vVM, vVx, vKxg, vRst, vSt, vXw, vXq, vKxl, vRw, vRr, vWo,
 vIdx) = range(1, 21)
vFr = 0
vT0, vT1, vT2 = 22, 23, 21
vID = 24
vONE = 26
vVMo = 30
vSENT = 32
vVX = 36
vDq, vDk, vDv = 40, 44, 48
vF = 52
vMO, vMX, vACC = 52, 68, 84
vFREE = 116
vWV = 128

CEXP = 0.08838834764831845 * 1.4426950408889634


def fhex(x):
    import struct
    return "0x%08x" % struct.unpack("<I", struct.pack("<f", x))[0]


vWg = 119
sM0, sSO = 64, 65


def dma_chunk(p, half, src_off, vaddr, step, wmod=""):
    for n in range(16):
        p(f"s_add_u32 m0, s{sM0}, {half * 65536 + n * 4096}")
        p(f"s_mov_b32 s{sSO}, {src_off + n * step:#x}")
        p(f"buffer_load_dwordx4 v{vaddr}, s[{sW}:{sW + 3}], s{sSO} offen{wmod} lds")


def chain_init_a(p, wmod=""):
    L, t0, t1 = 112, 113, 114
    sB = sT2
    p(f"v_and_b32 v{L}, 63, v0")
    p(f"v_lshrrev_b32 v{t0}, 5, v{L}")
    p(f"s_and_b32 s{sB}, s{sWV}, 1")
    p(f"s_lshl_b32 s{sB}, s{sB}, 1")
    p(f"v_add_u32 v{t0}, s{sB}, v{t0}")
    p(f"v_lshlrev_b32 v{t0}, 1, v{t0}")
    p(f"v_and_b32 v{t1}, 7, v{L}")
    p(f"v_xor_b32 v{t0}, v{t0}, v{t1}")
    p(f"v_lshlrev_b32 v{t0}, 4, v{t0}")
    p(f"v_lshrrev_b32 v{t1}, 3, v{L}")
    p(f"v_lshl_add_u32 v{vWg}, v{t1}, 13, v{t0}")
    p(f"s_lshl_b32 s{sB}, s{sWV}, 16")
    p(f"s_lshl_b32 s{sT3}, s{sX}, 12")
    p(f"s_add_u32 s{sB}, s{sB}, s{sT3}")
    p(f"s_lshl_b32 s{sT3}, s{sR}, 7")
    p(f"s_add_u32 s{sB}, s{sB}, s{sT3}")
    p(f"v_add_u32 v{vWg}, s{sB}, v{vWg}")
    p(f"s_lshl_b32 s{sM0}, s{sWV}, 10")
    p(f"s_add_u32 s{sM0}, s{sM0}, {L_WO}")
    srd(p, sW, pWQ, 0x800000)
    dma_chunk(p, 0, 0, vWg, 262144, wmod)
    dma_chunk(p, 1, 512 * 8192, vWg, 262144, wmod)


def chain_init(p, kvwait=True, wmod="", mark=None, ln_stores=0, ln_word=None, isc=""):
    L, G, C, t0, t1, t2, t3 = 52, 53, 54, 55, 56, 57, 58
    p(f"v_and_b32 v{L}, 63, v0")
    p(f"v_lshrrev_b32 v{G}, 4, v{L}")
    p(f"v_and_b32 v{C}, 15, v{L}")
    sH, sJ, sB = sT0, sT1, sT2
    if ln_word is not None:
        p(f"s_mov_b32 s76, s{ln_word}")
    p(f"s_lshr_b32 s{sH}, s{sR}, 1")
    p(f"s_lshl_b32 s{sT3}, s{sX}, 4")
    p(f"s_add_u32 s{sH}, s{sH}, s{sT3}")
    p(f"s_and_b32 s{sJ}, s{sR}, 1")
    vWog, vTr0, vTr1 = 61, 62, 63
    vWoT0, vWoT1 = 64, 65

    def dma(half, src_off, vaddr, step):
        dma_chunk(p, half, src_off, vaddr, step, wmod)

    sRB = 66
    p(f"s_mul_i32 s{sRB}, s{sX}, {XS:#x}")
    p(f"s_add_u32 s{sRB}, s{sRB}, {RING:#x}")
    p(f"v_lshlrev_b32 v{t0}, 4, v{L}")
    p(f"s_lshl_b32 s{sB}, s{sWV}, 12")
    p(f"s_add_u32 s{sT3}, s{sB}, s{sRB}")
    p(f"v_add_u32 v{vMOr}, s{sT3}, v{t0}")
    p(f"s_xor_b32 s{sT3}, s{sT3}, {XS:#x}")
    p(f"s_add_u32 s{sT3}, s{sT3}, {R_MX:#x}")
    p(f"v_add_u32 v{vMXr}, s{sT3}, v{t0}")
    p(f"s_lshl_b32 s{sT3}, s{sWV}, 13")
    p(f"s_add_u32 s{sT3}, s{sT3}, s{sRB}")
    p(f"s_add_u32 s{sT3}, s{sT3}, {R_O:#x}")
    p(f"v_add_u32 v{vOr}, s{sT3}, v{t0}")
    p(f"v_mov_b32 v{vSt}, v{t0}")
    p(f"v_add_u32 v{vKxl}, {L_KX}, v{t0}")
    p(f"s_lshl_b32 s{sT3}, s{sWV}, 15")
    p(f"s_add_u32 s{sT3}, s{sT3}, {L_WO}")
    p(f"v_add_u32 v{vWo}, s{sT3}, v{t0}")
    MU, BE = 67, 68
    p(f"v_lshrrev_b32 v{t1}, 2, v{C}")
    p(f"v_and_b32 v{t2}, 1, v{C}")
    p(f"v_lshl_add_u32 v{MU}, v{t1}, 1, v{t2}")
    p(f"v_bfe_u32 v{BE}, v{C}, 1, 1")
    p(f"v_cmp_eq_u32 s[70:71], 0, v{BE}")
    p(f"v_cmp_gt_u32 s[72:73], 32, v{L}")
    p(f"v_mov_b32 v{t3}, {OOB:#x}")
    p(f"v_lshrrev_b32 v{t1}, 1, v{G}")
    p(f"v_lshl_add_u32 v{t1}, v{t1}, 1, v{C}")
    p(f"v_and_b32 v{t2}, 1, v{G}")
    p(f"v_lshlrev_b32 v{t2}, 3, v{t2}")
    p(f"v_lshl_add_u32 v{t1}, v{t1}, 4, v{t2}")
    p(f"s_lshl_b32 s{sB}, s{sR}, 10")
    p(f"s_lshl_b32 s{sT3}, s{sWV}, 8")
    p(f"s_add_u32 s{sB}, s{sB}, s{sT3}")
    p(f"s_add_u32 s{sB}, s{sB}, s{sRB}")
    p(f"s_add_u32 s{sB}, s{sB}, {R_O:#x}")
    p(f"v_add_u32 v{t1}, s{sB}, v{t1}")
    p(f"v_cndmask_b32 v{vOw}, v{t3}, v{t1}, s[70:71]")
    p(f"v_lshlrev_b32 v{t1}, 4, v{L}")
    p(f"s_lshl_b32 s{sB}, s{sR}, 11")
    p(f"s_add_u32 s{sB}, s{sB}, s{sRB}")
    p(f"s_add_u32 s{sB}, s{sB}, {R_S:#x}")
    p(f"s_xor_b32 s{sT3}, s{sB}, 2048")
    p(f"v_add_u32 v{vSr}, s{sT3}, v{t1}")
    p(f"s_and_b32 s{sT3}, s{sWV}, 1")
    p(f"s_lshl_b32 s{sT3}, s{sT3}, 10")
    p(f"s_add_u32 s{sB}, s{sB}, s{sT3}")
    p(f"v_add_u32 v{t1}, s{sB}, v{t1}")
    p(f"s_lshr_b32 s{sT3}, s{sWV}, 1")
    p(f"v_cmp_eq_u32 vcc, s{sT3}, v{BE}")
    p(f"v_cndmask_b32 v{vSw}, v{t3}, v{t1}, vcc")
    p(f"s_lshl_b32 s{sB}, s{sR}, 9")
    p(f"s_lshr_b32 s{sT3}, s{sWV}, 1")
    p(f"s_lshl_b32 s68, s{sT3}, 8")
    p(f"s_add_u32 s{sB}, s{sB}, s68")
    p(f"s_xor_b32 s{sT3}, s{sT3}, s{sWV}")
    p(f"s_and_b32 s{sT3}, s{sT3}, 1")
    p(f"s_mul_i32 s{sT3}, s{sT3}, {R_MX:#x}")
    p(f"s_add_u32 s{sB}, s{sB}, s{sT3}")
    p(f"s_add_u32 s{sB}, s{sB}, s{sRB}")
    p(f"v_lshlrev_b32 v{t1}, 2, v{L}")
    p(f"v_add_u32 v{vMw}, s{sB}, v{t1}")
    p(f"v_and_b32 v{vFr}, 124, v{t1}")
    p(f"s_lshl_b32 s{sB}, s{sX}, 12")
    p(f"s_add_u32 s{sB}, s{sB}, {FLG:#x}")
    p(f"s_mul_i32 s{sT3}, s{sWV}, 0x180")
    p(f"s_add_u32 s{sFOr}, s{sB}, s{sT3}")
    p(f"s_add_u32 s{sFMr}, s{sB}, 0x800")
    p(f"s_lshl_b32 s{sT3}, s{sR}, 2")
    p(f"s_add_u32 s{sFM}, s{sFMr}, s{sT3}")
    p(f"s_lshr_b32 s{sT3}, s{sR}, 3")
    p(f"s_mul_i32 s{sT3}, s{sT3}, 0x180")
    p(f"s_add_u32 s{sB}, s{sB}, s{sT3}")
    p(f"s_and_b32 s{sT3}, s{sR}, 7")
    p(f"s_lshl_b32 s{sT3}, s{sT3}, 2")
    p(f"s_add_u32 s{sT3}, s{sT3}, s{sWV}")
    p(f"s_lshl_b32 s{sT3}, s{sT3}, 2")
    p(f"s_add_u32 s{sFO}, s{sB}, s{sT3}")
    p(f"v_lshlrev_b32 v{t1}, 7, v{G}")
    p(f"v_lshl_add_u32 v{t1}, v{MU}, 4, v{t1}")
    p(f"s_lshl_b32 s{sB}, s{sH}, 11")
    p(f"s_lshl_b32 s{sT3}, s{sJ}, 10")
    p(f"s_add_u32 s{sB}, s{sB}, s{sT3}")
    p(f"s_mov_b32 s67, s{sB}")
    p(f"s_and_b32 s{sT3}, s{sWV}, 1")
    p(f"s_lshl_b32 s{sT3}, s{sT3}, 9")
    p(f"s_add_u32 s{sB}, s{sB}, s{sT3}")
    p(f"s_add_u32 s{sB}, s{sB}, {KM:#x}")
    p(f"v_add_u32 v{t1}, s{sB}, v{t1}")
    p(f"v_cndmask_b32 v{vKM}, v{t3}, v{t1}, s[70:71]")
    p(f"v_lshlrev_b32 v{t1}, 2, v{G}")
    p(f"v_lshl_add_u32 v{t1}, v{C}, 4, v{t1}")
    p(f"s_lshl_b32 s{sT3}, s{sWV}, 8")
    p(f"s_add_u32 s{sB}, s67, s{sT3}")
    p(f"s_add_u32 s{sB}, s{sB}, {VM:#x}")
    p(f"v_add_u32 v{vVM}, s{sB}, v{t1}")
    p(f"v_lshlrev_b32 v{t1}, 9, v{G}")
    p(f"v_lshl_add_u32 v{t1}, v{C}, 4, v{t1}")
    p(f"s_lshl_b32 s67, s{sH}, 13")
    p(f"s_lshl_b32 s{sT3}, s{sJ}, 12")
    p(f"s_add_u32 s67, s67, s{sT3}")
    p(f"s_lshr_b32 s{sT3}, s{sWV}, 1")
    p(f"s_lshl_b32 s{sT3}, s{sT3}, 11")
    p(f"s_add_u32 s{sB}, s67, s{sT3}")
    p(f"s_and_b32 s{sT3}, s{sWV}, 1")
    p(f"s_lshl_b32 s{sT3}, s{sT3}, 8")
    p(f"s_add_u32 s{sB}, s{sB}, s{sT3}")
    p(f"s_add_u32 s{sB}, s{sB}, {VF:#x}")
    p(f"v_add_u32 v{vVx}, s{sB}, v{t1}")
    p(f"v_lshrrev_b32 v{t1}, 3, v{C}")
    p(f"v_lshlrev_b32 v{t1}, 4, v{t1}")
    p(f"v_and_b32 v{t2}, 7, v{C}")
    p(f"v_add_u32 v{t1}, v{t1}, v{t2}")
    p(f"v_lshlrev_b32 v{t2}, 9, v{G}")
    p(f"v_lshl_add_u32 v{t1}, v{t1}, 4, v{t2}")
    p(f"s_and_b32 s{sT3}, s{sWV}, 1")
    p(f"s_lshl_b32 s{sT3}, s{sT3}, 11")
    p(f"s_add_u32 s{sB}, s67, s{sT3}")
    p(f"s_lshr_b32 s{sT3}, s{sWV}, 1")
    p(f"s_lshl_b32 s{sT3}, s{sT3}, 7")
    p(f"s_add_u32 s{sB}, s{sB}, s{sT3}")
    p(f"s_add_u32 s{sB}, s{sB}, {KF:#x}")
    p(f"v_add_u32 v{vKxg}, s{sB}, v{t1}")
    p(f"v_bfe_u32 v{t1}, v{C}, 2, 1")
    p(f"v_lshlrev_b32 v{t1}, 1, v{t1}")
    p(f"v_xor_b32 v{t1}, v{t1}, v{G}")
    p(f"v_lshlrev_b32 v{t1}, 3, v{t1}")
    p(f"v_lshl_add_u32 v{t1}, v{C}, 5, v{t1}")
    p(f"s_lshl_b32 s{sB}, s{sWV}, 10")
    p(f"s_add_u32 s{sB}, s{sB}, {L_X}")
    p(f"v_add_u32 v{vXw}, s{sB}, v{t1}")
    p(f"v_lshrrev_b32 v{t1}, 1, v{G}")
    p(f"v_lshlrev_b32 v{t1}, 4, v{t1}")
    p(f"v_and_b32 v{t2}, 1, v{G}")
    p(f"v_lshl_add_u32 v59, v{t2}, 2, v{t1}")
    p(f"v_lshlrev_b32 v{t1}, 1, v{t2}")
    p(f"v_xor_b32 v{t1}, v{t1}, v{C}")
    p(f"v_and_b32 v{t1}, 3, v{t1}")
    p(f"v_lshlrev_b32 v{t1}, 3, v{t1}")
    p(f"v_lshl_add_u32 v{t1}, v{t2}, 7, v{t1}")
    p(f"v_lshrrev_b32 v{t2}, 2, v{C}")
    p(f"v_lshl_add_u32 v{t1}, v{t2}, 5, v{t1}")
    p(f"v_lshrrev_b32 v{t2}, 1, v{G}")
    p(f"v_lshl_add_u32 v{t1}, v{t2}, 10, v{t1}")
    p(f"v_add_u32 v{vXq}, {L_X}, v{t1}")
    p(f"v_lshrrev_b32 v{t1}, 3, v{C}")
    p(f"v_lshl_add_u32 v{t1}, v{G}, 1, v{t1}")
    p(f"v_add_u32 v{t1}, s{sWV}, v{t1}")
    p(f"v_and_b32 v{t1}, 3, v{t1}")
    p(f"v_lshlrev_b32 v{t1}, 3, v{t1}")
    p(f"v_lshl_add_u32 v{t1}, v{G}, 9, v{t1}")
    p(f"v_lshrrev_b32 v{t2}, 1, v{C}")
    p(f"v_lshl_add_u32 v{t1}, v{t2}, 5, v{t1}")
    p(f"v_and_b32 v{t2}, 1, v{C}")
    p(f"v_lshl_add_u32 v{t1}, v{t2}, 2, v{t1}")
    p(f"v_add_u32 v{vRw}, {L_R}, v{t1}")
    p(f"v_bfe_u32 v{t1}, v{L}, 2, 1")
    p(f"v_lshl_add_u32 v{t1}, v{G}, 1, v{t1}")
    p(f"v_lshlrev_b32 v{t1}, 8, v{t1}")
    p(f"v_bfe_u32 v{t2}, v{L}, 3, 1")
    p(f"v_lshl_add_u32 v{t1}, v{t2}, 7, v{t1}")
    p(f"v_and_b32 v{t2}, 3, v{L}")
    p(f"v_lshl_add_u32 v{t1}, v{t2}, 5, v{t1}")
    p(f"s_lshr_b32 s{sB}, s{sWV}, 1")
    p(f"s_lshl_b32 s{sB}, s{sB}, 11")
    p(f"s_add_u32 s{sB}, s{sB}, {L_R}")
    p(f"v_add_u32 v{vRr}, s{sB}, v{t1}")
    p(f"v_mov_b32 v{t1}, 0x4444")
    p(f"v_mov_b32 v{t2}, 0xeeee")
    p(f"v_cndmask_b32 v{vIdx}, v{t2}, v{t1}, s[70:71]")
    for k in range(4):
        p(f"v_mov_b32 v{vONE + k}, 0x3f803f80")
        p(f"v_mov_b32 v{vSENT + k}, -1")
    p(f"v_mov_b32 v{vVMo}, 0")
    p(f"v_mov_b32 v{vVMo + 1}, 0")
    p(f"v_mov_b32 v{t1}, 0x3f80")
    p(f"v_mov_b32 v{t2}, 0x3f800000")
    p(f"v_and_b32 v{t0}, 1, v{L}")
    p(f"v_cmp_eq_u32 vcc, 1, v{t0}")
    p(f"v_cndmask_b32 v{t1}, v{t1}, v{t2}, vcc")
    p(f"v_and_b32 v{t0}, 2, v{L}")
    p(f"v_cmp_eq_u32 vcc, 0, v{t0}")
    p(f"v_cndmask_b32 v{vID}, 0, v{t1}, vcc")
    p(f"v_cndmask_b32 v{vID + 1}, v{t1}, 0, vcc")
    p(f"v_lshlrev_b32 v{t0}, 4, v{L}")
    p(f"s_mul_i32 s{sB}, s{sWV}, {SLOT:#x}")
    p(f"s_add_u32 s{sB}, s{sB}, s{sRB}")
    p(f"s_lshl_b32 s{sT3}, s{sR}, 11")
    p(f"s_add_u32 s67, s{sB}, s{sT3}")
    p(f"s_add_u32 s67, s67, {R_S:#x}")
    p(f"buffer_store_dwordx4 v[{vSENT}:{vSENT + 3}], v{t0}, s[{sWS}:{sWS + 3}], s67 offen{isc}")
    p(f"buffer_store_dwordx4 v[{vSENT}:{vSENT + 3}], v{t0}, s[{sWS}:{sWS + 3}], s67 offen offset:1024{isc}")
    p(f"s_lshl_b32 s{sT3}, s{sR}, 10")
    p(f"s_add_u32 s68, s{sB}, s{sT3}")
    p(f"s_add_u32 s68, s68, {R_O:#x}")
    p(f"buffer_store_dwordx4 v[{vSENT}:{vSENT + 3}], v{t0}, s[{sWS}:{sWS + 3}], s68 offen{isc}")
    p(f"v_cndmask_b32 v{t1}, v{t3}, v{t0}, s[72:73]")
    p(f"s_lshl_b32 s{sT3}, s{sR}, 9")
    p(f"s_add_u32 s69, s{sB}, s{sT3}")
    p(f"buffer_store_dwordx4 v[{vSENT}:{vSENT + 3}], v{t1}, s[{sWS}:{sWS + 3}], s69 offen{isc}")
    p(f"s_add_u32 s67, s69, {R_MX:#x}")
    p(f"buffer_store_dwordx4 v[{vSENT}:{vSENT + 3}], v{t1}, s[{sWS}:{sWS + 3}], s67 offen sc1")
    p(f"v_mov_b32 v{t1}, 0")
    p("s_mov_b64 exec, 1")
    p(f"buffer_store_dword v{t1}, off, s[{sWS}:{sWS + 3}], s{sFO}{isc}")
    p("s_mov_b64 exec, -1")
    p(f"s_lshl_b32 s67, s{sR}, 11")
    p(f"s_add_u32 s67, s67, {R_S:#x}")
    p(f"s_lshl_b32 s68, s{sR}, 10")
    p(f"s_add_u32 s68, s68, {R_O:#x}")
    p(f"s_cmp_eq_u32 s{sWV}, 1")
    p(f"s_cselect_b32 s67, s68, s67")
    p(f"s_lshl_b32 s68, s{sR}, 9")
    p(f"s_cmp_eq_u32 s{sWV}, 2")
    p(f"s_cselect_b32 s67, s68, s67")
    p(f"s_add_u32 s68, s68, {R_MX:#x}")
    p(f"s_cmp_eq_u32 s{sWV}, 3")
    p(f"s_cselect_b32 s67, s68, s67")
    p(f"s_add_u32 s67, s67, s{sRB}")
    p(f"s_cmp_ge_u32 s{sWV}, 2")
    p(f"s_cselect_b64 s[74:75], s[72:73], -1")
    p(f"v_add_u32 v{t1}, s67, v{t0}")
    p(f"v_cndmask_b32 v{vRst}, v{t3}, v{t1}, s[74:75]")
    p(f"v_lshrrev_b32 v{t0}, 3, v{C}")
    p(f"v_lshl_add_u32 v{t1}, v{t0}, 3, v59")
    p(f"v_bfe_u32 v{t2}, v{C}, 2, 1")
    p(f"v_add_u32 v{t1}, v{t1}, v{t2}")
    p(f"v_and_b32 v{t2}, 1, v{G}")
    p(f"v_lshl_add_u32 v{t2}, v{t0}, 1, v{t2}")
    p(f"v_lshlrev_b32 v{t2}, 1, v{t2}")
    p(f"v_bfe_u32 v{t0}, v{C}, 1, 1")
    p(f"s_lshl_b32 s{sB}, s{sWV}, 1")
    p(f"v_add_u32 v{t0}, s{sB}, v{t0}")
    p(f"v_xor_b32 v{t0}, v{t0}, v{t2}")
    p(f"v_lshlrev_b32 v{t0}, 4, v{t0}")
    p(f"v_lshl_add_u32 v{t1}, v{t1}, 7, v{t0}")
    p(f"v_and_b32 v{t0}, 1, v{C}")
    p(f"v_lshl_add_u32 v{t1}, v{t0}, 3, v{t1}")
    p(f"v_add_u32 v{vTr0}, {L_WO}, v{t1}")
    p(f"v_add_u32 v{vTr1}, {L_WO + 65536}, v{t1}")
    p(f"v_lshrrev_b32 v{t0}, 2, v{L}")
    p(f"v_and_b32 v{t1}, 9, v{t0}")
    p(f"v_bfe_u32 v{t2}, v{t0}, 1, 1")
    p(f"v_lshl_add_u32 v{t1}, v{t2}, 2, v{t1}")
    p(f"v_bfe_u32 v{t2}, v{t0}, 2, 1")
    p(f"v_lshl_add_u32 v{t1}, v{t2}, 1, v{t1}")
    p(f"v_lshrrev_b32 v{t0}, 5, v{L}")
    p(f"v_lshlrev_b32 v{t0}, 1, v{t0}")
    p(f"v_and_b32 v{t2}, 3, v{L}")
    p(f"v_xor_b32 v{t0}, v{t0}, v{t2}")
    p(f"v_lshlrev_b32 v{t0}, 4, v{t0}")
    p(f"v_lshl_add_u32 v{t1}, v{t1}, 11, v{t0}")
    p(f"s_lshl_b32 s{sB}, s{sX}, 22")
    p(f"s_lshl_b32 s{sT3}, s{sWV}, 15")
    p(f"s_add_u32 s{sB}, s{sB}, s{sT3}")
    p(f"s_lshl_b32 s{sT3}, s{sR}, 6")
    p(f"s_add_u32 s{sB}, s{sB}, s{sT3}")
    p(f"v_add_u32 v{vWog}, s{sB}, v{t1}")
    p(f"v_lshrrev_b32 v{t0}, 3, v{C}")
    p(f"v_and_b32 v{t1}, 1, v{G}")
    p(f"v_lshlrev_b32 v{t1}, 1, v{t1}")
    p(f"v_lshl_add_u32 v{t1}, v{t0}, 3, v{t1}")
    p(f"v_bfe_u32 v{t2}, v{C}, 2, 1")
    p(f"v_add_u32 v{t1}, v{t1}, v{t2}")
    p(f"v_lshlrev_b32 v{t1}, 6, v{t1}")
    p(f"v_lshl_add_u32 v{t1}, v{t0}, 5, v{t1}")
    p(f"v_and_b32 v{t2}, 3, v{C}")
    p(f"v_lshl_add_u32 v{t1}, v{t2}, 3, v{t1}")
    p(f"v_lshrrev_b32 v{t0}, 1, v{G}")
    p(f"v_lshl_add_u32 v{t1}, v{t0}, 10, v{t1}")
    p(f"s_lshl_b32 s{sT3}, s{sWV}, 15")
    p(f"s_add_u32 s{sT3}, s{sT3}, {L_WO}")
    p(f"v_add_u32 v{vWoT0}, s{sT3}, v{t1}")
    p(f"v_xor_b32 v{vWoT1}, 32, v{vWoT0}")
    vM0a = 66
    p(f"v_lshlrev_b32 v{t0}, 11, v{MU}")
    p(f"v_lshl_add_u32 v{t0}, v{G}, 5, v{t0}")
    p(f"v_lshl_add_u32 v{t0}, v{BE}, 4, v{t0}")
    p(f"s_lshl_b32 s{sT3}, s{sWV}, 9")
    p(f"v_add_u32 v{vM0a}, s{sT3}, v{t0}")

    def read_chunk(half, dst, isa):
        va = vTr0 if half == 0 else vTr1
        for kk in range(8):
            ks = half * 8 + kk
            for q, off in enumerate((0, 256, 4096, 4352)):
                r = dst + 8 * ks + 2 * q
                reg = a(r, 2) if isa else v(r, 2)
                p(f"ds_read_b64_tr_b16 {reg}, v{va} offset:{kk * 8192 + off}")
        p("s_waitcnt lgkmcnt(0)")
        p("s_barrier")

    p(f"s_waitcnt vmcnt({22 + ln_stores})")
    p("s_barrier")
    read_chunk(0, 0, True)
    srd(p, sW, pWK, 0x800000)
    dma(0, 0, vWg, 262144)
    p("s_waitcnt vmcnt(16)")
    p("s_barrier")
    lab = p.uid("nobar")
    p(f"s_cmp_lg_u32 s{sWV}, 0")
    p(f"s_cbranch_scc1 {lab}")
    p("s_mov_b64 exec, 1")
    p(f"v_mov_b32 v{t0}, 1")
    p(f"buffer_atomic_add v{t0}, off, s[{sDBG}:{sDBG + 3}], 0 offset:{D_CBAR * 4} sc1")
    if ln_word is not None:
        p(f"buffer_atomic_add v{t0}, off, s[{sDBG}:{sDBG + 3}], s76 sc1")
    p("s_mov_b64 exec, -1")
    p.label(lab)
    read_chunk(1, 0, True)
    dma(1, 512 * 8192, vWg, 262144)
    p("s_waitcnt vmcnt(16)")
    p("s_barrier")
    read_chunk(0, 128, True)
    srd(p, sW, pWV, 0x800000)
    dma(0, 0, vWg, 262144)
    p("s_waitcnt vmcnt(16)")
    p("s_barrier")
    read_chunk(1, 128, True)
    dma(1, 512 * 8192, vWg, 262144)
    p("s_waitcnt vmcnt(16)")
    p("s_barrier")
    read_chunk(0, vWV, False)
    srd(p, sW, pWO, 0x800000)
    dma(0, 0, vWog, 64 * 2048)
    p("s_waitcnt vmcnt(16)")
    p("s_barrier")
    read_chunk(1, vWV, False)
    dma(1, 1024 * 2048, vWog, 64 * 2048)
    p("s_waitcnt vmcnt(0)")
    p("s_barrier")
    for kk in range(8):
        b = 68 + 16 * (kk % 2)
        for t in range(2):
            va = vWoT0 if t == 0 else vWoT1
            for q, off in enumerate((0, 256, 2048, 2304)):
                p(f"ds_read_b64_tr_b16 {v(b + 8 * t + 2 * q, 2)}, v{va} offset:{kk * 4096 + off}")
        p("s_waitcnt lgkmcnt(0)")
        for q in range(4):
            p(f"ds_write_b128 v{vWo}, {v(b + 4 * q, 4)} offset:{kk * 4096 + q * 1024}")
    if mark:
        p(mark)
    srd(p, sW, pMEM, 16384)
    p(f"v_mov_b32 v{vT0}, v{vM0a}")
    for kk in range(4):
        p(f"buffer_load_dwordx4 {v(vF + 4 * kk, 4)}, v{vT0}, s[{sW}:{sW + 3}], 0 offen offset:{kk * 128}")
    lab = p.uid("cbar")
    p(f"s_mov_b32 s{sBUD}, 0x40000")
    p.label(lab)
    p(f"buffer_load_dword v{vT1}, off, s[{sDBG}:{sDBG + 3}], 0 offset:{D_CBAR * 4} sc1")
    p("s_waitcnt vmcnt(0)")
    p(f"v_readfirstlane_b32 s{sT0}, v{vT1}")
    p(f"s_cmp_ge_u32 s{sT0}, 64")
    p(f"s_cbranch_scc1 {lab}_ok")
    p(f"s_sub_u32 s{sBUD}, s{sBUD}, 1")
    p(f"s_cmp_lg_u32 s{sBUD}, 0")
    p(f"s_cbranch_scc1 {lab}")
    p.label(lab + "_ok")
    p(f"s_lshr_b32 s{sKVB}, s{sR}, 1")
    p(f"s_lshl_b32 s{sT3}, s{sX}, 4")
    p(f"s_add_u32 s{sKVB}, s{sKVB}, s{sT3}")
    p(f"s_lshl_b32 s{sKVB}, s{sKVB}, 6")
    p(f"s_add_u32 s{sKVB}, s{sKVB}, {FL2 + 40:#x}")
    p(f"s_mov_b32 s{sKVC}, s{sKVB}")
    if kvwait:
        for nm, tgt, msk, ld in (
                ("xn0", 32, 28, f"buffer_load_dword v{vT1}, v{vT0}, s[{sDBG}:{sDBG + 3}], 0 offen offset:{D_XN * 4} sc1"),
                ("kv0", 1, 4, f"buffer_load_dword v{vT1}, v{vT0}, s[{sWS}:{sWS + 3}], s{sKVC} offen sc1")):
            lab = p.uid(nm)
            p(f"v_and_b32 v{vT0}, {msk}, v{vFr}")
            p(f"s_mov_b32 s{sBUD}, 0x40000")
            p.label(lab)
            p(ld)
            p("s_waitcnt vmcnt(0)")
            p(f"v_cmp_gt_u32 vcc, {tgt}, v{vT1}")
            p(f"s_cbranch_vccz {lab}_ok")
            p(f"s_sub_u32 s{sBUD}, s{sBUD}, 1")
            p(f"s_cmp_lg_u32 s{sBUD}, 0")
            p(f"s_cbranch_scc1 {lab}")
            p.label(lab + "_ok")
    p(f"s_mov_b32 s{sBUD}, 0x40000")
    p(f"s_mov_b32 s{sS}, 0")
    p(f"s_mov_b32 s{sS1}, 1")
    p(f"s_mov_b32 s{sCUR}, 0")
    p(f"s_mov_b32 s{sCUR4}, 4096")
    p(f"s_mov_b32 s{sNXT}, {SLOT:#x}")
    p("s_mov_b32 s93, 0")
    p(f"s_mov_b32 s{sB1}, 0xcccccccc")
    p(f"s_mov_b32 s{sB1 + 1}, 0xcccccccc")
    p(f"s_mov_b32 s{sPRV}, {3 * SLOT:#x}")
    p(f"s_mov_b32 s{sKV0}, 0")
    p(f"s_mov_b32 s{sKV1}, 0x40000")
    p(f"s_mov_b32 s{sKM}, 0")
    p(f"s_mov_b32 s{sKMP}, 0x4000000")
    for k in range(4):
        p(f"s_mov_b32 s{sCNT + k}, 0")
    p(f"s_lshl_b32 s{sKXM0}, s{sWV}, 10")
    p(f"s_add_u32 s{sKXM0}, s{sKXM0}, {L_KX}")
    p(f"s_mov_b32 m0, s{sKXM0}")
    p(f"s_xor_b32 s{sKXM0}, s{sKXM0}, 4096")
    p(f"buffer_load_dwordx4 v{vKxg}, s[{sWS}:{sWS + 3}], s{sKV0} offen sc1 lds")
    for k in range(12):
        p(f"v_mov_b32 v{vDq + k}, 0")
    p("s_waitcnt vmcnt(0)")


def retry_head(p, site, cont):
    p(f"s_add_u32 s{sCNT + site}, s{sCNT + site}, 1")
    p(f"s_cmp_eq_u32 s{sBUD}, 0")
    p(f"s_cbranch_scc1 {cont}")
    p(f"s_sub_u32 s{sBUD}, s{sBUD}, 1")


def check_sent(p, regs, tmp, target):
    regs = list(regs)
    first = regs[:3]
    rest = regs[3:]
    if len(first) == 3:
        p(f"v_max3_u32 v{tmp}, v{first[0]}, v{first[1]}, v{first[2]}")
    else:
        p(f"v_max_u32 v{tmp}, v{first[0]}, v{first[1]}")
    while rest:
        if len(rest) >= 2:
            p(f"v_max3_u32 v{tmp}, v{tmp}, v{rest[0]}, v{rest[1]}")
            rest = rest[2:]
        else:
            p(f"v_max_u32 v{tmp}, v{tmp}, v{rest[0]}")
            rest = []
    p(f"v_cmp_eq_u32 vcc, -1, v{tmp}")
    p(f"s_cbranch_vccnz {target}")


def masked_reload(q, items):
    for k, (regs, _) in enumerate(items):
        if len(regs) == 1:
            q(f"v_cmp_eq_u32 s[{sMK + 2 * k}:{sMK + 2 * k + 1}], -1, v{regs[0]}")
        else:
            q(f"v_max_u32 v{vT0}, v{regs[0]}, v{regs[1]}")
            q(f"v_cmp_eq_u32 s[{sMK + 2 * k}:{sMK + 2 * k + 1}], -1, v{vT0}")
    for k, (_, ld) in enumerate(items):
        q(f"s_mov_b64 exec, s[{sMK + 2 * k}:{sMK + 2 * k + 1}]")
        q(ld)
    q("s_mov_b64 exec, -1")


def chain_loop(p, w, tag, sc_all=False, stamp=None, done="DONE", opt=None):
    opt = opt or {}
    WS = f"s[{sWS}:{sWS + 3}]"
    loc = " sc1" if sc_all else ""
    tail = Prog()
    B1 = f"s[{sB1}:{sB1 + 1}]"
    DPP = "row_mask:0xf bank_mask:0xf"

    def st(k):
        if stamp is not None and (k in stamp):
            p(f"s_memtime s[{sTS + 2 * k}:{sTS + 2 * k + 1}]")

    def F(u):
        return v(vF + 4 * u, 4)

    def ks_of(u):
        return (4 * w + u) % 16

    def smq(u):
        p(f"v_smfmac_f32_16x16x64_bf16 {v(vDq, 4)}, {F(u)}, {a(8 * ks_of(u), 8)}, v{vIdx}")

    def smk(u):
        p(f"v_smfmac_f32_16x16x64_bf16 {v(vDk, 4)}, {F(u)}, {a(128 + 8 * ks_of(u), 8)}, v{vIdx}")

    def smv(u):
        p(f"v_smfmac_f32_16x16x64_bf16 {v(vDv, 4)}, {F(u)}, {v(vWV + 8 * ks_of(u), 8)}, v{vIdx}")

    def stw(kk):
        p(f"ds_write_b128 v{vSt}, {F(kk)} offset:{L_ST + (4 * w + kk) * 1024}")

    def strd(u):
        p(f"ds_read_b128 {F(u)}, v{vSt} offset:{L_ST + ks_of(u) * 1024}")

    def merge(d, q=p):
        q(f"v_pk_add_f32 {v(d, 2)}, {v(d, 2)}, {v(d + 2, 2)}")

    def mo_ld(kk):
        return f"buffer_load_dwordx4 {v(vMO + 4 * kk, 4)}, v{vMOr}, {WS}, s{sCUR} offen offset:{kk * 1024} sc1"

    def mx_ld(kk):
        return f"buffer_load_dwordx4 {v(vMX + 4 * kk, 4)}, v{vMXr}, {WS}, s{sCUR} offen offset:{kk * 1024} sc1"

    def probe_pipe(sa, val, nm, regs):
        K = len(regs)
        for k in range(K - 1):
            p(f"buffer_load_dword v{regs[k]}, v{vFr}, {WS}, s{sa} offen sc1")
        p.label(f"{tag}_{nm}_probe")
        for k in range(K):
            p(f"buffer_load_dword v{regs[(k + K - 1) % K]}, v{vFr}, {WS}, s{sa} offen sc1")
            p(f"s_waitcnt vmcnt({K - 1})")
            p(f"v_cmp_gt_u32 vcc, {val}, v{regs[k]}")
            p(f"s_cbranch_vccz {tag}_{nm}_go")
        p(f"s_add_u32 s93, s93, {K}")
        p(f"s_sub_u32 s{sBUD}, s{sBUD}, 1")
        p(f"s_cmp_gt_i32 s{sBUD}, 0")
        p(f"s_cbranch_scc1 {tag}_{nm}_probe")
        p(f"s_mov_b32 s{sBUD}, 0")
        p.label(f"{tag}_{nm}_go")

    KMr = vFREE

    def km_read():
        for hh in range(2):
            p(f"ds_read_b64_tr_b16 {v(KMr + 2 * hh, 2)}, v{vXq} offset:{w * 2048 + hh * 256 + 512}")

    def slow_ops():
        p(f"s_mov_b32 m0, s{sKXM0}")
        p(f"s_xor_b32 s{sKXM0}, s{sKXM0}, 4096")
        p(f"buffer_load_dwordx4 v{vKxg}, {WS}, s{sKV1} offen sc1 lds")
        p(f"buffer_load_dwordx4 {v(vVX, 4)}, v{vVx}, {WS}, s{sKV0} offen sc1")

    slow = opt.get("slow", 1)
    p.label(f"{tag}_entry")
    if w == 3:
        p(f"v_mov_b32 v{vKM}, 1")
    for kk in range(4):
        stw(kk)
    if slow == 0:
        slow_ops()
    p(f"s_branch {tag}_apost")

    p.label(f"{tag}_top")
    st(0)
    if w < 2:
        km_read()
    for k in range(12):
        p(f"v_mov_b32 v{vDq + k}, 0")
    p("s_waitcnt vmcnt(0)")
    p("s_barrier")
    for kk in range(4):
        p(mo_ld(kk))
    for kk in range(4):
        p(mx_ld(kk))
    st(1)
    p("s_waitcnt vmcnt(4)")
    p.label(f"{tag}_mo_chk")
    check_sent(p, [vMO + 4 * k for k in range(4)], vT0, f"{tag}_mo_retry")
    p.label(f"{tag}_mo_ok")
    tail.label(f"{tag}_mo_retry")
    retry_head(tail, 0, f"{tag}_mo_ok")
    masked_reload(tail, [([vMO + 4 * k], mo_ld(k)) for k in range(4)])
    tail("s_waitcnt vmcnt(0)")
    tail(f"s_branch {tag}_mo_chk")
    for i in range(8):
        p(f"v_mfma_f32_4x4x4_16b_bf16 {v(vACC + 4 * i, 4)}, {v(vID, 2)}, {v(vMO + 2 * i, 2)}, 0")
    st(2)
    p("s_waitcnt vmcnt(0) lgkmcnt(0)")
    p.label(f"{tag}_mx_chk")
    check_sent(p, [vMX + 4 * k for k in range(4)], vT0, f"{tag}_mx_retry")
    p.label(f"{tag}_mx_ok")
    tail.label(f"{tag}_mx_retry")
    retry_head(tail, 1, f"{tag}_mx_ok")
    masked_reload(tail, [([vMX + 4 * k], mx_ld(k)) for k in range(4)])
    tail("s_waitcnt vmcnt(0)")
    tail(f"s_branch {tag}_mx_chk")
    st(3)

    def acc(i):
        p(f"v_mfma_f32_4x4x4_16b_bf16 {v(vACC + 4 * i, 4)}, {v(vID, 2)}, {v(vMX + 2 * i, 2)}, {v(vACC + 4 * i, 4)}")

    def cv(i):
        p(f"v_cvt_pk_bf16_f32 v{vF + 2 * i}, v{vACC + 4 * i}, v{vACC + 4 * i + 1}")
        p(f"v_cvt_pk_bf16_f32 v{vF + 2 * i + 1}, v{vACC + 4 * i + 2}, v{vACC + 4 * i + 3}")

    acc(0); acc(1); acc(2)
    if slow == 0:
        slow_ops()
    acc(3)
    cv(0)
    acc(4)
    cv(1)
    stw(0)
    acc(5); cv(2)
    acc(6); cv(3); stw(1)
    acc(7)
    cv(4); cv(5); stw(2)
    cv(6); cv(7); stw(3)
    p.label(f"{tag}_apost")
    smq(0); smk(0); smq(1); smk(1)
    if slow == 1:
        slow_ops()
    p("s_waitcnt lgkmcnt(0)")
    p("s_barrier")
    st(4)
    for u in range(4, 16):
        strd(u)
        if u == 7:
            smq(2)
        if u == 10:
            smk(2)
        if u == 13:
            smq(3)
    smk(3)
    extra = []
    rsc = " sc1" if (w == 3 or sc_all) else ""
    if w < 2:
        extra.append(f"buffer_store_dwordx4 {v(KMr, 4)}, v{vKM}, {WS}, s{sKMP} offen sc1")
    extra.append(f"buffer_store_dword v{vVMo}, v{vVM}, {WS}, s{sKMP} offen sc1")
    extra.append(f"buffer_store_dwordx4 {v(vSENT, 4)}, v{vRst}, {WS}, s{sPRV} offen{rsc}")
    if w == 0:
        extra.append(f"buffer_store_dwordx4 {v(vSENT, 4)}, v{vRst}, {WS}, s{sPRV} offen offset:1024{rsc}")
    kvchk = w == 3 and opt.get("kv", True)
    vKVF = vKM
    kv_ld = ["s_mov_b64 exec, 3", f"buffer_load_dword v{vKVF}, v{vFr}, {WS}, s{sKVC} offen sc1", "s_mov_b64 exec, -1"]
    if kvchk:
        extra.append(kv_ld)
    KX, Q2, K2 = vF, vFREE, vF + 16
    T = [vDq, vDk, vFREE + 8]
    for u in range(4, 16):
        p(f"s_waitcnt lgkmcnt({15 - u + max(0, u - 12)})")
        smq(u)
        if extra:
            x = extra.pop(0)
            for y in (x if isinstance(x, list) else [x]):
                p(y)
        if u >= 12:
            p(f"ds_read_b128 {v(KX + 4 * (u - 12), 4)}, v{vKxl} offset:{(u - 12) * 1024}")
        if u == 15:
            p(f"s_cmp_eq_u32 s{sS}, 63")
        smk(u)
    assert not extra
    st(5)

    def to_x(d, off):
        merge(d)
        p(f"v_cvt_pk_bf16_f32 v{d}, v{d}, v{d + 1}")
        p(f"ds_write2_b32 v{vXw}, v{d}, v{d} offset0:{off} offset1:{off + 1}")

    p(f"s_cbranch_scc1 {tag}_last")
    smv(6)
    to_x(vDq, 0)
    to_x(vDk, 128)
    smv(7)
    p(f"v_xor_b32 v{vKxl}, 4096, v{vKxl}")
    p("s_waitcnt lgkmcnt(0)")
    p("s_barrier")
    for ks in range(2):
        for hh in range(2):
            p(f"ds_read_b64_tr_b16 {v(Q2 + 4 * ks + 2 * hh, 2)}, v{vXq} offset:{ks * 2048 + hh * 256}")
    for ks in range(2):
        for hh in range(2):
            p(f"ds_read_b64_tr_b16 {v(K2 + 4 * ks + 2 * hh, 2)}, v{vXq} offset:{ks * 2048 + hh * 256 + 512}")
    nsh = opt.get("bsh", 3)
    for u in range(8, 8 + nsh):
        smv(u)

    def tile(t):
        for ks in range(2):
            A = v(K2 + 4 * ks, 4) if t == 2 else v(KX + 8 * t + 4 * ks, 4)
            C = "0" if ks == 0 else v(T[t], 4)
            p(f"v_mfma_f32_16x16x32_bf16 {v(T[t], 4)}, {A}, {v(Q2 + 4 * ks, 4)}, {C}")

    if w % 2:
        p("s_waitcnt lgkmcnt(0)")
        tile(2); tile(0)
        p(f"buffer_store_dword v{T[2] + w // 2}, v{vSw}, {WS}, s{sCUR} offen{loc}")
        tile(1)
    else:
        p("s_waitcnt lgkmcnt(4)")
        tile(w // 2); tile(1 - w // 2)
        p(f"buffer_store_dwordx4 {v(T[w // 2], 4)}, v{vSw}, {WS}, s{sCUR} offen{loc}")
        p("s_waitcnt lgkmcnt(0)")
        tile(2)
    st(6)
    rest = list(range(8 + nsh, 16))
    for u in range(6):
        strd(u)
        if rest:
            smv(rest.pop(0))
    while rest:
        smv(rest.pop(0))
    SO, SOm, SP, SPm, PM = vDq, T[2], vDk, T[2] + 1, T[2] + 2
    for k in range(4):
        p(f"v_cndmask_b32 v{SO + k}, v{T[0] + k}, v{T[1] + k}, {B1}")
    p(f"v_cndmask_b32 v{SOm}, v{T[2]}, v{T[2] + 1}, {B1}")
    p(f"v_mov_b32 v{PM + 1}, 0")
    WB = [vF + 24 + 8 * i for i in range(5)]
    NB = len(WB)

    def wo_read(n, q=p):
        b = WB[n % NB]
        for hh in range(2):
            q(f"ds_read_b128 {v(b + 4 * hh, 4)}, v{vWo} offset:{n * 2048 + hh * 1024}")

    s_lds = [f"buffer_load_dwordx4 {v(SP, 4)}, v{vSr}, {WS}, s{sCUR} offen sc1",
             f"buffer_load_dword v{SPm}, v{vSr}, {WS}, s{sCUR} offen offset:1024 sc1"]
    spos = opt.get("s_pos", 0)

    def s_issue():
        if stamp is not None:
            stamp_flush(p, w, stamp)
            p("s_waitcnt vmcnt(1)")
        else:
            p("s_waitcnt vmcnt(0)")
        for x in s_lds:
            p(x)
        if kvchk:
            p.label(f"{tag}_kv_chk")
            p(f"v_cmp_eq_u32 vcc, 0, v{vKVF}")
            p(f"s_cbranch_vccnz {tag}_kv_retry")
            p.label(f"{tag}_kv_ok")
            tail.label(f"{tag}_kv_retry")
            tail(f"s_cmp_eq_u32 s{sBUD}, 0")
            tail(f"s_cbranch_scc1 {tag}_kv_ok")
            tail(f"s_sub_u32 s{sBUD}, s{sBUD}, 1")
            for y in kv_ld:
                tail(y)
            tail("s_waitcnt vmcnt(0)")
            tail(f"s_branch {tag}_kv_chk")

    for u in range(6):
        if u == spos:
            s_issue()
        if u == 0:
            p("s_waitcnt lgkmcnt(0)")
        smv(u)
        if u >= 1:
            wo_read(u - 1)
    if spos >= 6:
        s_issue()
    p(f"s_mov_b32 s{sT0}, {fhex(CEXP)}")
    merge(vDv)
    p(f"v_cvt_pk_bf16_f32 v{vVMo}, v{vDv}, v{vDv + 1}")
    st(7)
    p("s_waitcnt vmcnt(0)")
    p.label(f"{tag}_s_chk")
    p(f"v_pk_add_f32 {v(SP, 2)}, {v(SP, 2)}, {v(SO, 2)}")
    p(f"v_pk_add_f32 {v(SP + 2, 2)}, {v(SP + 2, 2)}, {v(SO + 2, 2)}")
    p(f"v_add_f32 v{SPm}, v{SPm}, v{SOm}")
    p(f"v_maximum3_f32 v{vT0}, v{SP}, v{SP + 1}, v{SP + 2}")
    p(f"v_maximum3_f32 v{vT0}, v{vT0}, v{SP + 3}, v{SPm}")
    p(f"v_cmp_u_f32 vcc, v{vT0}, v{vT0}")
    p(f"s_cbranch_vccnz {tag}_s_retry")
    p.label(f"{tag}_s_ok")
    tail.label(f"{tag}_s_retry")
    retry_head(tail, 2, f"{tag}_s_ok")
    for x in s_lds:
        tail(x)
    tail("s_waitcnt vmcnt(0)")
    tail(f"s_branch {tag}_s_chk")
    st(8)
    E0, E1 = vDq, vDk
    zfill = [E0 + k for k in range(4)]

    def z(n):
        for _ in range(n):
            if zfill:
                p(f"v_mov_b32 v{zfill.pop(0)}, 0")

    p(f"v_max_f32_dpp v{vT1}, v{vT0}, v{vT0} quad_perm:[2,3,0,1] {DPP}")
    p(f"v_max_f32_dpp v{vT2}, v{vT0}, v{vT0} quad_perm:[2,3,0,1] {DPP}")
    z(2)
    p(f"v_permlane32_swap_b32 v{vT1}, v{vT2}")
    p(f"v_max_f32 v{vT0}, v{vT1}, v{vT2}")
    p(f"v_max_f32 v{vT1}, v{vT1}, v{vT2}")
    z(2)
    p(f"v_permlane16_swap_b32 v{vT0}, v{vT1}")
    p(f"v_max_f32 v{vT0}, v{vT0}, v{vT1}")
    p(f"v_mul_f32 v{vT0}, {fhex(-CEXP)}, v{vT0}")
    P, LL, O, OP = 52, 56, 60, vDv

    def pfma(r):
        p(f"v_pk_fma_f32 {v(r, 2)}, {v(r, 2)}, s[{sT0}:{sT0 + 1}], {v(vT0, 2)} op_sel_hi:[1,0,0]")

    p(f"v_fma_f32 v{SPm}, v{SPm}, s{sT0}, v{vT0}")
    pfma(SP)
    p(f"v_exp_f32 v{SPm}, v{SPm}")
    pfma(SP + 2)
    p(f"v_exp_f32 v{SP}, v{SP}")
    p(f"v_mov_b32_dpp v{vT1}, v{SPm} quad_perm:[2,3,2,3] {DPP}")
    p(f"v_exp_f32 v{SP + 1}, v{SP + 1}")
    p(f"v_cvt_pk_bf16_f32 v{PM}, v{SPm}, v{vT1}")
    p(f"v_exp_f32 v{SP + 2}, v{SP + 2}")
    p(f"v_cvt_pk_bf16_f32 v{P}, v{SP}, v{SP + 1}")
    p(f"v_exp_f32 v{SP + 3}, v{SP + 3}")
    p(f"v_mfma_f32_16x16x16_bf16 {v(LL, 4)}, {v(vONE, 2)}, {v(PM, 2)}, 0")
    p(f"v_cvt_pk_bf16_f32 v{P + 1}, v{SP + 2}, v{SP + 3}")
    p(f"v_mov_b32_dpp v{P + 2}, v{P} quad_perm:[2,3,2,3] {DPP}")
    p(f"v_mfma_f32_16x16x16_bf16 {v(O, 4)}, {v(vVMo, 2)}, {v(PM, 2)}, 0")
    p(f"v_mov_b32_dpp v{P + 3}, v{P + 1} quad_perm:[2,3,2,3] {DPP}")
    zfill = [E1 + k for k in range(4)]
    z(2)
    p(f"v_mfma_f32_16x16x32_bf16 {v(LL, 4)}, {v(vONE, 4)}, {v(P, 4)}, {v(LL, 4)}")
    p(f"v_mfma_f32_16x16x32_bf16 {v(O, 4)}, {v(vVX, 4)}, {v(P, 4)}, {v(O, 4)}")
    z(2)
    p(f"v_mov_b32 v{vT2}, s{sS1}")
    p(f"v_rcp_f32 v{vT0}, v{LL}")
    for r in (0, 2):
        p(f"v_pk_mul_f32 {v(O + r, 2)}, {v(O + r, 2)}, {v(vT0, 2)} op_sel_hi:[1,0]")
    p(f"v_cvt_pk_bf16_f32 v{OP}, v{O}, v{O + 1}")
    p(f"v_cvt_pk_bf16_f32 v{OP + 1}, v{O + 2}, v{O + 3}")
    p(f"buffer_store_dwordx2 {v(OP, 2)}, v{vOw}, {WS}, s{sCUR} offen{loc}")
    p("s_mov_b64 exec, 1")
    p(f"buffer_store_dword v{vT2}, off, {WS}, s{sFO}{loc}")
    p("s_mov_b64 exec, -1")
    st(9)
    OL = [52, 56, 60, 64, 68, 72, 116, 120]

    def o_ld(kk):
        so = sCUR if kk < 4 else sCUR4
        return f"buffer_load_dwordx4 {v(OL[kk], 4)}, v{vOr}, {WS}, s{so} offen offset:{(kk % 4) * 1024} sc1"

    oack = opt.get("oack", 1)
    if oack:
        p(f"s_waitcnt vmcnt({oack - 1})")
    probe_pipe(sFOr, f"s{sS1}", "o", [vT0, vT1])
    for kk in range(8):
        p(o_ld(kk))
    st(10)
    p.label(f"{tag}_o_run")
    for kk in range(8):
        for t_ in range(2):
            n = 2 * kk + t_
            lg = 2 * (min(NB, 16 - n) - 1)
            wt = f"vmcnt({7 - kk}) " if t_ == 0 else ""
            p(f"s_waitcnt {wt}lgkmcnt({lg})")
            p(f"v_smfmac_f32_16x16x64_bf16 {v(E0 if t_ == 0 else E1, 4)}, {v(OL[kk], 4)}, {v(WB[n % NB], 8)}, v{vIdx}")
            if n + NB < 16:
                wo_read(n + NB)
            if t_ == 0:
                if kk == 0:
                    p(f"v_max_u32 v{vT0}, v{OL[kk]}, v{OL[kk] + 2}")
                else:
                    p(f"v_max3_u32 v{vT0}, v{vT0}, v{OL[kk]}, v{OL[kk] + 2}")
                if kk == 7:
                    p(f"v_cmp_eq_u32 vcc, -1, v{vT0}")
    p(f"s_cbranch_vccnz {tag}_o_redo")
    p.label(f"{tag}_o_end")
    tail.label(f"{tag}_o_redo")
    retry_head(tail, 3, f"{tag}_o_end")
    for part in (range(4), range(4, 8)):
        masked_reload(tail, [([OL[kk], OL[kk] + 2], o_ld(kk)) for kk in part])
    for k in range(8):
        tail(f"v_mov_b32 v{E0 + k}, 0")
    for n in range(NB):
        wo_read(n, tail)
    tail(f"s_branch {tag}_o_run")
    st(11)
    p(f"s_mov_b32 s{sPRV}, s{sCUR}")
    p(f"s_mov_b32 s{sCUR}, s{sNXT}")
    merge(E0)
    p(f"ds_write2st64_b32 v{vRw}, v{E0}, v{E0 + 1} offset0:0 offset1:1")
    p(f"s_add_u32 s{sCUR4}, s{sCUR}, 4096")
    merge(E1)
    p(f"ds_write2st64_b32 v{vRw}, v{E1}, v{E1 + 1} offset0:8 offset1:9")
    p(f"s_mov_b32 s{sS}, s{sS1}")
    p(f"s_add_u32 s{sS1}, s{sS1}, 1")
    p(f"s_add_u32 s{sNXT}, s{sNXT}, {SLOT:#x}")
    p(f"s_and_b32 s{sNXT}, s{sNXT}, {3 * SLOT:#x}")
    p(f"s_mov_b32 s{sKV0}, s{sKV1}")
    p(f"s_add_u32 s{sKV1}, s{sKV1}, 0x40000")
    p(f"s_mov_b32 s{sKMP}, s{sKM}")
    p(f"s_add_u32 s{sKM}, s{sKM}, 0x10000")
    p("s_waitcnt lgkmcnt(0)")
    p("s_barrier")
    RD = 52
    for q in range(2):
        p(f"ds_read_b128 {v(RD + 4 * q, 4)}, v{vRr} offset:{16 * q}")
    if kvchk:
        p(f"s_add_u32 s{sT0}, s{sS}, 2")
        p(f"s_min_u32 s{sT0}, s{sT0}, 63")
        p(f"s_lshr_b32 s{sKVC}, s{sT0}, 3")
        p(f"s_lshl_b32 s{sKVC}, s{sKVC}, 11")
        p(f"s_add_u32 s{sKVC}, s{sKVC}, s{sKVB}")
        p(f"s_bitcmp1_b32 s{sT0}, 2")
        p(f"s_cselect_b32 s{sT0}, 12, 0")
        p(f"s_add_u32 s{sKVC}, s{sKVC}, s{sT0}")
    p("s_waitcnt lgkmcnt(1)")
    merge(RD)
    p("s_waitcnt lgkmcnt(0)")
    merge(RD + 4)
    p(f"v_pk_add_f32 {v(RD, 2)}, {v(RD, 2)}, {v(RD + 4, 2)}")
    p(f"v_cvt_pk_bf16_f32 v{vT1}, v{RD}, v{RD + 1}")
    p(f"buffer_store_dword v{vT1}, v{vMw}, {WS}, s{sCUR} offen{' sc1' if w in (1, 2) else loc}")
    p(f"s_branch {tag}_top")

    p.label(f"{tag}_last")
    p("s_waitcnt lgkmcnt(0)")
    for u in range(4):
        strd(u)
    smv(4); smv(5)
    to_x(vDk, 128)
    for u in range(6, 10):
        smv(u)
    p("s_waitcnt lgkmcnt(0)")
    p("s_barrier")
    if w < 2:
        km_read()
    for u in range(10, 14):
        smv(u)
    if w < 2:
        p("s_waitcnt lgkmcnt(0)")
        p(f"buffer_store_dwordx4 {v(KMr, 4)}, v{vKM}, {WS}, s{sKM} offen sc1")
    for u in (14, 15, 0, 1, 2, 3):
        smv(u)
    merge(vDv)
    p(f"v_cvt_pk_bf16_f32 v{vVMo}, v{vDv}, v{vDv + 1}")
    p(f"buffer_store_dword v{vVMo}, v{vVM}, {WS}, s{sKM} offen sc1")
    p(f"s_branch {done}")
    p.items += tail.items


def stamp_flush(p, w, stamp):
    p("s_waitcnt lgkmcnt(0)")
    p(f"s_lshl_b32 s{sT0}, s{sX}, 5")
    p(f"s_add_u32 s{sT0}, s{sT0}, s{sR}")
    p(f"s_lshl_b32 s{sT0}, s{sT0}, 14")
    p(f"s_lshl_b32 s{sT1}, s{sS}, 6")
    p(f"s_add_u32 s{sT0}, s{sT0}, s{sT1}")
    p(f"s_add_u32 s{sT0}, s{sT0}, {STAT + w * 4096:#x}")
    p(f"v_mov_b32 v{vT0}, 0")
    for k in sorted(stamp):
        p(f"v_writelane_b32 v{vT0}, s{sTS + 2 * k}, {k}")
    for k in range(4):
        p(f"v_writelane_b32 v{vT0}, s{sCNT + k}, {12 + k}")
    p(f"v_mbcnt_lo_u32_b32 v{vT1}, -1, 0")
    p(f"v_lshlrev_b32 v{vT1}, 2, v{vT1}")
    p("s_mov_b64 exec, 0xffff")
    p(f"buffer_store_dword v{vT0}, v{vT1}, s[{sWS}:{sWS + 3}], s{sT0} offen")
    p("s_mov_b64 exec, -1")
```

```python
from chain import *

WS = f"s[{sWS}:{sWS + 3}]"
DBG = f"s[{sDBG}:{sDBG + 3}]"
WSRD = f"s[{sW}:{sW + 3}]"
sACT = 48
sA, sB, sBst, sIt = 52, 53, 54, 55
sKind, sBlk, sCol, sRnd, sM0b, sWsz, sOut, sOst, sWB = 60, 61, 62, 63, 64, 65, 66, 67, 68
sSeg, sU0, sU1, sU2, sU3 = 69, 70, 71, 72, 73
sMsk = 74
ACT = f"s[{sACT}:{sACT + 3}]"
K_K, K_V, K_H, K_Y, K_Q = 0, 1, 2, 3, 4
vL, vL16, vWa, vDm, vAa, vt0, vt1, vDp, vDr, vt2, vt3, vOa = 1, 2, 3, 7, 11, 13, 14, 15, 16, 17, 18, 19
vWA, vWB, vAcc = 64, 80, 128
OUTSC = " sc0 sc1 nt"
MOD = dict(w="", x="", wo="")
LOG2E = 1.4426950408889634


def spin_ge(p, ld, reg, target, nm, budget=0x80000):
    lab = p.uid(nm)
    p(f"s_mov_b32 s{sWB}, {budget:#x}")
    p.label(lab)
    p(ld)
    p("s_waitcnt vmcnt(0)")
    p(f"v_cmp_gt_u32 vcc, {target}, v{reg}")
    p(f"s_cbranch_vccz {lab}_ok")
    p(f"s_sub_u32 s{sWB}, s{sWB}, 1")
    p(f"s_cmp_lg_u32 s{sWB}, 0")
    p(f"s_cbranch_scc1 {lab}")
    p.label(lab + "_ok")


def wait_cnt(p, word_s, target, nm):
    lab = p.uid(nm)
    p(f"s_cmp_lg_u32 s{sWV}, 0")
    p(f"s_cbranch_scc1 {lab}")
    spin_ge(p, f"buffer_load_dword v{vt0}, off, {DBG}, s{word_s} sc1", vt0, target, nm)
    p.label(lab)
    p("s_barrier")


def wait_flags(p, ld, nm):
    lab = p.uid(nm)
    p(f"s_cmp_lg_u32 s{sWV}, 0")
    p(f"s_cbranch_scc1 {lab}")
    spin_ge(p, ld, vt0, 1, nm)
    p.label(lab)
    p("s_barrier")


def signal_flag(p, word, nm, both=False):
    p(f"s_lshl_b32 s{sT0}, s{sBlk}, 5")
    p(f"s_add_u32 s{sT0}, s{sT0}, s{sCol}")
    p(f"s_lshl_b32 s{sT0}, s{sT0}, 6")
    p(f"s_add_u32 s{sT0}, s{sT0}, {word}")
    p("s_waitcnt vmcnt(0)")
    p("s_barrier")
    lab = p.uid(nm)
    p(f"s_cmp_lg_u32 s{sWV}, 0")
    p(f"s_cbranch_scc1 {lab}")
    p(f"v_mov_b32 v{vt0}, 1")
    p("s_mov_b64 exec, 1")
    p(f"buffer_store_dword v{vt0}, off, {WS}, s{sT0} sc1")
    if both:
        p(f"buffer_store_dword v{vt0}, off, {WS}, s{sT0} offset:12 sc1")
    p("s_mov_b64 exec, -1")
    p.label(lab)


def signal_cnt(p, word_s, nm, newer=0):
    p(f"s_waitcnt vmcnt({newer})")
    p("s_barrier")
    lab = p.uid(nm)
    p(f"s_cmp_lg_u32 s{sWV}, 0")
    p(f"s_cbranch_scc1 {lab}")
    p(f"v_mov_b32 v{vt0}, 1")
    p("s_mov_b64 exec, 1")
    p(f"buffer_atomic_add v{vt0}, off, {DBG}, s{word_s} sc1")
    p("s_mov_b64 exec, -1")
    p.label(lab)


LN_X, LN_F = 64, 80
LN_A = 60


def ln_issue(p):
    L, a = 61, LN_A
    p(f"v_and_b32 v{L}, 63, v0")
    p(f"v_and_b32 v{a}, 7, v{L}")
    p(f"v_lshlrev_b32 v{a}, 11, v{a}")
    p(f"v_lshrrev_b32 v62, 4, v{L}")
    p(f"v_lshl_add_u32 v{a}, v62, 5, v{a}")
    p(f"v_and_b32 v62, 8, v{L}")
    p(f"v_add_u32 v{a}, v{a}, v62")
    p(f"s_lshl_b32 s{sT0}, s2, 14")
    p(f"s_lshl_b32 s{sT1}, s{sWV}, 9")
    p(f"s_add_u32 s{sT0}, s{sT0}, s{sT1}")
    for n in range(4):
        for hh in range(2):
            p(f"buffer_load_dwordx2 {v(LN_X + 4 * n + 2 * hh, 2)}, v{a}, {WSRD}, s{sT0} offen offset:{n * 128 + hh * 16}" + MOD["x"])


def ln_finish(p, newer=0, signal=True, extra=None, nextra=0, lds=0):
    L = 61
    S, T, LA = 56, 57, 58

    def reduce(base):
        p(f"v_add_f32_dpp v{S}, v{S}, v{S} row_ror:8 row_mask:0xf bank_mask:0xf")
        p(f"v_mov_b32 v{T}, v{S}")
        p(f"v_permlane16_swap_b32 v{S}, v{T}")
        p(f"v_add_f32 v{S}, v{S}, v{T}")
        p(f"v_mov_b32 v{T}, v{S}")
        p(f"v_permlane32_swap_b32 v{S}, v{T}")
        p(f"v_add_f32 v{S}, v{S}, v{T}")
        p(f"ds_write_b32 v{LA + 1}, v{S} offset:{base}")
        p("s_waitcnt lgkmcnt(0)")
        p("s_barrier")
        p(f"ds_read_b128 v[52:55], v{LA} offset:{base}")
        p("s_waitcnt lgkmcnt(0)")
        p("v_add_f32 v52, v52, v53")
        p("v_add_f32 v54, v54, v55")
        p(f"v_add_f32 v{S}, v52, v54")
        p(f"v_mul_f32 v{S}, {fhex(1.0 / 1024)}, v{S}")

    p(f"v_and_b32 v{LA}, 7, v{L}")
    p(f"v_lshlrev_b32 v{LA}, 4, v{LA}")
    p(f"s_lshl_b32 s{sT1}, s{sWV}, 2")
    p(f"v_add_u32 v{LA + 1}, s{sT1}, v{LA}")
    p(f"s_waitcnt vmcnt({newer})")
    for k in range(16):
        p(f"v_lshlrev_b32 v{LN_F + 2 * k}, 16, v{LN_X + k}")
        p(f"v_and_b32 v{LN_F + 2 * k + 1}, 0xffff0000, v{LN_X + k}")
    for k in range(4):
        p(f"v_add_f32 v{52 + k}, v{LN_F + k}, v{LN_F + 4 + k}")
    for k in range(8, 32):
        p(f"v_add_f32 v{52 + k % 4}, v{52 + k % 4}, v{LN_F + k}")
    p("v_add_f32 v52, v52, v53")
    p("v_add_f32 v54, v54, v55")
    p(f"v_add_f32 v{S}, v52, v54")
    reduce(lds + 64)
    M = 50
    p(f"v_cvt_pk_bf16_f32 v{M}, v{S}, v{S}")
    p(f"v_and_b32 v{M}, 0xffff0000, v{M}")
    for k in range(32):
        p(f"v_sub_f32 v{LN_X + k % 8}, v{LN_F + k}, v{S}")
        if k < 4:
            p(f"v_mul_f32 v{52 + k}, v{LN_X + k % 8}, v{LN_X + k % 8}")
        else:
            p(f"v_fmac_f32 v{52 + k % 4}, v{LN_X + k % 8}, v{LN_X + k % 8}")
    p("v_add_f32 v52, v52, v53")
    p("v_add_f32 v54, v54, v55")
    p(f"v_add_f32 v{S}, v52, v54")
    for k in range(32):
        p(f"v_sub_f32 v{LN_F + k}, v{LN_F + k}, v{M}")
    for k in range(16):
        p(f"v_cvt_pk_bf16_f32 v{LN_X + k}, v{LN_F + 2 * k}, v{LN_F + 2 * k + 1}")
    reduce(lds + 192)
    for op in (None, f"v_add_f32 v{S}, {fhex(1e-5)}, v{S}", f"v_sqrt_f32 v{S}, v{S}"):
        if op:
            p(op)
        p(f"v_cvt_pk_bf16_f32 v{S}, v{S}, v{S}")
        p(f"v_and_b32 v{S}, 0xffff0000, v{S}")
    p(f"v_rcp_f32 v{S}, v{S}")
    for k in range(16):
        p(f"v_lshlrev_b32 v{LN_F + 2 * k}, 16, v{LN_X + k}")
        p(f"v_and_b32 v{LN_F + 2 * k + 1}, 0xffff0000, v{LN_X + k}")
    for k in range(32):
        p(f"v_mul_f32 v{LN_F + k}, v{LN_F + k}, v{S}")
    a = LN_A
    p(f"v_lshrrev_b32 v{a}, 3, v{L}")
    p(f"v_lshlrev_b32 v{a}, 9, v{a}")
    p(f"v_add_u32 v{a}, v{a}, v{LA}")
    p(f"s_lshr_b32 s{sT0}, s2, 2")
    p(f"s_lshl_b32 s{sT0}, s{sT0}, 16")
    p(f"s_and_b32 s{sT1}, s2, 3")
    p(f"s_lshl_b32 s{sT1}, s{sT1}, 7")
    p(f"s_add_u32 s{sT0}, s{sT0}, s{sT1}")
    p(f"s_lshl_b32 s{sT1}, s{sWV}, 14")
    p(f"s_add_u32 s{sT0}, s{sT0}, s{sT1}")
    for n in range(4):
        for k in range(4):
            p(f"v_cvt_pk_bf16_f32 v{LN_X + 4 * n + k}, v{LN_F + 8 * n + 2 * k}, v{LN_F + 8 * n + 2 * k + 1}")
        p(f"buffer_store_dwordx4 {v(LN_X + 4 * n, 4)}, v{a}, {WS}, s{sT0} offen sc1")
        if n < 3:
            p(f"s_add_u32 s{sT0}, s{sT0}, 4096")
    p(f"v_lshlrev_b32 v{a}, 2, v{L}")
    p(f"v_mov_b32 v{T}, 0")
    p(f"s_lshl_b32 s{sT0}, s2, 6")
    p(f"s_add_u32 s{sT0}, s{sT0}, {FL2:#x}")
    p("s_mov_b64 exec, 0xffff")
    p(f"buffer_store_dword v{T}, v{a}, {WS}, s{sT0} offen sc1")
    p("s_mov_b64 exec, -1")
    p(f"s_lshr_b32 s{sT0}, s2, 5")
    p(f"s_sub_u32 s{sT0}, s{sT0}, 1")
    p(f"s_and_b32 s{sT0}, s{sT0}, 7")
    p(f"s_lshl_b32 s{sT0}, s{sT0}, 2")
    p(f"s_add_u32 s{sT0}, s{sT0}, {D_XN * 4}")
    if extra:
        extra(p)
    if signal:
        signal_cnt(p, sT0, "lnsig", nextra)


def worker_init(p):
    p(f"v_and_b32 v{vL}, 63, v0")
    p(f"v_lshlrev_b32 v{vL16}, 4, v{vL}")
    p(f"v_bfe_u32 v{vt0}, v{vL}, 2, 2")
    p(f"v_lshrrev_b32 v{vt1}, 5, v{vL}")
    p(f"v_lshl_add_u32 v{vt1}, v{vt1}, 2, v{vt0}")
    p(f"v_lshlrev_b32 v{vt1}, 8, v{vt1}")
    p(f"v_bfe_u32 v{vt2}, v{vL}, 4, 1")
    p(f"v_lshl_add_u32 v{vt1}, v{vt2}, 5, v{vt1}")
    p(f"v_and_b32 v{vt2}, 3, v{vL}")
    p(f"v_lshl_add_u32 v{vt1}, v{vt2}, 3, v{vt1}")
    for cb in range(4):
        p(f"v_xor_b32 v{vt2}, {cb}, v{vt0}")
        p(f"v_lshl_add_u32 v{vWa + cb}, v{vt2}, 6, v{vt1}")
    p(f"v_lshrrev_b32 v{vDr}, 4, v{vL}")
    p(f"v_and_b32 v{vt0}, 15, v{vL}")
    p(f"v_lshlrev_b32 v{vt1}, 2, v{vDr}")
    p(f"v_xor_b32 v{vt0}, v{vt0}, v{vt1}")
    p(f"v_lshlrev_b32 v{vDp}, 4, v{vt0}")
    p(f"s_lshl_b32 s{sT0}, s{sWV}, 4")
    p(f"v_add_u32 v{vDr}, s{sT0}, v{vDr}")
    p(f"s_lshl_b32 s{sM0b}, s{sWV}, 12")
    p(f"s_mov_b32 s{sACT}, s{sWS}")
    p(f"s_mov_b32 s{sACT + 1}, s{sWS + 1}")
    p(f"s_mov_b32 s{sACT + 3}, 0x20000")


def task_setup(p, kind, sentinels=True):
    ptr, stride, wsz, nit, abase, aseg, obase, oseg, oct_ = {
        K_K: (pWK, 8192, 0x800000, 4, XN, 65536, KF, 262144, 8192),
        K_V: (pWV, 8192, 0x800000, 4, XN, 65536, VF, 262144, 8192),
        K_Q: (pWQ, 8192, 0x800000, 4, XN, 65536, OF, 262144, 8192),
        K_H: (pW1, 7168, 1024 * 7168, 4, XN, 65536, HF, 224 * 1024, 8192),
        K_Y: (pW2, 2048, 3584 * 2048, 14, HF, 224 * 1024, YF, 65536, 8192),
    }[kind]
    p(f"s_mov_b32 s{sKind}, {kind}")
    srd(p, sW, ptr, wsz)
    p(f"s_mov_b32 s{sACT + 2}, 0x10000000")
    p(f"s_mov_b32 s{sBst}, {64 * stride}")
    p(f"s_mov_b32 s{sIt}, {nit}")
    p(f"s_lshl_b32 s{sSeg}, s{sBlk}, 3")
    p(f"s_lshl_b32 s{sT0}, s{sWV}, 1")
    p(f"s_add_u32 s{sSeg}, s{sSeg}, s{sT0}")
    p(f"s_mul_i32 s{sT0}, s{sSeg}, {aseg}")
    p(f"s_add_u32 s{sT0}, s{sT0}, {abase:#x}")
    p(f"v_add_u32 v{vAa}, s{sT0}, v{vL16}")
    p(f"v_add_u32 v{vAa + 1}, {aseg}, v{vAa}")
    p(f"s_mul_i32 s{sOut}, s{sSeg}, {oseg}")
    p(f"s_mul_i32 s{sT0}, s{sCol}, {oct_}")
    p(f"s_add_u32 s{sOut}, s{sOut}, s{sT0}")
    p(f"s_add_u32 s{sOut}, s{sOut}, {obase:#x}")
    p(f"s_mov_b32 s{sOst}, {oseg}")
    p(f"s_lshl_b32 s{sT0}, s{sCol}, 8")
    p(f"v_mul_u32_u24 v{vt0}, {stride}, v{vDr}")
    p(f"v_add3_u32 v{vDm}, v{vt0}, v{vDp}, s{sT0}")
    for n in range(1, 4):
        p(f"v_add_u32 v{vDm + n}, {n * (4 * stride - 1024)}, v{vDm}")
    p(f"s_mov_b32 s{sA}, 0")
    p(f"s_mov_b32 s{sB}, 0")
    if sentinels and kind in (K_K, K_V):
        sentinel_init(p, kind)
    if kind == K_Y:
        p(f"s_lshl_b32 s{sT0}, s{sBlk}, 11")
        p(f"s_add_u32 s{sT0}, s{sT0}, {FL2 + 48:#x}")
        p(f"v_min_u32 v{vt1}, 27, v{vL}")
        p(f"v_lshlrev_b32 v{vt1}, 6, v{vt1}")
        wait_flags(p, f"buffer_load_dword v{vt0}, v{vt1}, {WS}, s{sT0} offen sc1", "hwait")
    elif kind in (K_K, K_V, K_H):
        lab = p.uid("xnw")
        p(f"s_cmp_gt_u32 s{sRnd}, 2")
        p(f"s_cbranch_scc1 {lab}")
        p(f"s_cmp_lg_u32 s{sWV}, 0")
        p(f"s_cbranch_scc1 {lab}")
        p(f"v_and_b32 v{vt1}, 28, v{vL}")
        spin_ge(p, f"buffer_load_dword v{vt0}, v{vt1}, {DBG}, 0 offen offset:{D_XN * 4} sc1", vt0, 32, "xn")
        p.label(lab)
        p("s_barrier")
    else:
        p("s_barrier")


def sentinel_init(p, kind, nseg=2):
    base = {K_K: f"{KM:#x}", K_V: f"{VM:#x}"}.get(kind, kind)
    for k in range(4):
        p(f"v_mov_b32 v{vWA + k}, -1")
    p(f"s_lshl_b32 s{sT0}, s{sSeg}, 16")
    p(f"s_lshl_b32 s{sT1}, s{sCol}, 11")
    p(f"s_add_u32 s{sT0}, s{sT0}, s{sT1}")
    p(f"s_add_u32 s{sT0}, s{sT0}, {base}")
    p(f"s_add_u32 s{sT1}, s{sT0}, 0x10000")
    for so in (sT0, sT1)[:nseg]:
        for o in (0, 1024):
            p(f"buffer_store_dwordx4 {v(vWA, 4)}, v{vL16}, {WS}, s{so} offen offset:{o} sc1")


def vm_ops(buf, ntb=2):
    o = []
    for f in range(4):
        o.append([f"buffer_load_dwordx4 {a(32 * buf + 8 * f + 4 * tb, 4)}, v{vAa + tb}, {ACT}, s{sA} offen offset:{f * 1024} sc1"
                  for tb in range(ntb)]
                 + [f"buffer_load_dwordx4 v{vDm + f}, {WSRD}, s{sB} offen offset:{f * 1024}{MOD['w']} lds"])
    return o


def w_reads(buf, f, dst):
    return [f"ds_read_b64_tr_b16 {v(dst + 4 * cb + 2 * hh, 2)}, v{vWa + cb} offset:{buf * 16384 + f * 4096 + hh * 2048}"
            for cb in range(4) for hh in range(2)]


def gemm_prologue(p):
    for st in range(3):
        p(f"s_add_u32 m0, s{sM0b}, {st * 16384}")
        for grp in vm_ops(st):
            for x in grp:
                p(x)
        p(f"s_add_u32 s{sA}, s{sA}, 4096")
        p(f"s_add_u32 s{sB}, s{sB}, s{sBst}")
    for k in range(128):
        p(f"v_mov_b32 v{vAcc + k}, 0")
    p("s_waitcnt vmcnt(24)")
    p("s_barrier")
    for x in w_reads(0, 0, vWA):
        p(x)


def gemm_loop(p, lab, trans, ntb=2):
    p.label(lab)
    ng = 4 * ntb
    for u in range(4):
        nb = (u + 3) % 4
        vm = vm_ops(nb, ntb)
        for f in range(4):
            cur, nxt = (vWA, vWB) if f % 2 == 0 else (vWB, vWA)
            rd = w_reads(u, f + 1, nxt) if f < 3 else w_reads((u + 1) % 4, 0, nxt)
            gaps = [[] for _ in range(ng)]
            if ntb == 2 or f < 3:
                r0 = 0 if f < 3 else 1
                for g in range(4):
                    gaps[r0 + g] += rd[2 * g:2 * g + 2]
            else:
                gaps[1] += rd[0:3]
                gaps[2] += rd[3:6]
                gaps[3] += rd[6:8]
            if f == 3:
                gaps[0] += [f"s_waitcnt vmcnt({7 * (ntb + 1)})", "s_barrier"]
            if f == 0:
                gaps[ng // 2 - 1] += [f"s_add_u32 m0, s{sM0b}, {nb * 16384}"]
                if u == 1:
                    gaps[0] += [f"s_cmp_eq_u32 s{sIt}, 1"]
                    gaps[ntb - 1] += [f"s_cselect_b32 s{sACT + 2}, 0, s{sACT + 2}"]
                    gaps[2 * ntb - 2] += [f"s_cselect_b32 s{sW + 2}, 0, s{sW + 2}"]
            for k in range(ntb + 1):
                gaps[ng - ntb - 1 + k].append(vm[f][k])
            if f == 3:
                gaps[ng - 1] += [f"s_add_u32 s{sA}, s{sA}, 4096", f"s_add_u32 s{sB}, s{sB}, s{sBst}"]
                if u == 3:
                    gaps[ng - 2] += [f"s_sub_u32 s{sIt}, s{sIt}, 1"]
            p("s_waitcnt lgkmcnt(0)")
            for g in range(ng):
                cb, tb = g // ntb, g % ntb
                acc = v(vAcc + 16 * (4 * tb + cb), 16)
                W, A = v(cur + 4 * cb, 4), a(32 * u + 8 * f + 4 * tb, 4)
                if trans:
                    p(f"v_mfma_f32_32x32x16_bf16 {acc}, {W}, {A}, {acc}")
                else:
                    p(f"v_mfma_f32_32x32x16_bf16 {acc}, {A}, {W}, {acc}")
                for x in gaps[g]:
                    p(x)
    p(f"s_cmp_lg_u32 s{sIt}, 0")
    p(f"s_cbranch_scc1 {lab}")
    p("s_waitcnt lgkmcnt(0)")


def store_epilogue(p, silu, ntb=2):
    for tb in range(ntb):
        for half in range(2):
            if tb or half:
                p(f"s_add_u32 s{sT0}, s{sOut}, {half * 4096}")
                if tb:
                    p(f"s_add_u32 s{sT0}, s{sT0}, s{sOst}")
            so = sT0 if (tb or half) else sOut
            for fr in range(4):
                b = vAcc + 64 * tb + 32 * half + 8 * fr
                if silu:
                    t = vWA + 8 * (fr % 2)
                    for k in range(8):
                        p(f"v_mul_f32 v{t + k}, {fhex(-LOG2E)}, v{b + k}")
                    for k in range(8):
                        p(f"v_exp_f32 v{t + k}, v{t + k}")
                    for k in range(8):
                        p(f"v_add_f32 v{t + k}, 1.0, v{t + k}")
                    for k in range(8):
                        p(f"v_rcp_f32 v{t + k}, v{t + k}")
                    for k in range(8):
                        p(f"v_mul_f32 v{b + k}, v{b + k}, v{t + k}")
                for k in range(4):
                    p(f"v_cvt_pk_bf16_f32 v{b + k}, v{b + 2 * k}, v{b + 2 * k + 1}")
                p(f"buffer_store_dwordx4 {v(b, 4)}, v{vL16}, {WS}, s{so} offen offset:{fr * 1024} sc1")


vQ, vBias, vS, vSm, vKm, vVm, vPx, vPm, vO = 64, 20, 36, 128, 144, 176, 184, 52, 192
vKma, vVma, vPr = 54, 55, 56


def attn_epilogue(p):
    for tb in range(2):
        for k in range(32):
            p(f"v_cvt_pk_bf16_f32 v{vQ + 32 * tb + k}, v{vAcc + 64 * tb + 2 * k}, v{vAcc + 64 * tb + 2 * k + 1}")
    p(f"s_lshl_b32 s{sT0}, s{sBlk}, 5")
    p(f"s_add_u32 s{sT0}, s{sT0}, s{sCol}")
    p(f"s_lshl_b32 s{sT0}, s{sT0}, 6")
    p(f"s_add_u32 s{sT0}, s{sT0}, {FL2 + 40:#x}")
    p(f"v_and_b32 v{vt1}, 4, v{vL}")
    p(f"v_bfe_u32 v{vt2}, v{vL}, 3, 1")
    p(f"v_mad_u32_u24 v{vt1}, v{vt2}, 12, v{vt1}")
    spin_ge(p, f"buffer_load_dword v{vt0}, v{vt1}, {WS}, s{sT0} offen sc1", vt0, 1, "kvwait")
    p("s_waitcnt vmcnt(0)")
    for tb in range(2):
        for kv in range(2):
            for half in range(2):
                p(f"s_add_u32 s{sT0}, s{sOut}, {((KF if kv == 0 else VF) - OF + tb * 262144 + half * 4096) & 0xffffffff:#x}")
                for fr in range(4):
                    p(f"buffer_load_dwordx4 {a(64 * tb + 32 * kv + 16 * half + 4 * fr, 4)}, v{vL16}, {WS}, s{sT0} offen offset:{fr * 1024} sc1")
    p(f"v_and_b32 v{vt0}, 31, v{vL}")
    p(f"v_lshrrev_b32 v{vt1}, 5, v{vL}")
    p(f"v_lshlrev_b32 v{vt2}, 2, v{vt1}")
    p(f"v_sub_u32 v{vt2}, v{vt0}, v{vt2}")
    p(f"v_mov_b32 v{vt3}, {fhex(-1e30)}")
    for q in range(4):
        for j in range(4):
            p(f"v_cmp_gt_i32 vcc, {8 * q + j}, v{vt2}")
            p(f"v_cndmask_b32 v{vBias + 4 * q + j}, 0, v{vt3}, vcc")
    p(f"v_and_b32 v{vt2}, 7, v{vL}")
    p(f"v_lshlrev_b32 v{vt2}, 4, v{vt2}")
    p(f"v_lshl_add_u32 v{vKma}, v{vt1}, 7, v{vt2}")
    p(f"v_lshlrev_b32 v{vt2}, 4, v{vt0}")
    p(f"v_lshl_add_u32 v{vVma}, v{vt1}, 3, v{vt2}")
    p(f"v_mul_u32_u24 v{vPr}, {0x400000 + 0}, v{vt1}")
    p(f"v_lshl_add_u32 v{vPr}, v{vt0}, 6, v{vPr}")
    p(f"s_mov_b32 s{sU3}, {fhex(CEXP)}")
    for tb in range(2):
        p(f"s_add_u32 s{sU0}, s{sSeg}, {tb}")
        p(f"s_lshl_b32 s{sU1}, s{sU0}, 16")
        p(f"s_lshl_b32 s{sT1}, s{sCol}, 11")
        p(f"s_add_u32 s{sU1}, s{sU1}, s{sT1}")
        p(f"s_add_u32 s{sU1}, s{sU1}, {KM:#x}")
        p(f"s_add_u32 s{sU2}, s{sU1}, {VM - KM:#x}")
        if tb == 0:
            p("s_waitcnt vmcnt(24)")
        for F in range(8):
            C = v(vBias, 16) if F == 0 else v(vS, 16)
            p(f"v_mfma_f32_32x32x16_bf16 {v(vS, 16)}, {a(64 * tb + 4 * F, 4)}, {v(vQ + 32 * tb + 4 * F, 4)}, {C}")
        lab = p.uid("km")
        p(f"s_mov_b32 s{sWB}, 0x100000")
        p.label(lab)
        p(f"buffer_load_dword v{vt0}, v{vPr}, {WS}, s{sU1} offen sc1")
        p("s_waitcnt vmcnt(0)")
        p(f"v_cmp_eq_u32 vcc, -1, v{vt0}")
        p(f"s_cbranch_vccnz {lab}_again")
        for F in range(8):
            p(f"buffer_load_dwordx4 {v(vKm + 4 * F, 4)}, v{vKma}, {WS}, s{sU1} offen offset:{F * 256} sc1")
        for eb in range(4):
            p(f"buffer_load_dwordx2 {v(vVm + 2 * eb, 2)}, v{vVma}, {WS}, s{sU2} offen offset:{eb * 512} sc1")
        p("s_waitcnt vmcnt(0)")
        regs = list(range(vKm, vKm + 40))
        p(f"v_max3_u32 v{vt0}, v{regs[0]}, v{regs[1]}, v{regs[2]}")
        p(f"v_max3_u32 v{vt1}, v{regs[3]}, v{regs[4]}, v{regs[5]}")
        rest = regs[6:]
        k = 0
        while rest:
            t = vt0 if k % 2 == 0 else vt1
            p(f"v_max3_u32 v{t}, v{t}, v{rest[0]}, v{rest[1]}")
            rest = rest[2:]
            k += 1
        p(f"v_max_u32 v{vt0}, v{vt0}, v{vt1}")
        p(f"v_cmp_eq_u32 vcc, -1, v{vt0}")
        p(f"s_cbranch_vccz {lab}_ok")
        p.label(lab + "_again")
        p(f"s_sub_u32 s{sWB}, s{sWB}, 1")
        p(f"s_cmp_lg_u32 s{sWB}, 0")
        p(f"s_cbranch_scc1 {lab}")
        p.label(lab + "_ok")
        for F in range(8):
            C = "0" if F == 0 else v(vSm, 16)
            p(f"v_mfma_f32_32x32x16_bf16 {v(vSm, 16)}, {v(vKm + 4 * F, 4)}, {v(vQ + 32 * tb + 4 * F, 4)}, {C}")
            if F == 0:
                p(f"v_max3_f32 v{vt0}, v{vS}, v{vS + 1}, v{vS + 2}")
                p(f"v_max3_f32 v{vt1}, v{vS + 3}, v{vS + 4}, v{vS + 5}")
            if F == 1:
                p(f"v_max3_f32 v{vt0}, v{vt0}, v{vS + 6}, v{vS + 7}")
                p(f"v_max3_f32 v{vt1}, v{vt1}, v{vS + 8}, v{vS + 9}")
                p(f"v_max3_f32 v{vt0}, v{vt0}, v{vS + 10}, v{vS + 11}")
                p(f"v_max3_f32 v{vt1}, v{vt1}, v{vS + 12}, v{vS + 13}")
            if F == 2:
                p(f"v_max3_f32 v{vt0}, v{vt0}, v{vS + 14}, v{vS + 15}")
        p(f"v_max3_f32 v{vt0}, v{vt0}, v{vSm}, v{vSm + 1}")
        p(f"v_max3_f32 v{vt1}, v{vt1}, v{vSm + 2}, v{vSm + 3}")
        p(f"v_max_f32 v{vt0}, v{vt0}, v{vt1}")
        p(f"v_mov_b32 v{vt1}, v{vt0}")
        p(f"v_permlane32_swap_b32 v{vt0}, v{vt1}")
        p(f"v_max_f32 v{vt0}, v{vt0}, v{vt1}")
        p(f"v_mul_f32 v{vt0}, {fhex(-CEXP)}, v{vt0}")
        el = [vSm + k for k in range(4)] + [vS + k for k in range(16)]
        for r in el:
            p(f"v_fma_f32 v{r}, v{r}, s{sU3}, v{vt0}")
        for r in el:
            p(f"v_exp_f32 v{r}, v{r}")
        p(f"v_add_f32 v{vt0}, v{el[0]}, v{el[1]}")
        p(f"v_add_f32 v{vt1}, v{el[2]}, v{el[3]}")
        for k in range(4, 20):
            t = vt0 if k % 2 == 0 else vt1
            p(f"v_add_f32 v{t}, v{t}, v{el[k]}")
        p(f"v_add_f32 v{vt0}, v{vt0}, v{vt1}")
        p(f"v_mov_b32 v{vt1}, v{vt0}")
        p(f"v_permlane32_swap_b32 v{vt0}, v{vt1}")
        p(f"v_add_f32 v{vt0}, v{vt0}, v{vt1}")
        p(f"v_rcp_f32 v{vt0}, v{vt0}")
        for r in el:
            p(f"v_mul_f32 v{r}, v{r}, v{vt0}")
        for k in range(2):
            p(f"v_cvt_pk_bf16_f32 v{vPm + k}, v{vSm + 2 * k}, v{vSm + 2 * k + 1}")
        for k in range(8):
            p(f"v_cvt_pk_bf16_f32 v{vPx + k}, v{vS + 2 * k}, v{vS + 2 * k + 1}")
        for eb in range(4):
            O = v(vO + 16 * eb, 16)
            p(f"v_mfma_f32_32x32x8_bf16 {O}, {v(vVm + 2 * eb, 2)}, {v(vPm, 2)}, 0")
            for f in range(2):
                p(f"v_mfma_f32_32x32x16_bf16 {O}, {a(64 * tb + 32 + 8 * eb + 4 * f, 4)}, {v(vPx + 4 * f, 4)}, {O}")
        p(f"s_add_u32 s{sT0}, s{sOut}, {tb * 262144}")
        p(f"s_add_u32 s{sT1}, s{sT0}, 4096")
        for F in range(8):
            b = vO + 8 * F
            for k in range(4):
                p(f"v_cvt_pk_bf16_f32 v{b + k}, v{b + 2 * k}, v{b + 2 * k + 1}")
            p(f"buffer_store_dwordx4 {v(b, 4)}, v{vL16}, {WS}, s{sT0 if F < 4 else sT1} offen offset:{(F % 4) * 1024} sc1")
        p(f"s_lshl_b32 s{sT0}, s{sU0}, 8")
        p(f"s_lshr_b32 s{sT1}, s{sCol}, 3")
        p(f"s_lshl_b32 s{sT1}, s{sT1}, 6")
        p(f"s_add_u32 s{sT0}, s{sT0}, s{sT1}")
        p(f"s_and_b32 s{sT1}, s{sCol}, 7")
        p(f"s_lshl_b32 s{sT1}, s{sT1}, 2")
        p(f"s_add_u32 s{sT0}, s{sT0}, s{sT1}")
        p(f"s_add_u32 s{sT0}, s{sT0}, {FL2:#x}")
        p(f"v_mov_b32 v{vt0}, 1")
        p("s_waitcnt vmcnt(0)")
        p("s_mov_b64 exec, 1")
        p(f"buffer_store_dword v{vt0}, off, {WS}, s{sT0} sc1")
        p("s_mov_b64 exec, -1")


vData = 64
vHF, vHY, vHX = 20, 22, 24
vOr_, vFl, vYa, vXa, vRw_, vRr_, vE = 26, 27, 28, 29, 30, 31, 128
sT_, sOo, sOn, sFn, sYo, sXo = 60, 63, 65, 66, 67, 69
sXS, sOS = 76, 80


def wo_stream(p, done):
    srd(p, sW, pWO, 0x800000)
    srd(p, sXS, pX, 0x400000)
    srd(p, sOS, pOUT, 0x400000)
    X = f"s[{sXS}:{sXS + 3}]"
    OUT = f"s[{sOS}:{sOS + 3}]"
    g, c = 40, 41
    p(f"v_lshrrev_b32 v{g}, 4, v{vL}")
    p(f"v_and_b32 v{c}, 15, v{vL}")
    p(f"v_lshrrev_b32 v{vt0}, 2, v{vL}")
    p(f"v_lshlrev_b32 v{vt0}, 11, v{vt0}")
    p(f"v_and_b32 v{vt1}, 3, v{vL}")
    p(f"v_lshl_add_u32 v{vt0}, v{vt1}, 4, v{vt0}")
    p(f"s_lshl_b32 s{sT0}, s{sWV}, 21")
    p(f"s_lshl_b32 s{sT1}, s{sCol}, 6")
    p(f"s_add_u32 s{sT0}, s{sT0}, s{sT1}")
    p(f"v_add_u32 v{vDm}, s{sT0}, v{vt0}")
    p(f"v_lshrrev_b32 v{vt0}, 1, v{g}")
    p(f"v_lshlrev_b32 v{vt0}, 4, v{vt0}")
    p(f"v_and_b32 v{vt1}, 1, v{g}")
    p(f"v_lshl_add_u32 v{vt0}, v{vt1}, 2, v{vt0}")
    p(f"v_lshrrev_b32 v{vt1}, 2, v{c}")
    p(f"v_add_u32 v{vt0}, v{vt0}, v{vt1}")
    p(f"v_lshlrev_b32 v{vt0}, 6, v{vt0}")
    p(f"v_and_b32 v{vt1}, 3, v{c}")
    p(f"v_lshl_add_u32 v{vt0}, v{vt1}, 3, v{vt0}")
    p(f"s_lshl_b32 s{sM0b}, s{sWV}, 15")
    p(f"v_add_u32 v{vWa}, s{sM0b}, v{vt0}")
    p("s_barrier")
    for ch in range(2):
        for n in range(32):
            p(f"s_add_u32 m0, s{sM0b}, {n * 1024}")
            p(f"s_mov_b32 s{sT0}, {(ch * 512 + n * 16) * 2048}")
            p(f"buffer_load_dwordx4 v{vDm}, {WSRD}, s{sT0} offen{MOD['wo']} lds")
        p("s_waitcnt vmcnt(0)")
        for kb in range(16):
            for cb in range(2):
                for hh in range(2):
                    r = 8 * (16 * ch + kb) + 4 * cb + 2 * hh
                    p(f"ds_read_b64_tr_b16 {a(r, 2)}, v{vWa} offset:{kb * 2048 + hh * 512 + cb * 32}")
            if kb % 2 == 1:
                p("s_waitcnt lgkmcnt(0)")
    p(f"v_lshlrev_b32 v{vt0}, 9, v{g}")
    p(f"v_and_b32 v{vt1}, 7, v{c}")
    p(f"v_lshl_add_u32 v{vt0}, v{vt1}, 4, v{vt0}")
    p(f"v_lshrrev_b32 v{vt1}, 3, v{c}")
    p(f"v_lshl_add_u32 v{vt0}, v{vt1}, 11, v{vt0}")
    p(f"s_lshl_b32 s{sT0}, s{sWV}, 16")
    p(f"s_lshl_b32 s{sT1}, s{sBlk}, 7")
    p(f"s_add_u32 s{sT0}, s{sT0}, s{sT1}")
    p(f"s_add_u32 s{sT0}, s{sT0}, {OF:#x}")
    p(f"v_add_u32 v{vOr_}, s{sT0}, v{vt0}")
    p(f"s_lshr_b32 s{sT0}, s{sCol}, 3")
    p(f"s_lshl_b32 s{sT0}, s{sT0}, 6")
    p(f"s_bfe_u32 s{sT1}, s{sCol}, 0x10002")
    p(f"s_lshl_b32 s{sT1}, s{sT1}, 2")
    p(f"s_add_u32 s{sT0}, s{sT0}, s{sT1}")
    p(f"s_add_u32 s{sT0}, s{sT0}, {FL2 + 32:#x}")
    p(f"s_lshl_b32 s{sT1}, s{sWV}, 6")
    p(f"s_add_u32 s{sT1}, s{sT1}, {FL2:#x}")
    p(f"v_lshlrev_b32 v{vt0}, 2, v{c}")
    p(f"v_add_u32 v{vt0}, s{sT1}, v{vt0}")
    p(f"v_mov_b32 v{vt1}, s{sT0}")
    p(f"v_cmp_gt_u32 vcc, 8, v{c}")
    p(f"v_cndmask_b32 v{vFl}, v{vt1}, v{vt0}, vcc")
    p(f"s_lshl_b32 s{sT0}, s{sWV}, 1")
    p(f"s_lshl_b32 s{sT1}, s{sBlk}, 3")
    p(f"s_add_u32 s{sT1}, s{sT1}, s{sT0}")
    p(f"v_and_b32 v{vt3}, 1, v{g}")
    p(f"v_add_u32 v{vt2}, s{sT1}, v{vt3}")
    p(f"v_lshlrev_b32 v{vt0}, 11, v{vt2}")
    p(f"v_lshl_add_u32 v{vt0}, v{c}, 2, v{vt0}")
    p(f"s_lshl_b32 s{sT1}, s{sCol}, 6")
    p(f"v_add_u32 v{vt0}, s{sT1}, v{vt0}")
    p(f"v_mov_b32 v{vt1}, {OOB:#x}")
    p(f"v_cmp_gt_u32 vcc, 32, v{vL}")
    p(f"v_cndmask_b32 v{vXa}, v{vt1}, v{vt0}, vcc")
    p(f"v_lshrrev_b32 v{vt0}, 3, v{c}")
    p(f"v_lshlrev_b32 v{vt0}, 10, v{vt0}")
    p(f"v_bfe_u32 v{vt1}, v{c}, 1, 1")
    p(f"v_lshl_add_u32 v{vt0}, v{vt1}, 9, v{vt0}")
    p(f"v_lshl_add_u32 v{vt0}, v{vt2}, 4, v{vt0}")
    p(f"v_bfe_u32 v{vt1}, v{c}, 2, 1")
    p(f"v_lshl_add_u32 v{vt0}, v{vt1}, 3, v{vt0}")
    p(f"v_and_b32 v{vt1}, 1, v{c}")
    p(f"v_lshl_add_u32 v{vt0}, v{vt1}, 2, v{vt0}")
    p(f"s_lshl_b32 s{sT1}, s{sCol}, 11")
    p(f"s_add_u32 s{sT1}, s{sT1}, {YF:#x}")
    p(f"v_add_u32 v{vYa}, s{sT1}, v{vt0}")
    RB = 131072
    p(f"v_mul_u32_u24 v{vt0}, 144, v{c}")
    p(f"v_lshl_add_u32 v{vt0}, v{g}, 4, v{vt0}")
    p(f"s_mul_i32 s{sT0}, s{sWV}, 2304")
    p(f"s_add_u32 s{sT0}, s{sT0}, {RB}")
    p(f"v_add_u32 v{vRw_}, s{sT0}, v{vt0}")
    p(f"v_mul_u32_u24 v{vt0}, 144, v{vt3}")
    p(f"v_lshl_add_u32 v{vt0}, v{c}, 3, v{vt0}")
    p(f"s_mul_i32 s{sT0}, s{sWV}, 288")
    p(f"s_add_u32 s{sT0}, s{sT0}, {RB}")
    p(f"v_add_u32 v{vRr_}, s{sT0}, v{vt0}")

    ND = 16

    def data_ld(i, so):
        return f"buffer_load_dwordx4 {v(vData + 4 * i, 4)}, v{vOr_}, {WS}, s{so} offen sc1"

    def hdr(par):
        p(f"buffer_load_dword v{vHF + par}, v{vFl}, {WS}, s{sFn} offen sc1")
        p(f"buffer_load_dword v{vHY + par}, v{vYa}, {WS}, s{sYo} offen sc1")
        p(f"buffer_load_dword v{vHX + par}, v{vXa}, {X}, s{sYo} offen")

    def compute(par, stream):
        for i in range(ND):
            p(f"s_waitcnt vmcnt({ND + 3 if stream else ND - i})")
            for hb in range(2):
                for cb in range(2):
                    E = v(vE + 8 * hb + 4 * cb, 4)
                    C = "0" if i == 0 else E
                    p(f"v_mfma_f32_16x16x32_bf16 {E}, {a(8 * (2 * i + hb) + 4 * cb, 4)}, {v(vData + 4 * i, 4)}, {C}")
            if stream:
                p(data_ld(i, sOn))
                p(f"s_add_u32 s{sOn}, s{sOn}, 4096")
        for k in range(8):
            p(f"v_add_f32_dpp v{vE + k}, v{vE + 8 + k}, v{vE + k} row_ror:8 row_mask:0xf bank_mask:0xf")

    def final(par):
        for cb in range(2):
            p(f"ds_write_b128 v{vRw_}, {v(vE + 4 * cb, 4)} offset:{par * 9216 + cb * 64}")
        p("s_waitcnt lgkmcnt(0)")
        p("s_barrier")
        for w in range(4):
            p(f"ds_read_b64 {v(40 + 2 * w, 2)}, v{vRr_} offset:{par * 9216 + w * 2304}")
        p(f"v_lshlrev_b32 v48, 16, v{vHX + par}")
        p(f"v_and_b32 v49, 0xffff0000, v{vHX + par}")
        p(f"v_lshlrev_b32 v50, 16, v{vHY + par}")
        p(f"v_and_b32 v51, 0xffff0000, v{vHY + par}")
        p("s_waitcnt lgkmcnt(0)")
        for k in range(2):
            p(f"v_add_f32 v{40 + k}, v{40 + k}, v{42 + k}")
            p(f"v_add_f32 v{44 + k}, v{44 + k}, v{46 + k}")
        for k in range(2):
            p(f"v_add_f32 v{40 + k}, v{40 + k}, v{44 + k}")
        for add in (48, 50):
            p("v_cvt_pk_bf16_f32 v40, v40, v41")
            p("v_and_b32 v41, 0xffff0000, v40")
            p("v_lshlrev_b32 v40, 16, v40")
            p(f"v_add_f32 v40, v40, v{add}")
            p(f"v_add_f32 v41, v41, v{add + 1}")
        p("v_cvt_pk_bf16_f32 v40, v40, v41")
        p(f"buffer_store_dword v40, v{vXa}, {OUT}, s{sXo} offen" + OUTSC)

    def fetch(par):
        p(f"s_lshl_b32 s{sFn}, s{sT_}, 8")
        spin_ge(p, f"buffer_load_dword v{vt0}, v{vFl}, {WS}, s{sFn} offen sc1", vt0, 1, "oflag", 0x100000)
        p(f"s_add_u32 s{sFn}, s{sFn}, 256")
        p(f"s_lshl_b32 s{sYo}, s{sT_}, 16")
        p(f"s_lshl_b32 s{sOn}, s{sT_}, 18")
        hdr(par)
        for i in range(ND):
            p(data_ld(i, sOn))
            p(f"s_add_u32 s{sOn}, s{sOn}, 4096")
        p(f"buffer_load_dword v{vt0}, v{vFl}, {WS}, s{sFn} offen sc1")

    p(f"s_mov_b32 s{sT_}, 0")
    fetch(0)
    for par in range(2):
        p.label(f"wo_seg{par}")
        p(f"s_waitcnt vmcnt({ND})")
        p(f"s_mov_b32 s{sXo}, s{sYo}")
        p(f"s_add_u32 s{sT_}, s{sT_}, 1")
        p(f"v_cmp_eq_u32 vcc, 0, v{vHF + par}")
        p(f"s_cmp_eq_u32 s{sT_}, 64")
        p(f"s_cbranch_scc1 wo_drain{par}")
        p(f"s_cbranch_vccnz wo_drain{par}")
        p(f"s_add_u32 s{sFn}, s{sFn}, 256")
        p(f"s_lshl_b32 s{sYo}, s{sT_}, 16")
        p(f"s_lshl_b32 s{sOn}, s{sT_}, 18")
        hdr(1 - par)
        compute(par, True)
        final(par)
        p(f"s_branch wo_seg{1 - par}")
        p.label(f"wo_drain{par}")
        compute(par, False)
        final(par)
        p(f"s_cmp_eq_u32 s{sT_}, 64")
        p(f"s_cbranch_scc1 {done}")
        fetch(1 - par)
        if par == 1:
            p("s_branch wo_seg0")


DIAG = 0
sHalf = 77


def first_round(p, mk=lambda p, k: None):
    p(f"s_mov_b32 s{sRnd}, 1")
    lab = p.uid("r1")
    p(f"s_and_b32 s{sT0}, s{sX}, 1")
    p(f"s_lshl_b32 s{sT0}, s{sT0}, 5")
    p(f"s_add_u32 s{sT0}, s{sT0}, s{sR}")
    p(f"s_mov_b32 s{sBlk}, 1")
    p(f"s_mov_b32 s{sHalf}, 2")
    p(f"s_lshl_b32 s{sSeg}, s{sWV}, 1")
    p(f"s_add_u32 s{sSeg}, s{sSeg}, 8")
    p(f"s_bitcmp1_b32 s{sX}, 1")
    p(f"s_cbranch_scc1 {lab}_full")
    p(f"s_lshl_b32 s{sT1}, s{sX}, 4")
    p(f"s_and_b32 s{sT1}, s{sT1}, 64")
    p(f"s_add_u32 s{sT0}, s{sT0}, s{sT1}")
    p(f"s_and_b32 s{sHalf}, s{sT0}, 1")
    p(f"s_lshr_b32 s{sT0}, s{sT0}, 1")
    p(f"s_mov_b32 s{sBlk}, 0")
    p(f"s_lshl_b32 s{sSeg}, s{sHalf}, 2")
    p(f"s_add_u32 s{sSeg}, s{sSeg}, s{sWV}")
    p.label(f"{lab}_full")
    p(f"s_lshr_b32 s{sCol}, s{sT0}, 1")
    p(f"s_and_b32 s{sKind}, s{sT0}, 1")
    p(f"s_cbranch_scc1 {lab}_v")
    srd(p, sW, pWK, 0x800000)
    p(f"s_branch {lab}_w")
    p.label(f"{lab}_v")
    srd(p, sW, pWV, 0x800000)
    p.label(f"{lab}_w")
    p(f"s_mov_b32 s{sACT + 2}, 0x10000000")
    p(f"s_mov_b32 s{sBst}, {64 * 8192}")
    p(f"s_mov_b32 s{sIt}, 4")
    p(f"s_lshl_b32 s{sT0}, s{sSeg}, 16")
    p(f"v_add_u32 v{vAa}, s{sT0}, v{vL16}")
    p(f"v_add_u32 v{vAa + 1}, 65536, v{vAa}")
    p(f"s_lshl_b32 s{sOut}, s{sSeg}, 18")
    p(f"s_lshl_b32 s{sT0}, s{sCol}, 13")
    p(f"s_add_u32 s{sOut}, s{sOut}, s{sT0}")
    p(f"s_lshl_b32 s{sT0}, s{sKind}, 24")
    p(f"s_add_u32 s{sOut}, s{sOut}, s{sT0}")
    p(f"s_add_u32 s{sOut}, s{sOut}, {KF:#x}")
    p(f"s_mov_b32 s{sOst}, 262144")
    p(f"s_lshl_b32 s{sT0}, s{sCol}, 8")
    p(f"v_lshlrev_b32 v{vt0}, 13, v{vDr}")
    p(f"v_add3_u32 v{vDm}, v{vt0}, v{vDp}, s{sT0}")
    for n in range(1, 4):
        p(f"v_add_u32 v{vDm + n}, {n * (4 * 8192 - 1024)}, v{vDm}")
    p(f"s_mov_b32 s{sA}, 0")
    p(f"s_mov_b32 s{sB}, 0")

    def w_first(p):
        for st in range(3):
            p(f"s_add_u32 m0, s{sM0b}, {st * 16384}")
            for grp in vm_ops(st):
                p(grp[-1])
            p(f"s_add_u32 s{sB}, s{sB}, s{sBst}")

    assert VF - KF == 1 << 24 and VM - KM == 1 << 22 and XN == 0
    mk(p, 0)
    ln_finish(p, 0, True, w_first, 12, 49152)
    mk(p, 1)
    p(f"s_lshl_b32 s{sU0}, s{sKind}, 22")
    p(f"s_add_u32 s{sU0}, s{sU0}, {KM:#x}")
    for ntb in (1, 2):
        if ntb == 1:
            p(f"s_cmp_eq_u32 s{sHalf}, 2")
            p(f"s_cbranch_scc1 {lab}_b2")
        else:
            p.label(f"{lab}_b2")
        sentinel_init(p, f"s{sU0}", ntb)
        for k in range(64 * ntb):
            p(f"v_mov_b32 v{vAcc + k}, 0")
        if DIAG:
            p(f"s_waitcnt vmcnt({2 * ntb})")
            mk(p, 0)
            p(f"s_waitcnt vmcnt(0)")
            mk(p, 3)
        l2 = p.uid("xn1")
        p(f"s_cmp_lg_u32 s{sWV}, 0")
        p(f"s_cbranch_scc1 {l2}")
        spin_ge(p, f"buffer_load_dword v{vt0}, off, {DBG}, 0 offset:{D_XN * 4 + 28 * (2 - ntb)} sc1", vt0, 32, "xn")
        p.label(l2)
        p("s_barrier")
        mk(p, 2)
        for st in range(3):
            for grp in vm_ops(st, ntb):
                for x in grp[:-1]:
                    p(x)
            p(f"s_add_u32 s{sA}, s{sA}, 4096")
        p(f"s_waitcnt vmcnt({4 * ntb})")
        p("s_barrier")
        if not DIAG:
            mk(p, 3)
        for x in w_reads(0, 0, vWA):
            p(x)
        p(f"s_cmp_eq_u32 s{sKind}, {K_K}")
        p(f"s_cbranch_scc1 W_LOOP_T{ntb}")
        if ntb == 2:
            p("s_branch W_LOOP_N2")
        else:
            gemm_loop(p, "W_LOOP_N1", False, 1)
            p("s_branch W_EP_1")
            gemm_loop(p, "W_LOOP_T1", True, 1)
            p.label("W_EP_1")
            mk(p, 4)
            store_epilogue(p, False, 1)
            p(f"s_mul_i32 s{sT1}, s{sHalf}, 3")
            p(f"s_add_u32 s{sT1}, s{sT1}, s{sKind}")
            p(f"s_lshl_b32 s{sT1}, s{sT1}, 2")
            p(f"s_add_u32 s{sT1}, s{sT1}, {FL2 + 40:#x}")
            signal_flag(p, f"s{sT1}", "kvsig")
            p("s_branch W_NEXT")


SCHED = {
    (2, 0): ("kv1", 2, 0), (2, 1): ("kv1", 2, 32), (2, 4): ("h", 0), (2, 5): ("h", 32), (2, 2): ("h", 64), (2, 3): ("h", 96),
    (3, 0): ("h", 128), (3, 1): ("h", 160), (3, 4): ("h", 192), (3, 5): ("kv2", 3, 0), (3, 2): ("kv2", 3, 16), (3, 3): ("kv2", 3, 32),
    (4, 0): ("kv2", 3, 48), (4, 1): ("kv2", 5, 0), (4, 2): ("kv2", 5, 16), (4, 3): ("kv2", 5, 32), (4, 4): ("y", 0), (4, 5): ("y", 32),
    (5, 2): ("kv2", 5, 48), (5, 3): ("kv1", 7, 0), (6, 2): ("kv1", 7, 32),
}
for _r in range(4):
    for _x in range(2):
        SCHED[(5 + _r, _x)] = ("q", 2 * _r + _x)


def worker(p, done, sentinels=True, stop_after=None, stat=None, mark=None):
    mark = mark or (lambda p, k: None)
    worker_init(p)
    if stat:
        first_round(p, lambda p, k: p(f"s_memrealtime s[{84 + 2 * k}:{85 + 2 * k}]"))
    else:
        first_round(p)
    p.label("W_NEXT")
    if stat:
        stat(p)
    mark(p, 0)
    p(f"s_add_u32 s{sRnd}, s{sRnd}, 1")
    p(f"s_lshl_b32 s{sT1}, s{sRnd}, 3")
    p(f"s_add_u32 s{sT1}, s{sT1}, s{sX}")
    for (r, x) in sorted(SCHED):
        p(f"s_cmp_eq_u32 s{sT1}, {8 * r + x}")
        p(f"s_cbranch_scc1 W_T{r}_{x}")
    p(f"s_cmp_ge_u32 s{sX}, 2")
    p("s_cbranch_scc1 W_WO")
    p(f"s_branch {done}")
    for (r, x), t in sorted(SCHED.items()):
        p.label(f"W_T{r}_{x}")
        if t[0] == "kv1":
            p(f"s_mov_b32 s{sBlk}, {t[1]}")
            p(f"s_add_u32 s{sCol}, s{sR}, {t[2]}")
            p("s_branch W_KV")
        elif t[0] == "kv2":
            p(f"s_and_b32 s{sBlk}, s{sR}, 1")
            p(f"s_add_u32 s{sBlk}, s{sBlk}, {t[1]}")
            p(f"s_lshr_b32 s{sCol}, s{sR}, 1")
            p(f"s_add_u32 s{sCol}, s{sCol}, {t[2]}")
            p("s_branch W_KV")
        elif t[0] == "h":
            p(f"s_and_b32 s{sBlk}, s{sR}, 7")
            p(f"s_lshr_b32 s{sCol}, s{sR}, 3")
            p(f"s_add_u32 s{sCol}, s{sCol}, {t[1] // 8}")
            p("s_branch W_SET_H")
        elif t[0] == "y":
            p(f"s_lshr_b32 s{sBlk}, s{sR}, 3")
            p(f"s_add_u32 s{sBlk}, s{sBlk}, {t[1] // 8}")
            p(f"s_and_b32 s{sCol}, s{sR}, 7")
            p("s_branch W_SET_Y")
        else:
            p(f"s_mov_b32 s{sBlk}, {t[1]}")
            p(f"s_mov_b32 s{sCol}, s{sR}")
            p("s_branch W_SET_Q")
    p.label("W_KV")
    p(f"s_bitcmp1_b32 s{sCol}, 0")
    p(f"s_cselect_b32 s{sT0}, 1, 0")
    p(f"s_lshr_b32 s{sCol}, s{sCol}, 1")
    p(f"s_cmp_eq_u32 s{sT0}, 1")
    p("s_cbranch_scc1 W_SET_V")
    p("s_branch W_SET_K")
    for lab, kind in (("W_SET_H", K_H), ("W_SET_K", K_K), ("W_SET_Q", K_Q), ("W_SET_Y", K_Y), ("W_SET_V", K_V)):
        p.label(lab)
        task_setup(p, kind, sentinels)
        if kind != K_V:
            p("s_branch W_GT")
    mark(p, 1)
    gemm_prologue(p)
    mark(p, 2)
    gemm_loop(p, "W_LOOP_N2", False)
    mark(p, 3)
    p("s_branch W_EP_ST")
    p.label("W_GT")
    mark(p, 1)
    gemm_prologue(p)
    mark(p, 2)
    gemm_loop(p, "W_LOOP_T2", True)
    mark(p, 3)
    p(f"s_cmp_eq_u32 s{sKind}, {K_Q}")
    p("s_cbranch_scc1 W_EP_Q")
    p(f"s_cmp_eq_u32 s{sKind}, {K_H}")
    p("s_cbranch_scc1 W_EP_H")
    p.label("W_EP_ST")
    store_epilogue(p, False)
    p(f"s_cmp_eq_u32 s{sKind}, {K_Y}")
    p("s_cbranch_scc1 W_SIG_Y")
    p(f"s_lshl_b32 s{sT1}, s{sKind}, 2")
    p(f"s_add_u32 s{sT1}, s{sT1}, {FL2 + 40:#x}")
    signal_flag(p, f"s{sT1}", "kvsig", True)
    p("s_branch W_NEXT")
    p.label("W_SIG_Y")
    p(f"s_lshl_b32 s{sT0}, s{sSeg}, 8")
    p(f"s_lshr_b32 s{sT1}, s{sCol}, 1")
    p(f"s_lshl_b32 s{sT1}, s{sT1}, 6")
    p(f"s_add_u32 s{sT0}, s{sT0}, s{sT1}")
    p(f"s_and_b32 s{sT1}, s{sCol}, 1")
    p(f"s_lshl_b32 s{sT1}, s{sT1}, 2")
    p(f"s_add_u32 s{sT0}, s{sT0}, s{sT1}")
    p(f"s_add_u32 s{sT0}, s{sT0}, {FL2 + 32:#x}")
    p(f"v_mov_b32 v{vt0}, 1")
    p("s_waitcnt vmcnt(0)")
    p("s_mov_b64 exec, 1")
    p(f"buffer_store_dword v{vt0}, off, {WS}, s{sT0} sc1")
    p(f"buffer_store_dword v{vt0}, off, {WS}, s{sT0} offset:256 sc1")
    p("s_mov_b64 exec, -1")
    p("s_branch W_NEXT")
    p.label("W_EP_H")
    store_epilogue(p, True)
    signal_flag(p, f"{FL2 + 48:#x}", "hsig")
    p("s_branch W_NEXT")
    p.label("W_EP_Q")
    attn_epilogue(p)
    p("s_branch W_NEXT")
    p.label("W_WO")
    p(f"s_sub_u32 s{sBlk}, s{sX}, 2")
    p(f"s_mov_b32 s{sCol}, s{sR}")
    wo_stream(p, done)
```

```python
import sys
from worker import *

def prologue(p):
    p("s_cmp_ge_u32 s2, 256")
    p("s_cbranch_scc1 EXIT")
    p("s_load_dwordx16 s[16:31], s[0:1], 0")
    p("s_load_dwordx8 s[32:39], s[0:1], 64")
    p("s_load_dwordx2 s[40:41], s[0:1], 96")
    p(f"s_getreg_b32 s{sX}, hwreg(HW_REG_XCC_ID, 0, 4)")
    p("v_lshrrev_b32 v1, 6, v0")
    p(f"v_readfirstlane_b32 s{sWV}, v1")
    p("s_waitcnt lgkmcnt(0)")
    srd(p, sWS, pWSP, 0x10000000)
    srd(p, sDBG, pDBG, 256)
    srd(p, sW, pX, 0x400000)
    p(f"s_cmp_lg_u32 s{sWV}, 0")
    p("s_cbranch_scc1 RANK_WAIT")
    p(f"s_min_u32 s{sT0}, s{sX}, 8")
    p(f"s_lshl_b32 s{sT0}, s{sT0}, 2")
    p("s_mov_b64 exec, 1")
    p("v_mov_b32 v1, 1")
    p("v_mov_b32 v2, 0")
    p(f"buffer_atomic_add v1, off, {DBG}, s{sT0} sc0 sc1")
    p("s_waitcnt vmcnt(0)")
    p("ds_write_b32 v2, v1")
    p("s_mov_b64 exec, -1")
    p("s_waitcnt lgkmcnt(0)")
    p.label("RANK_WAIT")
    p("s_barrier")
    p("v_mov_b32 v2, 0")
    p("ds_read_b32 v1, v2")
    p("s_waitcnt lgkmcnt(0)")
    p(f"v_readfirstlane_b32 s{sR}, v1")
    p(f"s_cmp_ge_u32 s{sR}, 32")
    p("s_cbranch_scc1 EXIT")
    p(f"s_sub_u32 s2, s{sX}, 2")
    p("s_and_b32 s2, s2, 7")
    p("s_lshl_b32 s2, s2, 5")
    p(f"s_add_u32 s2, s2, s{sR}")
    ln_issue(p)


def task_stat(p):
    p("s_memrealtime s[96:97]")
    p(f"s_lshl_b32 s98, s{sX}, 5")
    p(f"s_add_u32 s98, s98, s{sR}")
    p("s_lshl_b32 s98, s98, 6")
    p(f"s_lshl_b32 s99, s{sRnd}, 2")
    p("s_add_u32 s98, s98, s99")
    p(f"s_add_u32 s98, s98, {STAT + 0x300000:#x}")
    p("s_waitcnt lgkmcnt(0)")
    p(f"v_mov_b32 v{vt0}, s96")
    p("s_mov_b64 exec, 1")
    p(f"buffer_store_dword v{vt0}, off, {WS}, s98")
    p("s_mov_b64 exec, -1")


def task_mark(p, k):
    p("s_memtime s[96:97]")
    p(f"s_lshl_b32 s98, s{sX}, 5")
    p(f"s_add_u32 s98, s98, s{sR}")
    p("s_lshl_b32 s98, s98, 8")
    p(f"s_lshl_b32 s99, s{sRnd}, 4")
    p("s_add_u32 s98, s98, s99")
    p(f"s_add_u32 s98, s98, {STAT + 0x310000 + k * 4 + (16 if k == 0 else 0):#x}")
    p("s_waitcnt lgkmcnt(0)")
    p(f"v_mov_b32 v{vt0}, s96")
    p("s_mov_b64 exec, 1")
    p(f"buffer_store_dword v{vt0}, off, {WS}, s98")
    p("s_mov_b64 exec, -1")


def tl(p, word, inv=False, src=None):
    if src is None:
        p("s_memrealtime s[96:97]")
        p("s_waitcnt lgkmcnt(0)")
        src = 96
    p(f"v_mov_b32 v{vt0}, s{src}")
    if inv:
        p(f"v_not_b32 v{vt0}, v{vt0}")
    p("s_mov_b64 exec, 1")
    p(f"buffer_atomic_umax v{vt0}, off, {DBG}, 0 offset:{word * 4} sc1")
    p("s_mov_b64 exec, -1")


def gen(mark=False, chain=True, stop_after=None, stat=False, copt=None, line=False, cmod="", stamp=None):
    p = Prog()
    if line:
        p("s_memrealtime s[94:95]")
    if stat:
        p("s_memrealtime s[94:95]")
    prologue(p)
    if line or stat:
        p("s_memrealtime s[98:99]")
    p(f"s_cmp_ge_u32 s{sX}, 2")
    p("s_cbranch_scc1 WORKER")
    if chain:
        chain_init_a(p, cmod)
        ln_finish(p, 32, False)
        chain_init(p, ring=(copt or {}).get('ring', 1), wmod=cmod, ln_stores=5, ln_word=sT0, mark="s_memrealtime s[28:29]" if line else ("s_memrealtime s[100:101]" if stat else None))
        if stat or line:
            p("s_memrealtime s[30:31]")
        for w in range(3):
            p(f"s_cmp_eq_u32 s{sWV}, {w}")
            p(f"s_cbranch_scc1 c{w}_entry")
        p("s_branch c3_entry")
        for w in range(4):
            chain_loop(p, w, f"c{w}", done="CDONE", opt=copt, stamp=stamp)
        p.label("CDONE")
        if line:
            p(f"s_cmp_lg_u32 s{sWV}, 0")
            p("s_cbranch_scc1 EXIT")
            tl(p, 13)
            tl(p, 12, False, 30)
            tl(p, 10, True, 94)
            tl(p, 15, False, 28)
        if stat:
            p("s_memrealtime s[28:29]")
            p("s_waitcnt lgkmcnt(0)")
            p("v_mov_b32 v1, 0")
            for k, sr in enumerate([60, 61, 62, 63, 94, 30, 28, sBUD, 93, 100, 98]):
                p(f"v_writelane_b32 v1, s{sr}, {k}")
            p(f"s_lshl_b32 s{sT0}, s{sX}, 5")
            p(f"s_add_u32 s{sT0}, s{sT0}, s{sR}")
            p(f"s_lshl_b32 s{sT0}, s{sT0}, 2")
            p(f"s_add_u32 s{sT0}, s{sT0}, s{sWV}")
            p(f"s_lshl_b32 s{sT0}, s{sT0}, 6")
            p(f"s_add_u32 s{sT0}, s{sT0}, {STAT + 0x200000:#x}")
            p("v_mbcnt_lo_u32_b32 v2, -1, 0")
            p("v_lshlrev_b32 v2, 2, v2")
            p("s_mov_b64 exec, 0xffff")
            p(f"buffer_store_dword v1, v2, {WS}, s{sT0} offen")
    p("s_endpgm")
    p.label("WORKER")
    p(f"s_sub_u32 s{sX}, s{sX}, 2")
    worker(p, "WDONE", sentinels=chain, stop_after=stop_after, stat=task_stat if stat else None, mark=task_mark if mark else None)
    p.label("WDONE")
    if line:
        p(f"s_cmp_lg_u32 s{sWV}, 0")
        p("s_cbranch_scc1 EXIT")
        tl(p, 14)
        tl(p, 10, True, 94)
        tl(p, 11, False, 98)
    if stat:
        p(f"s_mov_b32 s{sRnd}, 12")
        task_stat(p)
        p("s_mov_b32 s96, s94")
        p(f"s_add_u32 s98, s98, 4")
        p(f"v_mov_b32 v{vt0}, s96")
        p("s_mov_b64 exec, 1")
        p(f"buffer_store_dword v{vt0}, off, {WS}, s98")
        for k, slot in enumerate((0, 9, 10, 11, 14)):
            p(f"v_mov_b32 v{vt0}, s{84 + 2 * k}")
            p(f"s_add_u32 s99, s98, {(slot - 13) * 4 & 0xffffffff:#x}")
            p(f"buffer_store_dword v{vt0}, off, {WS}, s99")
    p.label("EXIT")
    p("s_endpgm")
    return wrap([(NAME + "_kernel", p, 512, 256)], [(NAME + "_kernel", 256, 256, 163840)]), p


if __name__ == "__main__":
    CO = dict(s_pos=4, omode='flag')
    t, p = gen(chain=True, stat=True, copt=CO)
    open("k_f.s", "w").write(t)
    t, p = gen(chain=True, stat=False, copt=CO, line=True)
    open("k_line.s", "w").write(t)
    t, p = gen(chain=True, stat=False, copt=CO)
    open("k_full.s", "w").write(t)
    print(p.count(), len(t))
    t, p = gen(chain=True, stat=True, copt=CO, stamp=set(range(12)))
    open("k_fst.s", "w").write(t)
    if len(sys.argv) > 1:
        for nm, (cm, md) in dict(a=("", {}), b=(" nt", {}), c=(" nt", dict(w=" nt", x=" nt", wo=" nt")), d=("", dict(w=" nt"))).items():
            MOD.update(dict(w="", x="", wo="")); MOD.update(md)
            t, p = gen(chain=True, stat=False, copt=CO, line=True, cmod=cm)
            open(f"l_{nm}.s", "w").write(t)
            t, p = gen(chain=True, stat=True, copt=CO, cmod=cm)
            open(f"kf_{nm}.s", "w").write(t)
```

```python
from common import *

XN = 0x0000000
KF = 0x0400000
VF = 0x1400000
KM = 0x2400000
VM = 0x2800000
OF = 0x2C00000
HF = 0x3C00000
YF = 0x4A00000
RING = 0x5000000
STAT = 0x5400000
XS = 0x80000
SLOT = 0x20000
R_MO, R_MX, R_O, R_S = 0, 0x4000, 0x8000, 0x10000
FLG = 0x5100000
FL2 = 0x5200000
OOB = 0x80000000

D_RANK = 0
D_CBAR = 9
D_XN = 25
D_KV = 24
D_HF = 32
D_Y = 40
D_OF = 48

sWS, sDBG, sW = 4, 8, 12
pX, pMEM, pWQ, pWK, pWV, pWO, pW1, pW2, pOUT, pDBG, pWSP = 16, 18, 20, 22, 24, 26, 32, 34, 36, 38, 40
sX, sR, sWV = 42, 43, 44
sS, sCUR, sNXT, sPRV, sCUR4 = 45, 46, 50, 48, 49
sKV0, sKV1, sKM, sKXM0, sBUD = 51, 52, 53, 54, 55
sT0, sT1, sT2, sT3 = 56, 57, 58, 59
sCNT = 60
sTS = 64
sKMP, sFO, sFM, sFOr, sFMr, sS1 = 3, 88, 89, 90, 91, 92
sKVC, sKVB = 47, 24
sB1 = 32
sPAT = 26
sMK = 16

L_ST, L_KX, L_X, L_R, L_WO = 0, 16384, 24576, 28672, 32768

(vMOr, vMXr, vOr, vOw, vSw, vSr, vMw, vKM, vVM, vVx, vKxg, vRst, vSt, vXw, vXq, vKxl, vRw, vRr, vWo,
 vIdx) = range(1, 21)
vFr = 0
vT0, vT1, vT2 = 22, 23, 21
vID = 24
vONE = 26
vVMo = 30
vSENT = 32
vVX = 36
vDq, vDk, vDv = 40, 44, 48
vF = 52
vMO, vMX, vACC = 52, 68, 84
vFREE = 116
vWV = 128

CEXP = 0.08838834764831845 * 1.4426950408889634


def fhex(x):
    import struct
    return "0x%08x" % struct.unpack("<I", struct.pack("<f", x))[0]


vWg = 119
sM0, sSO = 64, 65


def dma_chunk(p, half, src_off, vaddr, step, wmod=""):
    for n in range(16):
        p(f"s_add_u32 m0, s{sM0}, {half * 65536 + n * 4096}")
        p(f"s_mov_b32 s{sSO}, {(step(n) if callable(step) else src_off + n * step):#x}")
        p(f"buffer_load_dwordx4 v{vaddr}, s[{sW}:{sW + 3}], s{sSO} offen{wmod} lds")


def chain_init_a(p, wmod=""):
    L, t0, t1 = 112, 113, 114
    sB = sT2
    p(f"v_and_b32 v{L}, 63, v0")
    p(f"v_lshrrev_b32 v{t0}, 5, v{L}")
    p(f"s_and_b32 s{sB}, s{sWV}, 1")
    p(f"s_lshl_b32 s{sB}, s{sB}, 1")
    p(f"v_add_u32 v{t0}, s{sB}, v{t0}")
    p(f"v_lshlrev_b32 v{t0}, 1, v{t0}")
    p(f"v_and_b32 v{t1}, 7, v{L}")
    p(f"v_xor_b32 v{t0}, v{t0}, v{t1}")
    p(f"v_lshlrev_b32 v{t0}, 4, v{t0}")
    p(f"v_lshrrev_b32 v{t1}, 3, v{L}")
    p(f"v_lshl_add_u32 v{vWg}, v{t1}, 13, v{t0}")
    p(f"s_lshl_b32 s{sB}, s{sWV}, 16")
    p(f"s_lshl_b32 s{sT3}, s{sX}, 12")
    p(f"s_add_u32 s{sB}, s{sB}, s{sT3}")
    p(f"s_lshl_b32 s{sT3}, s{sR}, 7")
    p(f"s_add_u32 s{sB}, s{sB}, s{sT3}")
    p(f"v_add_u32 v{vWg}, s{sB}, v{vWg}")
    p(f"s_lshl_b32 s{sM0}, s{sWV}, 10")
    p(f"s_add_u32 s{sM0}, s{sM0}, {L_WO}")
    srd(p, sW, pWQ, 0x800000)
    dma_chunk(p, 0, 0, vWg, 262144, wmod)
    dma_chunk(p, 1, 512 * 8192, vWg, 262144, wmod)


def chain_init(p, kvwait=True, wmod="", mark=None, ln_stores=0, ln_word=None, isc="", ring=True, fbyte=False):
    L, G, C, t0, t1, t2, t3 = 52, 53, 54, 55, 56, 57, 58
    p(f"v_and_b32 v{L}, 63, v0")
    p(f"v_lshrrev_b32 v{G}, 4, v{L}")
    p(f"v_and_b32 v{C}, 15, v{L}")
    sH, sJ, sB = sT0, sT1, sT2
    if ln_word is not None:
        p(f"s_mov_b32 s76, s{ln_word}")
    p(f"s_lshr_b32 s{sH}, s{sR}, 1")
    p(f"s_lshl_b32 s{sT3}, s{sX}, 4")
    p(f"s_add_u32 s{sH}, s{sH}, s{sT3}")
    p(f"s_and_b32 s{sJ}, s{sR}, 1")
    vWog, vTr0, vTr1 = 61, 62, 63
    vWoT0, vWoT1 = 64, 65

    def dma(half, src_off, vaddr, step):
        dma_chunk(p, half, src_off, vaddr, step, wmod)

    sRB = 66
    p(f"s_mul_i32 s{sRB}, s{sX}, {XS:#x}")
    p(f"s_add_u32 s{sRB}, s{sRB}, {RING:#x}")
    p(f"v_lshlrev_b32 v{t0}, 4, v{L}")
    p(f"s_lshl_b32 s{sB}, s{sWV}, 12")
    p(f"s_add_u32 s{sT3}, s{sB}, s{sRB}")
    p(f"v_add_u32 v{vMOr}, s{sT3}, v{t0}")
    p(f"s_xor_b32 s{sT3}, s{sT3}, {XS:#x}")
    p(f"s_add_u32 s{sT3}, s{sT3}, {R_MX:#x}")
    p(f"v_add_u32 v{vMXr}, s{sT3}, v{t0}")
    p(f"s_lshl_b32 s{sT3}, s{sWV}, 13")
    p(f"s_add_u32 s{sT3}, s{sT3}, s{sRB}")
    p(f"s_add_u32 s{sT3}, s{sT3}, {R_O:#x}")
    p(f"v_add_u32 v{vOr}, s{sT3}, v{t0}")
    p(f"v_mov_b32 v{vSt}, v{t0}")
    p(f"v_add_u32 v{vKxl}, {L_KX}, v{t0}")
    if ring:
        p(f"s_lshr_b32 s{sT3}, s{sWV}, 1")
        p(f"s_lshl_b32 s{sT3}, s{sT3}, 16")
        p(f"s_and_b32 s{sB}, s{sWV}, 1")
        p(f"s_lshl_b32 s{sB}, s{sB}, 12")
        p(f"s_add_u32 s{sT3}, s{sT3}, s{sB}")
    else:
        p(f"s_lshl_b32 s{sT3}, s{sWV}, 15")
    p(f"s_add_u32 s{sT3}, s{sT3}, {L_WO}")
    p(f"v_add_u32 v{vWo}, s{sT3}, v{t0}")
    MU, BE = 67, 68
    p(f"v_lshrrev_b32 v{t1}, 2, v{C}")
    p(f"v_and_b32 v{t2}, 1, v{C}")
    p(f"v_lshl_add_u32 v{MU}, v{t1}, 1, v{t2}")
    p(f"v_bfe_u32 v{BE}, v{C}, 1, 1")
    p(f"v_cmp_eq_u32 s[70:71], 0, v{BE}")
    p(f"v_cmp_gt_u32 s[72:73], 32, v{L}")
    p(f"v_mov_b32 v{t3}, {OOB:#x}")
    p(f"v_lshrrev_b32 v{t1}, 1, v{G}")
    p(f"v_lshl_add_u32 v{t1}, v{t1}, 1, v{C}")
    p(f"v_and_b32 v{t2}, 1, v{G}")
    p(f"v_lshlrev_b32 v{t2}, 3, v{t2}")
    p(f"v_lshl_add_u32 v{t1}, v{t1}, 4, v{t2}")
    p(f"s_lshl_b32 s{sB}, s{sR}, 10")
    p(f"s_lshl_b32 s{sT3}, s{sWV}, 8")
    p(f"s_add_u32 s{sB}, s{sB}, s{sT3}")
    p(f"s_add_u32 s{sB}, s{sB}, s{sRB}")
    p(f"s_add_u32 s{sB}, s{sB}, {R_O:#x}")
    p(f"v_add_u32 v{t1}, s{sB}, v{t1}")
    p(f"v_cndmask_b32 v{vOw}, v{t3}, v{t1}, s[70:71]")
    p(f"v_lshlrev_b32 v{t1}, 4, v{L}")
    p(f"s_lshl_b32 s{sB}, s{sR}, 11")
    p(f"s_add_u32 s{sB}, s{sB}, s{sRB}")
    p(f"s_add_u32 s{sB}, s{sB}, {R_S:#x}")
    p(f"s_xor_b32 s{sT3}, s{sB}, 2048")
    p(f"v_add_u32 v{vSr}, s{sT3}, v{t1}")
    p(f"s_and_b32 s{sT3}, s{sWV}, 1")
    p(f"s_lshl_b32 s{sT3}, s{sT3}, 10")
    p(f"s_add_u32 s{sB}, s{sB}, s{sT3}")
    p(f"v_add_u32 v{t1}, s{sB}, v{t1}")
    p(f"s_lshr_b32 s{sT3}, s{sWV}, 1")
    p(f"v_cmp_eq_u32 vcc, s{sT3}, v{BE}")
    p(f"v_cndmask_b32 v{vSw}, v{t3}, v{t1}, vcc")
    p(f"s_lshl_b32 s{sB}, s{sR}, 9")
    p(f"s_lshr_b32 s{sT3}, s{sWV}, 1")
    p(f"s_lshl_b32 s68, s{sT3}, 8")
    p(f"s_add_u32 s{sB}, s{sB}, s68")
    p(f"s_xor_b32 s{sT3}, s{sT3}, s{sWV}")
    p(f"s_and_b32 s{sT3}, s{sT3}, 1")
    p(f"s_mul_i32 s{sT3}, s{sT3}, {R_MX:#x}")
    p(f"s_add_u32 s{sB}, s{sB}, s{sT3}")
    p(f"s_add_u32 s{sB}, s{sB}, s{sRB}")
    p(f"v_lshlrev_b32 v{t1}, 2, v{L}")
    p(f"v_add_u32 v{vMw}, s{sB}, v{t1}")
    p(f"v_and_b32 v{vFr}, 124, v{t1}")
    p(f"s_lshl_b32 s{sB}, s{sX}, 12")
    p(f"s_add_u32 s{sB}, s{sB}, {FLG:#x}")
    p(f"s_mul_i32 s{sT3}, s{sWV}, 0x180")
    p(f"s_add_u32 s{sFOr}, s{sB}, s{sT3}")
    p(f"s_add_u32 s{sFMr}, s{sB}, 0x800")
    p(f"s_lshl_b32 s{sT3}, s{sR}, 2")
    p(f"s_add_u32 s{sFM}, s{sFMr}, s{sT3}")
    p(f"s_lshr_b32 s{sT3}, s{sR}, 3")
    p(f"s_mul_i32 s{sT3}, s{sT3}, 0x180")
    p(f"s_add_u32 s{sB}, s{sB}, s{sT3}")
    p(f"s_and_b32 s{sT3}, s{sR}, 7")
    p(f"s_lshl_b32 s{sT3}, s{sT3}, 2")
    p(f"s_add_u32 s{sT3}, s{sT3}, s{sWV}")
    if not fbyte:
        p(f"s_lshl_b32 s{sT3}, s{sT3}, 2")
    p(f"s_add_u32 s{sFO}, s{sB}, s{sT3}")
    p(f"v_lshlrev_b32 v{t1}, 7, v{G}")
    p(f"v_lshl_add_u32 v{t1}, v{MU}, 4, v{t1}")
    p(f"s_lshl_b32 s{sB}, s{sH}, 11")
    p(f"s_lshl_b32 s{sT3}, s{sJ}, 10")
    p(f"s_add_u32 s{sB}, s{sB}, s{sT3}")
    p(f"s_mov_b32 s67, s{sB}")
    p(f"s_and_b32 s{sT3}, s{sWV}, 1")
    p(f"s_lshl_b32 s{sT3}, s{sT3}, 9")
    p(f"s_add_u32 s{sB}, s{sB}, s{sT3}")
    p(f"s_add_u32 s{sB}, s{sB}, {KM:#x}")
    p(f"v_add_u32 v{t1}, s{sB}, v{t1}")
    p(f"v_cndmask_b32 v{vKM}, v{t3}, v{t1}, s[70:71]")
    p(f"v_lshlrev_b32 v{t1}, 2, v{G}")
    p(f"v_lshl_add_u32 v{t1}, v{C}, 4, v{t1}")
    p(f"s_lshl_b32 s{sT3}, s{sWV}, 8")
    p(f"s_add_u32 s{sB}, s67, s{sT3}")
    p(f"s_add_u32 s{sB}, s{sB}, {VM:#x}")
    p(f"v_add_u32 v{vVM}, s{sB}, v{t1}")
    p(f"v_lshlrev_b32 v{t1}, 9, v{G}")
    p(f"v_lshl_add_u32 v{t1}, v{C}, 4, v{t1}")
    p(f"s_lshl_b32 s67, s{sH}, 13")
    p(f"s_lshl_b32 s{sT3}, s{sJ}, 12")
    p(f"s_add_u32 s67, s67, s{sT3}")
    p(f"s_lshr_b32 s{sT3}, s{sWV}, 1")
    p(f"s_lshl_b32 s{sT3}, s{sT3}, 11")
    p(f"s_add_u32 s{sB}, s67, s{sT3}")
    p(f"s_and_b32 s{sT3}, s{sWV}, 1")
    p(f"s_lshl_b32 s{sT3}, s{sT3}, 8")
    p(f"s_add_u32 s{sB}, s{sB}, s{sT3}")
    p(f"s_add_u32 s{sB}, s{sB}, {VF:#x}")
    p(f"v_add_u32 v{vVx}, s{sB}, v{t1}")
    p(f"v_lshrrev_b32 v{t1}, 3, v{C}")
    p(f"v_lshlrev_b32 v{t1}, 4, v{t1}")
    p(f"v_and_b32 v{t2}, 7, v{C}")
    p(f"v_add_u32 v{t1}, v{t1}, v{t2}")
    p(f"v_lshlrev_b32 v{t2}, 9, v{G}")
    p(f"v_lshl_add_u32 v{t1}, v{t1}, 4, v{t2}")
    p(f"s_and_b32 s{sT3}, s{sWV}, 1")
    p(f"s_lshl_b32 s{sT3}, s{sT3}, 11")
    p(f"s_add_u32 s{sB}, s67, s{sT3}")
    p(f"s_lshr_b32 s{sT3}, s{sWV}, 1")
    p(f"s_lshl_b32 s{sT3}, s{sT3}, 7")
    p(f"s_add_u32 s{sB}, s{sB}, s{sT3}")
    p(f"s_add_u32 s{sB}, s{sB}, {KF:#x}")
    p(f"v_add_u32 v{vKxg}, s{sB}, v{t1}")
    p(f"v_bfe_u32 v{t1}, v{C}, 2, 1")
    p(f"v_lshlrev_b32 v{t1}, 1, v{t1}")
    p(f"v_xor_b32 v{t1}, v{t1}, v{G}")
    p(f"v_lshlrev_b32 v{t1}, 3, v{t1}")
    p(f"v_lshl_add_u32 v{t1}, v{C}, 5, v{t1}")
    p(f"s_lshl_b32 s{sB}, s{sWV}, 10")
    p(f"s_add_u32 s{sB}, s{sB}, {L_X}")
    p(f"v_add_u32 v{vXw}, s{sB}, v{t1}")
    p(f"v_lshrrev_b32 v{t1}, 1, v{G}")
    p(f"v_lshlrev_b32 v{t1}, 4, v{t1}")
    p(f"v_and_b32 v{t2}, 1, v{G}")
    p(f"v_lshl_add_u32 v59, v{t2}, 2, v{t1}")
    p(f"v_lshlrev_b32 v{t1}, 1, v{t2}")
    p(f"v_xor_b32 v{t1}, v{t1}, v{C}")
    p(f"v_and_b32 v{t1}, 3, v{t1}")
    p(f"v_lshlrev_b32 v{t1}, 3, v{t1}")
    p(f"v_lshl_add_u32 v{t1}, v{t2}, 7, v{t1}")
    p(f"v_lshrrev_b32 v{t2}, 2, v{C}")
    p(f"v_lshl_add_u32 v{t1}, v{t2}, 5, v{t1}")
    p(f"v_lshrrev_b32 v{t2}, 1, v{G}")
    p(f"v_lshl_add_u32 v{t1}, v{t2}, 10, v{t1}")
    p(f"v_add_u32 v{vXq}, {L_X}, v{t1}")
    p(f"v_lshrrev_b32 v{t1}, 3, v{C}")
    p(f"v_lshl_add_u32 v{t1}, v{G}, 1, v{t1}")
    p(f"v_add_u32 v{t1}, s{sWV}, v{t1}")
    p(f"v_and_b32 v{t1}, 3, v{t1}")
    p(f"v_lshlrev_b32 v{t1}, 3, v{t1}")
    p(f"v_lshl_add_u32 v{t1}, v{G}, 9, v{t1}")
    p(f"v_lshrrev_b32 v{t2}, 1, v{C}")
    p(f"v_lshl_add_u32 v{t1}, v{t2}, 5, v{t1}")
    p(f"v_and_b32 v{t2}, 1, v{C}")
    p(f"v_lshl_add_u32 v{t1}, v{t2}, 2, v{t1}")
    p(f"v_add_u32 v{vRw}, {L_R}, v{t1}")
    p(f"v_bfe_u32 v{t1}, v{L}, 2, 1")
    p(f"v_lshl_add_u32 v{t1}, v{G}, 1, v{t1}")
    p(f"v_lshlrev_b32 v{t1}, 8, v{t1}")
    p(f"v_bfe_u32 v{t2}, v{L}, 3, 1")
    p(f"v_lshl_add_u32 v{t1}, v{t2}, 7, v{t1}")
    p(f"v_and_b32 v{t2}, 3, v{L}")
    p(f"v_lshl_add_u32 v{t1}, v{t2}, 5, v{t1}")
    p(f"s_lshr_b32 s{sB}, s{sWV}, 1")
    p(f"s_lshl_b32 s{sB}, s{sB}, 11")
    p(f"s_add_u32 s{sB}, s{sB}, {L_R}")
    p(f"v_add_u32 v{vRr}, s{sB}, v{t1}")
    p(f"v_mov_b32 v{t1}, 0x4444")
    p(f"v_mov_b32 v{t2}, 0xeeee")
    p(f"v_cndmask_b32 v{vIdx}, v{t2}, v{t1}, s[70:71]")
    for k in range(4):
        p(f"v_mov_b32 v{vONE + k}, 0x3f803f80")
        p(f"v_mov_b32 v{vSENT + k}, -1")
    p(f"v_mov_b32 v{vVMo}, 0")
    p(f"v_mov_b32 v{vVMo + 1}, 0")
    p(f"v_mov_b32 v{t1}, 0x3f80")
    p(f"v_mov_b32 v{t2}, 0x3f800000")
    p(f"v_and_b32 v{t0}, 1, v{L}")
    p(f"v_cmp_eq_u32 vcc, 1, v{t0}")
    p(f"v_cndmask_b32 v{t1}, v{t1}, v{t2}, vcc")
    p(f"v_and_b32 v{t0}, 2, v{L}")
    p(f"v_cmp_eq_u32 vcc, 0, v{t0}")
    p(f"v_cndmask_b32 v{vID}, 0, v{t1}, vcc")
    p(f"v_cndmask_b32 v{vID + 1}, v{t1}, 0, vcc")
    p(f"v_lshlrev_b32 v{t0}, 4, v{L}")
    p(f"s_mul_i32 s{sB}, s{sWV}, {SLOT:#x}")
    p(f"s_add_u32 s{sB}, s{sB}, s{sRB}")
    p(f"s_lshl_b32 s{sT3}, s{sR}, 11")
    p(f"s_add_u32 s67, s{sB}, s{sT3}")
    p(f"s_add_u32 s67, s67, {R_S:#x}")
    p(f"buffer_store_dwordx4 v[{vSENT}:{vSENT + 3}], v{t0}, s[{sWS}:{sWS + 3}], s67 offen{isc}")
    p(f"buffer_store_dwordx4 v[{vSENT}:{vSENT + 3}], v{t0}, s[{sWS}:{sWS + 3}], s67 offen offset:1024{isc}")
    p(f"s_lshl_b32 s{sT3}, s{sR}, 10")
    p(f"s_add_u32 s68, s{sB}, s{sT3}")
    p(f"s_add_u32 s68, s68, {R_O:#x}")
    p(f"buffer_store_dwordx4 v[{vSENT}:{vSENT + 3}], v{t0}, s[{sWS}:{sWS + 3}], s68 offen{isc}")
    p(f"v_cndmask_b32 v{t1}, v{t3}, v{t0}, s[72:73]")
    p(f"s_lshl_b32 s{sT3}, s{sR}, 9")
    p(f"s_add_u32 s69, s{sB}, s{sT3}")
    p(f"buffer_store_dwordx4 v[{vSENT}:{vSENT + 3}], v{t1}, s[{sWS}:{sWS + 3}], s69 offen{isc}")
    p(f"s_add_u32 s67, s69, {R_MX:#x}")
    p(f"buffer_store_dwordx4 v[{vSENT}:{vSENT + 3}], v{t1}, s[{sWS}:{sWS + 3}], s67 offen sc1")
    p(f"v_mov_b32 v{t1}, 0")
    p("s_mov_b64 exec, 1")
    p(f"buffer_store_{'byte' if fbyte else 'dword'} v{t1}, off, s[{sWS}:{sWS + 3}], s{sFO}{isc}")
    p("s_mov_b64 exec, -1")
    p(f"s_lshl_b32 s67, s{sR}, 11")
    p(f"s_add_u32 s67, s67, {R_S:#x}")
    p(f"s_lshl_b32 s68, s{sR}, 10")
    p(f"s_add_u32 s68, s68, {R_O:#x}")
    p(f"s_cmp_eq_u32 s{sWV}, 1")
    p(f"s_cselect_b32 s67, s68, s67")
    p(f"s_lshl_b32 s68, s{sR}, 9")
    p(f"s_cmp_eq_u32 s{sWV}, 2")
    p(f"s_cselect_b32 s67, s68, s67")
    p(f"s_add_u32 s68, s68, {R_MX:#x}")
    p(f"s_cmp_eq_u32 s{sWV}, 3")
    p(f"s_cselect_b32 s67, s68, s67")
    p(f"s_add_u32 s67, s67, s{sRB}")
    p(f"s_cmp_ge_u32 s{sWV}, 2")
    p(f"s_cselect_b64 s[74:75], s[72:73], -1")
    p(f"v_add_u32 v{t1}, s67, v{t0}")
    p(f"v_cndmask_b32 v{vRst}, v{t3}, v{t1}, s[74:75]")
    p(f"v_lshrrev_b32 v{t0}, 3, v{C}")
    p(f"v_lshl_add_u32 v{t1}, v{t0}, 3, v59")
    p(f"v_bfe_u32 v{t2}, v{C}, 2, 1")
    p(f"v_add_u32 v{t1}, v{t1}, v{t2}")
    p(f"v_and_b32 v{t2}, 1, v{G}")
    p(f"v_lshl_add_u32 v{t2}, v{t0}, 1, v{t2}")
    p(f"v_lshlrev_b32 v{t2}, 1, v{t2}")
    p(f"v_bfe_u32 v{t0}, v{C}, 1, 1")
    p(f"s_lshl_b32 s{sB}, s{sWV}, 1")
    p(f"v_add_u32 v{t0}, s{sB}, v{t0}")
    p(f"v_xor_b32 v{t0}, v{t0}, v{t2}")
    p(f"v_lshlrev_b32 v{t0}, 4, v{t0}")
    p(f"v_lshl_add_u32 v{t1}, v{t1}, 7, v{t0}")
    p(f"v_and_b32 v{t0}, 1, v{C}")
    p(f"v_lshl_add_u32 v{t1}, v{t0}, 3, v{t1}")
    p(f"v_add_u32 v{vTr0}, {L_WO}, v{t1}")
    p(f"v_add_u32 v{vTr1}, {L_WO + 65536}, v{t1}")
    p(f"v_lshrrev_b32 v{t0}, 2, v{L}")
    p(f"v_and_b32 v{t1}, 9, v{t0}")
    p(f"v_bfe_u32 v{t2}, v{t0}, 1, 1")
    p(f"v_lshl_add_u32 v{t1}, v{t2}, 2, v{t1}")
    p(f"v_bfe_u32 v{t2}, v{t0}, 2, 1")
    p(f"v_lshl_add_u32 v{t1}, v{t2}, 1, v{t1}")
    p(f"v_lshrrev_b32 v{t0}, 5, v{L}")
    p(f"v_lshlrev_b32 v{t0}, 1, v{t0}")
    p(f"v_and_b32 v{t2}, 3, v{L}")
    p(f"v_xor_b32 v{t0}, v{t0}, v{t2}")
    p(f"v_lshlrev_b32 v{t0}, 4, v{t0}")
    p(f"v_lshl_add_u32 v{t1}, v{t1}, 11, v{t0}")
    p(f"s_lshl_b32 s{sB}, s{sX}, 22")
    p(f"s_lshl_b32 s{sT3}, s{sWV}, 15")
    p(f"s_add_u32 s{sB}, s{sB}, s{sT3}")
    p(f"s_lshl_b32 s{sT3}, s{sR}, 6")
    p(f"s_add_u32 s{sB}, s{sB}, s{sT3}")
    p(f"v_add_u32 v{vWog}, s{sB}, v{t1}")
    p(f"v_lshrrev_b32 v{t0}, 3, v{C}")
    p(f"v_and_b32 v{t1}, 1, v{G}")
    p(f"v_lshlrev_b32 v{t1}, 1, v{t1}")
    p(f"v_lshl_add_u32 v{t1}, v{t0}, 3, v{t1}")
    p(f"v_bfe_u32 v{t2}, v{C}, 2, 1")
    p(f"v_add_u32 v{t1}, v{t1}, v{t2}")
    p(f"v_lshlrev_b32 v{t1}, 6, v{t1}")
    p(f"v_lshl_add_u32 v{t1}, v{t0}, 5, v{t1}")
    p(f"v_and_b32 v{t2}, 3, v{C}")
    p(f"v_lshl_add_u32 v{t1}, v{t2}, 3, v{t1}")
    p(f"v_lshrrev_b32 v{t0}, 1, v{G}")
    p(f"v_lshl_add_u32 v{t1}, v{t0}, 10, v{t1}")
    p(f"s_lshl_b32 s{sT3}, s{sWV}, {14 if ring else 15}")
    p(f"s_add_u32 s{sT3}, s{sT3}, {L_WO}")
    p(f"v_add_u32 v{vWoT0}, s{sT3}, v{t1}")
    p(f"v_xor_b32 v{vWoT1}, 32, v{vWoT0}")
    vM0a = 66
    p(f"v_lshlrev_b32 v{t0}, 11, v{MU}")
    p(f"v_lshl_add_u32 v{t0}, v{G}, 5, v{t0}")
    p(f"v_lshl_add_u32 v{t0}, v{BE}, 4, v{t0}")
    p(f"s_lshl_b32 s{sT3}, s{sWV}, 9")
    p(f"v_add_u32 v{vM0a}, s{sT3}, v{t0}")

    def read_chunk(half, dst, isa):
        va = vTr0 if half == 0 else vTr1
        for kk in range(8):
            ks = half * 8 + kk
            for q, off in enumerate((0, 256, 4096, 4352)):
                r = dst + 8 * ks + 2 * q
                reg = a(r, 2) if isa else v(r, 2)
                p(f"ds_read_b64_tr_b16 {reg}, v{va} offset:{kk * 8192 + off}")
        p("s_waitcnt lgkmcnt(0)")
        p("s_barrier")

    p(f"s_waitcnt vmcnt({22 + ln_stores})")
    p("s_barrier")
    read_chunk(0, 0, True)
    srd(p, sW, pWK, 0x800000)
    dma(0, 0, vWg, 262144)
    p("s_waitcnt vmcnt(16)")
    p("s_barrier")
    lab = p.uid("nobar")
    p(f"s_cmp_lg_u32 s{sWV}, 0")
    p(f"s_cbranch_scc1 {lab}")
    p("s_mov_b64 exec, 1")
    p(f"v_mov_b32 v{t0}, 1")
    p(f"buffer_atomic_add v{t0}, off, s[{sDBG}:{sDBG + 3}], 0 offset:{D_CBAR * 4} sc1")
    if ln_word is not None:
        p(f"buffer_atomic_add v{t0}, off, s[{sDBG}:{sDBG + 3}], s76 sc1")
    p("s_mov_b64 exec, -1")
    p.label(lab)
    read_chunk(1, 0, True)
    dma(1, 512 * 8192, vWg, 262144)
    p("s_waitcnt vmcnt(16)")
    p("s_barrier")
    read_chunk(0, 128, True)
    if ring:
        def wo_src(c):
            return lambda n: (512 * (n // 4) + 64 * (4 * c + n % 4)) * 2048

        def wo_regs(c):
            for kk in range(4):
                for t in range(2):
                    va = vWoT0 if t == 0 else vWoT1
                    for q, off in enumerate((0, 256, 2048, 2304)):
                        p(f"ds_read_b64_tr_b16 {v(vWV + 16 * (4 * c + kk) + 8 * t + 2 * q, 2)}, v{va} offset:{kk * 4096 + off}")
            p(f"v_add_u32 v{vWoT0}, 0x10000, v{vWoT0}")
            p(f"v_add_u32 v{vWoT1}, 0x10000, v{vWoT1}")
            p("s_waitcnt lgkmcnt(0)")
            p("s_barrier")

        srd(p, sW, pWO, 0x800000)
        dma(0, 0, vWog, wo_src(0))
        p("s_waitcnt vmcnt(16)")
        p("s_barrier")
        read_chunk(1, 128, True)
        dma(1, 0, vWog, wo_src(1))
        p("s_waitcnt vmcnt(16)")
        p("s_barrier")
        wo_regs(0)
        srd(p, sW, pWV, 0x800000)
        dma(0, 0, vWg, 262144)
        p("s_waitcnt vmcnt(16)")
        p("s_barrier")
        wo_regs(1)
        dma(1, 512 * 8192, vWg, 262144)
        p("s_waitcnt vmcnt(0)")
        p("s_barrier")
        for grp in ((0, 1, 2), (3, 4, 5), (6, 7)):
            for i, kk in enumerate(grp):
                for half in range(2):
                    for q, off in enumerate((0, 256, 4096, 4352)):
                        p(f"ds_read_b64_tr_b16 {v(72 + 16 * i + 8 * half + 2 * q, 2)}, v{vTr0 + half} offset:{kk * 8192 + off}")
            p("s_waitcnt lgkmcnt(0)")
            p("s_barrier")
            for i, kk in enumerate(grp):
                for q in range(4):
                    p(f"ds_write_b128 v{vWo}, {v(72 + 16 * i + 4 * q, 4)} offset:{kk * 8192 + q * 1024}")
    else:
        srd(p, sW, pWV, 0x800000)
        dma(0, 0, vWg, 262144)
        p("s_waitcnt vmcnt(16)")
        p("s_barrier")
        read_chunk(1, 128, True)
        dma(1, 512 * 8192, vWg, 262144)
        p("s_waitcnt vmcnt(16)")
        p("s_barrier")
        read_chunk(0, vWV, False)
        srd(p, sW, pWO, 0x800000)
        dma(0, 0, vWog, 64 * 2048)
        p("s_waitcnt vmcnt(16)")
        p("s_barrier")
        read_chunk(1, vWV, False)
        dma(1, 1024 * 2048, vWog, 64 * 2048)
        p("s_waitcnt vmcnt(0)")
        p("s_barrier")
        for kk in range(8):
            b = 68 + 16 * (kk % 2)
            for t in range(2):
                va = vWoT0 if t == 0 else vWoT1
                for q, off in enumerate((0, 256, 2048, 2304)):
                    p(f"ds_read_b64_tr_b16 {v(b + 8 * t + 2 * q, 2)}, v{va} offset:{kk * 4096 + off}")
            p("s_waitcnt lgkmcnt(0)")
            for q in range(4):
                p(f"ds_write_b128 v{vWo}, {v(b + 4 * q, 4)} offset:{kk * 4096 + q * 1024}")
    if mark:
        p(mark)
    srd(p, sW, pMEM, 16384)
    p(f"v_mov_b32 v{vT0}, v{vM0a}")
    for kk in range(4):
        p(f"buffer_load_dwordx4 {v(vF + 4 * kk, 4)}, v{vT0}, s[{sW}:{sW + 3}], 0 offen offset:{kk * 128}")
    lab = p.uid("cbar")
    p(f"s_mov_b32 s{sBUD}, 0x40000")
    p.label(lab)
    p(f"buffer_load_dword v{vT1}, off, s[{sDBG}:{sDBG + 3}], 0 offset:{D_CBAR * 4} sc1")
    p("s_waitcnt vmcnt(0)")
    p(f"v_readfirstlane_b32 s{sT0}, v{vT1}")
    p(f"s_cmp_ge_u32 s{sT0}, 64")
    p(f"s_cbranch_scc1 {lab}_ok")
    p(f"s_sub_u32 s{sBUD}, s{sBUD}, 1")
    p(f"s_cmp_lg_u32 s{sBUD}, 0")
    p(f"s_cbranch_scc1 {lab}")
    p.label(lab + "_ok")
    p(f"s_lshr_b32 s{sKVB}, s{sR}, 1")
    p(f"s_lshl_b32 s{sT3}, s{sX}, 4")
    p(f"s_add_u32 s{sKVB}, s{sKVB}, s{sT3}")
    p(f"s_lshl_b32 s{sKVB}, s{sKVB}, 6")
    p(f"s_add_u32 s{sKVB}, s{sKVB}, {FL2 + 40:#x}")
    p(f"s_mov_b32 s{sKVC}, s{sKVB}")
    if kvwait:
        for nm, tgt, msk, ld in (
                ("xn0", 32, 28, f"buffer_load_dword v{vT1}, v{vT0}, s[{sDBG}:{sDBG + 3}], 0 offen offset:{D_XN * 4} sc1"),
                ("kv0", 1, 4, f"buffer_load_dword v{vT1}, v{vT0}, s[{sWS}:{sWS + 3}], s{sKVC} offen sc1")):
            lab = p.uid(nm)
            p(f"v_and_b32 v{vT0}, {msk}, v{vFr}")
            p(f"s_mov_b32 s{sBUD}, 0x40000")
            p.label(lab)
            p(ld)
            p("s_waitcnt vmcnt(0)")
            p(f"v_cmp_gt_u32 vcc, {tgt}, v{vT1}")
            p(f"s_cbranch_vccz {lab}_ok")
            p(f"s_sub_u32 s{sBUD}, s{sBUD}, 1")
            p(f"s_cmp_lg_u32 s{sBUD}, 0")
            p(f"s_cbranch_scc1 {lab}")
            p.label(lab + "_ok")
    p(f"s_mov_b32 s{sBUD}, 0x40000")
    p(f"s_mov_b32 s{sS}, 0")
    p(f"s_mov_b32 s{sS1}, 1")
    p(f"s_mov_b32 s{sCUR}, 0")
    p(f"s_mov_b32 s{sCUR4}, 4096")
    p(f"s_mov_b32 s{sNXT}, {SLOT:#x}")
    p("s_mov_b32 s93, 0")
    p(f"s_mov_b32 s{sPAT}, 0x01010101")
    p(f"s_mov_b32 s{sPAT + 1}, 0x01010101")
    p(f"s_mov_b32 s{sB1}, 0xcccccccc")
    p(f"s_mov_b32 s{sB1 + 1}, 0xcccccccc")
    p(f"s_mov_b32 s{sPRV}, {3 * SLOT:#x}")
    p(f"s_mov_b32 s{sKV0}, 0")
    p(f"s_mov_b32 s{sKV1}, 0x40000")
    p(f"s_mov_b32 s{sKM}, 0")
    p(f"s_mov_b32 s{sKMP}, 0x4000000")
    for k in range(4):
        p(f"s_mov_b32 s{sCNT + k}, 0")
    p(f"s_lshl_b32 s{sKXM0}, s{sWV}, 10")
    p(f"s_add_u32 s{sKXM0}, s{sKXM0}, {L_KX}")
    p(f"s_mov_b32 m0, s{sKXM0}")
    p(f"s_xor_b32 s{sKXM0}, s{sKXM0}, 4096")
    p(f"buffer_load_dwordx4 v{vKxg}, s[{sWS}:{sWS + 3}], s{sKV0} offen sc1 lds")
    for k in range(12):
        p(f"v_mov_b32 v{vDq + k}, 0")
    p("s_waitcnt vmcnt(0)")


def retry_head(p, site, cont):
    p(f"s_add_u32 s{sCNT + site}, s{sCNT + site}, 1")
    p(f"s_cmp_eq_u32 s{sBUD}, 0")
    p(f"s_cbranch_scc1 {cont}")
    p(f"s_sub_u32 s{sBUD}, s{sBUD}, 1")


def check_sent(p, regs, tmp, target):
    regs = list(regs)
    first = regs[:3]
    rest = regs[3:]
    if len(first) == 3:
        p(f"v_max3_u32 v{tmp}, v{first[0]}, v{first[1]}, v{first[2]}")
    else:
        p(f"v_max_u32 v{tmp}, v{first[0]}, v{first[1]}")
    while rest:
        if len(rest) >= 2:
            p(f"v_max3_u32 v{tmp}, v{tmp}, v{rest[0]}, v{rest[1]}")
            rest = rest[2:]
        else:
            p(f"v_max_u32 v{tmp}, v{tmp}, v{rest[0]}")
            rest = []
    p(f"v_cmp_eq_u32 vcc, -1, v{tmp}")
    p(f"s_cbranch_vccnz {target}")


def masked_reload(q, items):
    for k, (regs, _) in enumerate(items):
        if len(regs) == 1:
            q(f"v_cmp_eq_u32 s[{sMK + 2 * k}:{sMK + 2 * k + 1}], -1, v{regs[0]}")
        else:
            q(f"v_max_u32 v{vT0}, v{regs[0]}, v{regs[1]}")
            q(f"v_cmp_eq_u32 s[{sMK + 2 * k}:{sMK + 2 * k + 1}], -1, v{vT0}")
    for k, (_, ld) in enumerate(items):
        q(f"s_mov_b64 exec, s[{sMK + 2 * k}:{sMK + 2 * k + 1}]")
        q(ld)
    q("s_mov_b64 exec, -1")


def chain_loop(p, w, tag, sc_all=False, stamp=None, done="DONE", opt=None):
    opt = opt or {}
    WS = f"s[{sWS}:{sWS + 3}]"
    loc = " sc1" if sc_all else ""
    tail = Prog()
    B1 = f"s[{sB1}:{sB1 + 1}]"
    DPP = "row_mask:0xf bank_mask:0xf"

    def st(k):
        if stamp is not None and (k in stamp):
            p(f"s_memtime s[{sTS + 2 * k}:{sTS + 2 * k + 1}]")

    def F(u):
        return v(vF + 4 * u, 4)

    def ks_of(u):
        return (4 * w + u) % 16

    def smq(u):
        p(f"v_smfmac_f32_16x16x64_bf16 {v(vDq, 4)}, {F(u)}, {a(8 * ks_of(u), 8)}, v{vIdx}")

    def smk(u):
        p(f"v_smfmac_f32_16x16x64_bf16 {v(vDk, 4)}, {F(u)}, {a(128 + 8 * ks_of(u), 8)}, v{vIdx}")

    ring = opt.get("ring", 1)
    Wb, Fb = {}, {}

    def smv(u):
        if ring:
            p(f"v_smfmac_f32_16x16x64_bf16 {v(vDv, 4)}, {v(Fb.get(u, vF + 4 * u), 4)}, {v(Wb[u], 8)}, v{vIdx}")
        else:
            p(f"v_smfmac_f32_16x16x64_bf16 {v(vDv, 4)}, {F(u)}, {v(vWV + 8 * ks_of(u), 8)}, v{vIdx}")

    lq = []

    def lds(tag_, text):
        p(text)
        lq.append(tag_)

    def lwait(*tags, extra=""):
        k = max((i for i, t in enumerate(lq) if t in tags), default=-1)
        if k >= 0:
            p(f"s_waitcnt {extra}lgkmcnt({min(15, len(lq) - 1 - k)})")
            del lq[:k + 1]
        elif extra:
            p(f"s_waitcnt {extra}")

    def wv_read(u, b, hs=(0, 1)):
        Wb[u] = b
        ks = ks_of(u)
        for hh in hs:
            lds(("W", u), f"ds_read_b128 {v(b + 4 * hh, 4)}, v{vWo} offset:{(ks % 8) * 8192 + (ks // 8) * 2048 + hh * 1024}")

    def f_read(u, b):
        Fb[u] = b
        lds(("F", u), f"ds_read_b128 {v(b, 4)}, v{vSt} offset:{L_ST + ks_of(u) * 1024}")

    def stw(kk):
        p(f"ds_write_b128 v{vSt}, {F(kk)} offset:{L_ST + (4 * w + kk) * 1024}")

    def strd(u):
        p(f"ds_read_b128 {F(u)}, v{vSt} offset:{L_ST + ks_of(u) * 1024}")

    def merge(d, q=p):
        q(f"v_pk_add_f32 {v(d, 2)}, {v(d, 2)}, {v(d + 2, 2)}")

    def mo_ld(kk):
        return f"buffer_load_dwordx4 {v(vMO + 4 * kk, 4)}, v{vMOr}, {WS}, s{sCUR} offen offset:{kk * 1024} sc1"

    def mx_ld(kk):
        return f"buffer_load_dwordx4 {v(vMX + 4 * kk, 4)}, v{vMXr}, {WS}, s{sCUR} offen offset:{kk * 1024} sc1"

    def probe_pipe(sa, val, nm, regs, gap=0):
        K = len(regs)
        for k in range(K - 1):
            p(f"buffer_load_dword v{regs[k]}, v{vFr}, {WS}, s{sa} offen sc1")
            for _ in range(gap):
                p("s_nop 7")
        p.label(f"{tag}_{nm}_probe")
        for k in range(K):
            p(f"buffer_load_dword v{regs[(k + K - 1) % K]}, v{vFr}, {WS}, s{sa} offen sc1")
            p(f"s_waitcnt vmcnt({K - 1})")
            p(f"v_cmp_gt_u32 vcc, {val}, v{regs[k]}")
            p(f"s_cbranch_vccz {tag}_{nm}_go")
        p(f"s_add_u32 s93, s93, {K}")
        p(f"s_sub_u32 s{sBUD}, s{sBUD}, 1")
        p(f"s_cmp_gt_i32 s{sBUD}, 0")
        p(f"s_cbranch_scc1 {tag}_{nm}_probe")
        p(f"s_mov_b32 s{sBUD}, 0")
        p.label(f"{tag}_{nm}_go")

    KMr = vFREE

    def km_read():
        for hh in range(2):
            p(f"ds_read_b64_tr_b16 {v(KMr + 2 * hh, 2)}, v{vXq} offset:{w * 2048 + hh * 256 + 512}")

    def slow_ops():
        p(f"s_mov_b32 m0, s{sKXM0}")
        p(f"s_xor_b32 s{sKXM0}, s{sKXM0}, 4096")
        p(f"buffer_load_dwordx4 v{vKxg}, {WS}, s{sKV1} offen sc1 lds")
        p(f"buffer_load_dwordx4 {v(vVX, 4)}, v{vVx}, {WS}, s{sKV0} offen sc1")

    slow = opt.get("slow", 1)
    p.label(f"{tag}_entry")
    if w == 3:
        p(f"v_mov_b32 v{vKM}, 1")
    for kk in range(4):
        stw(kk)
    if slow == 0:
        slow_ops()
    p(f"s_branch {tag}_apost")

    p.label(f"{tag}_top")
    st(0)
    if w < 2:
        km_read()
    for k in range(12):
        p(f"v_mov_b32 v{vDq + k}, 0")
    if stamp is not None:
        stamp_flush(p, w, stamp)
    p("s_waitcnt vmcnt(0)")
    p("s_barrier")
    for kk in range(4):
        p(mo_ld(kk))
    for kk in range(4):
        p(mx_ld(kk))
    st(1)
    p("s_waitcnt vmcnt(4)")
    p.label(f"{tag}_mo_chk")
    check_sent(p, [vMO + 4 * k for k in range(4)], vT0, f"{tag}_mo_retry")
    p.label(f"{tag}_mo_ok")
    tail.label(f"{tag}_mo_retry")
    retry_head(tail, 0, f"{tag}_mo_ok")
    masked_reload(tail, [([vMO + 4 * k], mo_ld(k)) for k in range(4)])
    tail("s_waitcnt vmcnt(0)")
    tail(f"s_branch {tag}_mo_chk")
    for i in range(8):
        p(f"v_mfma_f32_4x4x4_16b_bf16 {v(vACC + 4 * i, 4)}, {v(vID, 2)}, {v(vMO + 2 * i, 2)}, 0")
    st(2)
    p("s_waitcnt vmcnt(0) lgkmcnt(0)")
    p.label(f"{tag}_mx_chk")
    check_sent(p, [vMX + 4 * k for k in range(4)], vT0, f"{tag}_mx_retry")
    p.label(f"{tag}_mx_ok")
    tail.label(f"{tag}_mx_retry")
    retry_head(tail, 1, f"{tag}_mx_ok")
    masked_reload(tail, [([vMX + 4 * k], mx_ld(k)) for k in range(4)])
    tail("s_waitcnt vmcnt(0)")
    tail(f"s_branch {tag}_mx_chk")
    st(3)

    def acc(i):
        p(f"v_mfma_f32_4x4x4_16b_bf16 {v(vACC + 4 * i, 4)}, {v(vID, 2)}, {v(vMX + 2 * i, 2)}, {v(vACC + 4 * i, 4)}")

    def cv(i):
        p(f"v_cvt_pk_bf16_f32 v{vF + 2 * i}, v{vACC + 4 * i}, v{vACC + 4 * i + 1}")
        p(f"v_cvt_pk_bf16_f32 v{vF + 2 * i + 1}, v{vACC + 4 * i + 2}, v{vACC + 4 * i + 3}")

    acc(0); acc(1); acc(2)
    if slow == 0:
        slow_ops()
    acc(3)
    cv(0)
    acc(4)
    cv(1)
    stw(0)
    acc(5); cv(2)
    acc(6); cv(3); stw(1)
    acc(7)
    cv(4); cv(5); stw(2)
    cv(6); cv(7); stw(3)
    p.label(f"{tag}_apost")
    smq(0); smk(0); smq(1); smk(1)
    if slow == 1:
        slow_ops()
    p("s_waitcnt lgkmcnt(0)")
    p("s_barrier")
    st(4)
    for u in range(4, 16):
        strd(u)
        if u == 7:
            smq(2)
        if u == 10:
            smk(2)
        if u == 13:
            smq(3)
    smk(3)
    extra = []
    rsc = " sc1" if (w == 3 or sc_all) else ""
    if w < 2:
        extra.append(f"buffer_store_dwordx4 {v(KMr, 4)}, v{vKM}, {WS}, s{sKMP} offen sc1")
    extra.append(f"buffer_store_dword v{vVMo}, v{vVM}, {WS}, s{sKMP} offen sc1")
    extra.append(f"buffer_store_dwordx4 {v(vSENT, 4)}, v{vRst}, {WS}, s{sPRV} offen{rsc}")
    if w == 0:
        extra.append(f"buffer_store_dwordx4 {v(vSENT, 4)}, v{vRst}, {WS}, s{sPRV} offen offset:1024{rsc}")
    kvchk = w == 3 and opt.get("kv", True)
    vKVF = vKM
    kv_ld = ["s_mov_b64 exec, 3", f"buffer_load_dword v{vKVF}, v{vFr}, {WS}, s{sKVC} offen sc1", "s_mov_b64 exec, -1"]
    if kvchk:
        extra.append(kv_ld)
    KX, Q2, K2 = vF, vFREE, vF + 16
    T = [vDq, vDk, vFREE + 8]
    lq[:] = [("F", u) for u in range(4, 16)]
    pre = {8: (6, K2, 0), 9: (6, K2, 1), 10: (7, Q2, 0), 11: (7, Q2, 1)} if ring else {}
    for u in range(4, 16):
        lwait(("F", u))
        smq(u)
        if extra:
            x = extra.pop(0)
            for y in (x if isinstance(x, list) else [x]):
                p(y)
        if u in pre:
            wv_read(pre[u][0], pre[u][1], (pre[u][2],))
        if u >= 12:
            lds(("KX", u), f"ds_read_b128 {v(KX + 4 * (u - 12), 4)}, v{vKxl} offset:{(u - 12) * 1024}")
        if u == 15:
            p(f"s_cmp_eq_u32 s{sS}, 63")
        smk(u)
    assert not extra
    st(5)

    def to_x(d, off):
        merge(d)
        p(f"v_cvt_pk_bf16_f32 v{d}, v{d}, v{d + 1}")
        p(f"ds_write2_b32 v{vXw}, v{d}, v{d} offset0:{off} offset1:{off + 1}")

    p(f"s_cbranch_scc1 {tag}_last")
    lq_last = list(lq)
    lwait(("W", 6))
    smv(6)
    to_x(vDq, 0)
    to_x(vDk, 128)
    if ring:
        lq.extend(["x", "x"])
        lwait(("W", 7))
    smv(7)
    p(f"v_xor_b32 v{vKxl}, 4096, v{vKxl}")
    p("s_waitcnt lgkmcnt(0)")
    lq.clear()
    p("s_barrier")
    for ks in range(2):
        for hh in range(2):
            lds("Q2", f"ds_read_b64_tr_b16 {v(Q2 + 4 * ks + 2 * hh, 2)}, v{vXq} offset:{ks * 2048 + hh * 256}")
    for ks in range(2):
        for hh in range(2):
            lds("K2", f"ds_read_b64_tr_b16 {v(K2 + 4 * ks + 2 * hh, 2)}, v{vXq} offset:{ks * 2048 + hh * 256 + 512}")
    nsh = 0 if ring else opt.get("bsh", 3)
    for u in range(8, 8 + nsh):
        smv(u)
    if ring:
        wv_read(8, vF + 24)

    def tile(t):
        for ks in range(2):
            A = v(K2 + 4 * ks, 4) if t == 2 else v(KX + 8 * t + 4 * ks, 4)
            C = "0" if ks == 0 else v(T[t], 4)
            p(f"v_mfma_f32_16x16x32_bf16 {v(T[t], 4)}, {A}, {v(Q2 + 4 * ks, 4)}, {C}")

    if w % 2:
        lwait("K2")
        tile(2); tile(0)
        p(f"buffer_store_dword v{T[2] + w // 2}, v{vSw}, {WS}, s{sCUR} offen{loc}")
        tile(1)
    else:
        lwait("Q2")
        tile(w // 2); tile(1 - w // 2)
        p(f"buffer_store_dwordx4 {v(T[w // 2], 4)}, v{vSw}, {WS}, s{sCUR} offen{loc}")
        lwait("K2")
        tile(2)
    st(6)
    SO, SOm, SP, SPm, PM = vDq, T[2], vDk, T[2] + 1, T[2] + 2
    rest = list(range(8 + nsh, 16))
    if ring:
        for u, b in ((9, KX), (10, KX + 8), (11, K2), (12, Q2)):
            wv_read(u, b)
    else:
        for u in range(6):
            strd(u)
            if rest:
                smv(rest.pop(0))
        while rest:
            smv(rest.pop(0))
    for k in range(4):
        p(f"v_cndmask_b32 v{SO + k}, v{T[0] + k}, v{T[1] + k}, {B1}")
    p(f"v_cndmask_b32 v{SOm}, v{T[2]}, v{T[2] + 1}, {B1}")
    p(f"v_mov_b32 v{PM + 1}, 0")
    WB = [vF + 24 + 8 * i for i in range(5)]
    NB = len(WB)

    def wo_read(n, q=p):
        b = WB[n % NB]
        for hh in range(2):
            q(f"ds_read_b128 {v(b + 4 * hh, 4)}, v{vWo} offset:{n * 2048 + hh * 1024}")

    s_lds = [f"buffer_load_dwordx4 {v(SP, 4)}, v{vSr}, {WS}, s{sCUR} offen sc1",
             f"buffer_load_dword v{SPm}, v{vSr}, {WS}, s{sCUR} offen offset:1024 sc1"]
    spos = opt.get("s_pos", 0)

    def s_issue():
        if opt.get("sack", 1):
            p("s_waitcnt vmcnt(0)")
        for x in s_lds:
            p(x)
        if kvchk and not ring:
            kv_check()

    def kv_check():
        p.label(f"{tag}_kv_chk")
        p(f"v_cmp_eq_u32 vcc, 0, v{vKVF}")
        p(f"s_cbranch_vccnz {tag}_kv_retry")
        p.label(f"{tag}_kv_ok")
        tail.label(f"{tag}_kv_retry")
        tail(f"s_cmp_eq_u32 s{sBUD}, 0")
        tail(f"s_cbranch_scc1 {tag}_kv_ok")
        tail(f"s_sub_u32 s{sBUD}, s{sBUD}, 1")
        for y in kv_ld:
            tail(y)
        tail("s_waitcnt vmcnt(0)")
        tail(f"s_branch {tag}_kv_chk")

    if ring:
        order = list(range(8, 16)) + list(range(6))
        for i, u in enumerate(order):
            if i == spos:
                s_issue()
            lwait(("W", u), ("F", u))
            smv(u)
            if i + 5 < len(order):
                wv_read(order[i + 5], Wb[u])
            if u in (9, 11, 13):
                f_read(u - 9, vF + 4 * (u - 1))
                f_read(u - 8, vF + 4 * u)
        if spos >= len(order):
            s_issue()
    else:
        for u in range(6):
            if u == spos:
                s_issue()
            if u == 0:
                p("s_waitcnt lgkmcnt(0)")
            smv(u)
            if u >= 1:
                wo_read(u - 1)
        if spos >= 6:
            s_issue()
    p(f"s_mov_b32 s{sT0}, {fhex(CEXP)}")
    merge(vDv)
    p(f"v_cvt_pk_bf16_f32 v{vVMo}, v{vDv}, v{vDv + 1}")
    st(7)
    p("s_waitcnt vmcnt(0)")
    p.label(f"{tag}_s_chk")
    p(f"v_pk_add_f32 {v(SP, 2)}, {v(SP, 2)}, {v(SO, 2)}")
    p(f"v_pk_add_f32 {v(SP + 2, 2)}, {v(SP + 2, 2)}, {v(SO + 2, 2)}")
    p(f"v_add_f32 v{SPm}, v{SPm}, v{SOm}")
    p(f"v_maximum3_f32 v{vT0}, v{SP}, v{SP + 1}, v{SP + 2}")
    p(f"v_maximum3_f32 v{vT0}, v{vT0}, v{SP + 3}, v{SPm}")
    p(f"v_cmp_u_f32 vcc, v{vT0}, v{vT0}")
    p(f"s_cbranch_vccnz {tag}_s_retry")
    p.label(f"{tag}_s_ok")
    tail.label(f"{tag}_s_retry")
    retry_head(tail, 2, f"{tag}_s_ok")
    for x in s_lds:
        tail(x)
    tail("s_waitcnt vmcnt(0)")
    tail(f"s_branch {tag}_s_chk")
    st(8)
    E0, E1 = vDq, vDk
    zfill = [E0 + k for k in range(4)]

    def z(n):
        for _ in range(n):
            if zfill:
                p(f"v_mov_b32 v{zfill.pop(0)}, 0")

    p(f"v_max_f32_dpp v{vT1}, v{vT0}, v{vT0} quad_perm:[2,3,0,1] {DPP}")
    p(f"v_max_f32_dpp v{vT2}, v{vT0}, v{vT0} quad_perm:[2,3,0,1] {DPP}")
    z(2)
    p(f"v_permlane32_swap_b32 v{vT1}, v{vT2}")
    p(f"v_max_f32 v{vT0}, v{vT1}, v{vT2}")
    p(f"v_max_f32 v{vT1}, v{vT1}, v{vT2}")
    z(2)
    p(f"v_permlane16_swap_b32 v{vT0}, v{vT1}")
    p(f"v_max_f32 v{vT0}, v{vT0}, v{vT1}")
    p(f"v_mul_f32 v{vT0}, {fhex(-CEXP)}, v{vT0}")
    P, LL, O, OP = 52, 56, 60, vDv

    def pfma(r):
        p(f"v_pk_fma_f32 {v(r, 2)}, {v(r, 2)}, s[{sT0}:{sT0 + 1}], {v(vT0, 2)} op_sel_hi:[1,0,0]")

    p(f"v_fma_f32 v{SPm}, v{SPm}, s{sT0}, v{vT0}")
    pfma(SP)
    p(f"v_exp_f32 v{SPm}, v{SPm}")
    pfma(SP + 2)
    p(f"v_exp_f32 v{SP}, v{SP}")
    p(f"v_mov_b32_dpp v{vT1}, v{SPm} quad_perm:[2,3,2,3] {DPP}")
    p(f"v_exp_f32 v{SP + 1}, v{SP + 1}")
    p(f"v_cvt_pk_bf16_f32 v{PM}, v{SPm}, v{vT1}")
    p(f"v_exp_f32 v{SP + 2}, v{SP + 2}")
    p(f"v_cvt_pk_bf16_f32 v{P}, v{SP}, v{SP + 1}")
    p(f"v_exp_f32 v{SP + 3}, v{SP + 3}")
    p(f"v_mfma_f32_16x16x16_bf16 {v(LL, 4)}, {v(vONE, 2)}, {v(PM, 2)}, 0")
    p(f"v_cvt_pk_bf16_f32 v{P + 1}, v{SP + 2}, v{SP + 3}")
    p(f"v_mov_b32_dpp v{P + 2}, v{P} quad_perm:[2,3,2,3] {DPP}")
    p(f"v_mfma_f32_16x16x16_bf16 {v(O, 4)}, {v(vVMo, 2)}, {v(PM, 2)}, 0")
    p(f"v_mov_b32_dpp v{P + 3}, v{P + 1} quad_perm:[2,3,2,3] {DPP}")
    zfill = [E1 + k for k in range(4)]
    z(2)
    p(f"v_mfma_f32_16x16x32_bf16 {v(LL, 4)}, {v(vONE, 4)}, {v(P, 4)}, {v(LL, 4)}")
    p(f"v_mfma_f32_16x16x32_bf16 {v(O, 4)}, {v(vVX, 4)}, {v(P, 4)}, {v(O, 4)}")
    z(2)
    omode = opt.get("omode", "ring")
    if not ring or omode != "ring":
        p(f"v_mov_b32 v{vT2}, s{sS1}")
    p(f"v_rcp_f32 v{vT0}, v{LL}")
    for r in (0, 2):
        p(f"v_pk_mul_f32 {v(O + r, 2)}, {v(O + r, 2)}, {v(vT0, 2)} op_sel_hi:[1,0]")
    p(f"v_cvt_pk_bf16_f32 v{OP}, v{O}, v{O + 1}")
    p(f"v_cvt_pk_bf16_f32 v{OP + 1}, v{O + 2}, v{O + 3}")
    p(f"buffer_store_dwordx2 {v(OP, 2)}, v{vOw}, {WS}, s{sCUR} offen{loc}")
    if not ring or omode != "ring":
        p("s_mov_b64 exec, 1")
        p(f"buffer_store_{'byte' if omode[0] == 's' else 'dword'} v{vT2}, off, {WS}, s{sFO}{loc}")
        p("s_mov_b64 exec, -1")
    st(9)
    OL = [76 + 4 * k for k in range(8)] if ring else [52, 56, 60, 64, 68, 72, 116, 120]

    def o_ld(kk):
        so = sCUR if kk < 4 else sCUR4
        return f"buffer_load_dwordx4 {v(OL[kk], 4)}, v{vOr}, {WS}, s{so} offen offset:{(kk % 4) * 1024} sc1"

    if ring and omode in ("flag", "sflag"):
        if opt.get("oack", 1):
            p("s_waitcnt vmcnt(0)")
        for _ in range(opt.get("odl", 0)):
            p("s_nop 7")
        if omode == "flag":
            probe_pipe(sFOr, f"s{sS1}", "o", [vT0, vT1, 108, 109][:opt.get("oK", 2)], opt.get("ogap", 0))
        else:
            p.label(f"{tag}_sp")
            p(f"s_buffer_load_dwordx8 s[16:23], {WS}, s{sFOr} glc")
            p("s_waitcnt lgkmcnt(0)")
            for k in range(4):
                p(f"s_cmp_eq_u64 s[{16 + 2 * k}:{17 + 2 * k}], s[{sPAT}:{sPAT + 1}]")
                p(f"s_cbranch_scc0 {tag}_spr")
            p.label(f"{tag}_spgo")
            tail.label(f"{tag}_spr")
            tail("s_add_u32 s93, s93, 1")
            tail(f"s_cmp_eq_u32 s{sBUD}, 0")
            tail(f"s_cbranch_scc1 {tag}_spgo")
            tail(f"s_sub_u32 s{sBUD}, s{sBUD}, 1")
            tail(f"s_branch {tag}_sp")
        for kk in range(8):
            p(o_ld(kk))
        st(10)
        p.label(f"{tag}_o_run")
        for kk in range(8):
            p(f"s_waitcnt vmcnt({7 - kk})")
            p(f"v_smfmac_f32_16x16x64_bf16 {v(E0, 4)}, {v(OL[kk], 4)}, {v(vWV + 16 * kk, 8)}, v{vIdx}")
            if kk == 0:
                p(f"v_max_u32 v{vT0}, v{OL[kk]}, v{OL[kk] + 2}")
            else:
                p(f"v_max3_u32 v{vT0}, v{vT0}, v{OL[kk]}, v{OL[kk] + 2}")
            if kk == 7:
                p(f"v_cmp_eq_u32 vcc, -1, v{vT0}")
            p(f"v_smfmac_f32_16x16x64_bf16 {v(E1, 4)}, {v(OL[kk], 4)}, {v(vWV + 16 * kk + 8, 8)}, v{vIdx}")
        p(f"s_cbranch_vccnz {tag}_o_redo")
        p.label(f"{tag}_o_end")
        tail.label(f"{tag}_o_redo")
        retry_head(tail, 3, f"{tag}_o_end")
        for part in (range(4), range(4, 8)):
            masked_reload(tail, [([OL[kk], OL[kk] + 2], o_ld(kk)) for kk in part])
        for k in range(8):
            tail(f"v_mov_b32 v{E0 + k}, 0")
        tail(f"s_branch {tag}_o_run")
        if kvchk:
            kv_check()
    elif ring:
        sMSK = sMK
        pad = f"buffer_load_dword v108, off, {WS}, s{sCUR}"
        for _ in range(opt.get("odl", 0)):
            p("s_nop 7")
        if opt.get("oack2", 0):
            p("s_waitcnt vmcnt(0)")
        for kk in range(8):
            p(o_ld(kk))
        st(10)

        def chk(q, kk, n, target):
            q(f"s_waitcnt vmcnt({n})")
            q(f"v_max_u32 v{vT0}, v{OL[kk]}, v{OL[kk] + 2}")
            q(f"v_cmp_eq_u32 vcc, -1, v{vT0}")
            q(f"s_cbranch_vccnz {target}")

        def esm(q, kk, t_):
            q(f"v_smfmac_f32_16x16x64_bf16 {v(E0 if t_ == 0 else E1, 4)}, {v(OL[kk], 4)}, {v(vWV + 16 * kk + 8 * t_, 8)}, v{vIdx}")

        for kk in range(8):
            chk(p, kk, 7 - kk, f"{tag}_oc{kk}")
            esm(p, kk, 0)
            esm(p, kk, 1)
            tail.label(f"{tag}_oc{kk}")
            tail(o_ld(kk))
            tail(f"s_mov_b32 s{sMSK}, {(0xff << kk) & 0xff:#x}")
            tail(f"s_add_u32 s{sCNT + 3}, s{sCNT + 3}, 1")
            for _ in range(kk):
                tail(pad)
            tail(f"s_branch {tag}_on{kk}")
        p.label(f"{tag}_o_end")
        tail.label(f"{tag}_oring")
        for kk in range(8):
            tail(f"s_bitcmp1_b32 s{sMSK}, {kk}")
            tail(f"s_cbranch_scc0 {tag}_od{kk}")
            chk(tail, kk, 7, f"{tag}_of{kk}")
            esm(tail, kk, 0)
            tail(f"s_and_b32 s{sMSK}, s{sMSK}, {0xff ^ (1 << kk):#x}")
            esm(tail, kk, 1)
            tail(f"s_cbranch_scc0 {tag}_o_end")
            tail.label(f"{tag}_od{kk}")
            tail(pad)
            tail.label(f"{tag}_on{kk}")
        tail(f"s_cmp_eq_u32 s{sBUD}, 0")
        tail(f"s_cbranch_scc1 {tag}_o_end")
        tail(f"s_sub_u32 s{sBUD}, s{sBUD}, 1")
        tail(f"s_branch {tag}_oring")
        for kk in range(8):
            tail.label(f"{tag}_of{kk}")
            tail(o_ld(kk))
            tail(f"s_add_u32 s93, s93, 1")
            tail(f"s_branch {tag}_on{kk}")
        if kvchk:
            kv_check()
    else:
        oack = opt.get("oack", 1)
        if oack:
            p(f"s_waitcnt vmcnt({oack - 1})")
        probe_pipe(sFOr, f"s{sS1}", "o", [vT0, vT1])
        for kk in range(8):
            p(o_ld(kk))
        st(10)
        p.label(f"{tag}_o_run")
        for kk in range(8):
            for t_ in range(2):
                n = 2 * kk + t_
                lg = 2 * (min(NB, 16 - n) - 1)
                wt = f"vmcnt({7 - kk}) " if t_ == 0 else ""
                p(f"s_waitcnt {wt}lgkmcnt({lg})")
                p(f"v_smfmac_f32_16x16x64_bf16 {v(E0 if t_ == 0 else E1, 4)}, {v(OL[kk], 4)}, {v(WB[n % NB], 8)}, v{vIdx}")
                if n + NB < 16:
                    wo_read(n + NB)
                if t_ == 0:
                    if kk == 0:
                        p(f"v_max_u32 v{vT0}, v{OL[kk]}, v{OL[kk] + 2}")
                    else:
                        p(f"v_max3_u32 v{vT0}, v{vT0}, v{OL[kk]}, v{OL[kk] + 2}")
                    if kk == 7:
                        p(f"v_cmp_eq_u32 vcc, -1, v{vT0}")
        p(f"s_cbranch_vccnz {tag}_o_redo")
        p.label(f"{tag}_o_end")
        tail.label(f"{tag}_o_redo")
        retry_head(tail, 3, f"{tag}_o_end")
        for part in (range(4), range(4, 8)):
            masked_reload(tail, [([OL[kk], OL[kk] + 2], o_ld(kk)) for kk in part])
        for k in range(8):
            tail(f"v_mov_b32 v{E0 + k}, 0")
        for n in range(NB):
            wo_read(n, tail)
        tail(f"s_branch {tag}_o_run")
    st(11)
    p(f"s_mov_b32 s{sPRV}, s{sCUR}")
    p(f"s_mov_b32 s{sCUR}, s{sNXT}")
    merge(E0)
    p(f"ds_write2st64_b32 v{vRw}, v{E0}, v{E0 + 1} offset0:0 offset1:1")
    p(f"s_add_u32 s{sCUR4}, s{sCUR}, 4096")
    merge(E1)
    p(f"ds_write2st64_b32 v{vRw}, v{E1}, v{E1 + 1} offset0:8 offset1:9")
    p(f"s_mov_b32 s{sS}, s{sS1}")
    p(f"s_add_u32 s{sS1}, s{sS1}, 1")
    p(f"s_add_u32 s{sNXT}, s{sNXT}, {SLOT:#x}")
    p(f"s_and_b32 s{sNXT}, s{sNXT}, {3 * SLOT:#x}")
    p(f"s_mov_b32 s{sKV0}, s{sKV1}")
    p(f"s_add_u32 s{sKV1}, s{sKV1}, 0x40000")
    p(f"s_mov_b32 s{sKMP}, s{sKM}")
    p(f"s_add_u32 s{sKM}, s{sKM}, 0x10000")
    if omode[0] == "s":
        p(f"s_add_u32 s{sPAT}, s{sPAT}, 0x01010101")
        p(f"s_mov_b32 s{sPAT + 1}, s{sPAT}")
    p("s_waitcnt lgkmcnt(0)")
    p("s_barrier")
    RD = 52
    for q in range(2):
        p(f"ds_read_b128 {v(RD + 4 * q, 4)}, v{vRr} offset:{16 * q}")
    if kvchk:
        p(f"s_add_u32 s{sT0}, s{sS}, 2")
        p(f"s_min_u32 s{sT0}, s{sT0}, 63")
        p(f"s_lshr_b32 s{sKVC}, s{sT0}, 3")
        p(f"s_lshl_b32 s{sKVC}, s{sKVC}, 11")
        p(f"s_add_u32 s{sKVC}, s{sKVC}, s{sKVB}")
        p(f"s_bitcmp1_b32 s{sT0}, 2")
        p(f"s_cselect_b32 s{sT0}, 12, 0")
        p(f"s_add_u32 s{sKVC}, s{sKVC}, s{sT0}")
    p("s_waitcnt lgkmcnt(1)")
    merge(RD)
    p("s_waitcnt lgkmcnt(0)")
    merge(RD + 4)
    p(f"v_pk_add_f32 {v(RD, 2)}, {v(RD, 2)}, {v(RD + 4, 2)}")
    p(f"v_cvt_pk_bf16_f32 v{vT1}, v{RD}, v{RD + 1}")
    p(f"buffer_store_dword v{vT1}, v{vMw}, {WS}, s{sCUR} offen{' sc1' if w in (1, 2) else loc}")
    p(f"s_branch {tag}_top")

    p.label(f"{tag}_last")
    p("s_waitcnt lgkmcnt(0)")
    if ring:
        lq.clear()
        Fb.clear()
        Wb.update({6: K2, 7: Q2})
        smv(6); smv(7)
        to_x(vDk, 128)
        lq.append("x")
        for u, b in ((8, vF + 24), (9, KX), (10, KX + 8), (11, K2)):
            wv_read(u, b)
        lwait("x")
        p("s_barrier")
        KL = T[2]
        if w < 2:
            for hh in range(2):
                lds("km", f"ds_read_b64_tr_b16 {v(KL + 2 * hh, 2)}, v{vXq} offset:{w * 2048 + hh * 256 + 512}")
        wv_read(12, Q2)
        if w < 2:
            lwait("km")
            p(f"buffer_store_dwordx4 {v(KL, 4)}, v{vKM}, {WS}, s{sKM} offen sc1")
        for i, u in enumerate(order):
            lwait(("W", u), ("F", u))
            smv(u)
            if i + 5 < len(order):
                wv_read(order[i + 5], Wb[u])
            if u in (9, 11, 13):
                f_read(u - 9, vF + 4 * (u - 1))
                f_read(u - 8, vF + 4 * u)
    else:
        for u in range(4):
            strd(u)
        smv(4); smv(5)
        to_x(vDk, 128)
        for u in range(6, 10):
            smv(u)
        p("s_waitcnt lgkmcnt(0)")
        p("s_barrier")
        if w < 2:
            km_read()
        for u in range(10, 14):
            smv(u)
        if w < 2:
            p("s_waitcnt lgkmcnt(0)")
            p(f"buffer_store_dwordx4 {v(KMr, 4)}, v{vKM}, {WS}, s{sKM} offen sc1")
        for u in (14, 15, 0, 1, 2, 3):
            smv(u)
    merge(vDv)
    p(f"v_cvt_pk_bf16_f32 v{vVMo}, v{vDv}, v{vDv + 1}")
    p(f"buffer_store_dword v{vVMo}, v{vVM}, {WS}, s{sKM} offen sc1")
    p(f"s_branch {done}")
    p.items += tail.items


def stamp_flush(p, w, stamp):
    p("s_waitcnt lgkmcnt(0)")
    p(f"s_lshl_b32 s{sT0}, s{sX}, 5")
    p(f"s_add_u32 s{sT0}, s{sT0}, s{sR}")
    p(f"s_lshl_b32 s{sT0}, s{sT0}, 14")
    p(f"s_lshl_b32 s{sT1}, s{sS}, 6")
    p(f"s_add_u32 s{sT0}, s{sT0}, s{sT1}")
    p(f"s_add_u32 s{sT0}, s{sT0}, {STAT + w * 4096:#x}")
    p(f"v_mov_b32 v{vT0}, 0")
    for k in sorted(stamp):
        p(f"v_writelane_b32 v{vT0}, s{sTS + 2 * k}, {k}")
    for k in range(4):
        p(f"v_writelane_b32 v{vT0}, s{sCNT + k}, {12 + k}")
    p(f"v_mbcnt_lo_u32_b32 v{vT1}, -1, 0")
    p(f"v_lshlrev_b32 v{vT1}, 2, v{vT1}")
    p("s_mov_b64 exec, 0xffff")
    p(f"buffer_store_dword v{vT0}, v{vT1}, s[{sWS}:{sWS + 3}], s{sT0} offen")
    p("s_mov_b64 exec, -1")
```
